```python
import torch

def _softmax(x, axis=-1):
    return torch.softmax(x, dim=axis)
def _gelu(x):
    return torch.nn.functional.gelu(x, approximate="tanh")
def _silu(x):
    return torch.nn.functional.silu(x)
def _sigmoid(x):
    return torch.sigmoid(x)
def _layernorm(x, axis=-1, eps=1e-5):
    m = x.mean(dim=axis, keepdim=True)
    v = x.var(dim=axis, keepdim=True, unbiased=False)
    return (x - m) / torch.sqrt(v + eps)
def _scatter_add(tgt, idx, src, axis=0):
    return tgt.clone().index_add_(axis, idx, src)
def _segment_sum(src, seg, n):
    out = torch.zeros((n,) + src.shape[1:], dtype=src.dtype)
    return out.index_add_(0, seg, src)
def _pad(x, pw):
    flat = tuple(v for pair in reversed(pw) for v in pair)
    return torch.nn.functional.pad(x, flat)

kernel_name = 'recurrent_scan__ssm_conv_h3__glu_gated_geglu__prompt'

def setup_inputs():

    _w = (lambda a: (lambda t: t.to(torch.bfloat16) if t.is_floating_point() else t)(torch.as_tensor(a)))
    def _A_setup():
        B, S, D = 1, 2048, 512
        ks = 4
        return {
            "q": _w((lambda *s: torch.randn(*s, dtype=torch.bfloat16) * 0.05)(B, S, D)),
            "k": _w((lambda *s: torch.randn(*s, dtype=torch.bfloat16) * 0.8)(B, S, D)),
            "v": _w((lambda *s: torch.randn(*s, dtype=torch.bfloat16) * 0.8)(B, S, D)),
            "shift_k": _w((lambda *s: torch.randn(*s, dtype=torch.bfloat16) * 0.8)(D, ks) * 0.5),
            "ssm_k": _w((lambda *s: torch.randn(*s, dtype=torch.bfloat16) * 1.6)(D, S) * (1.0 / S ** 0.5)),
            "ssm_D": _w((lambda *s: torch.randn(*s, dtype=torch.bfloat16) * 0.8)(D)),
        }
    _A_in = _A_setup()

    def _B_setup():
        B, S, Dm, Df = 1, 2048, 512, 1792
        return {
            "x": _w((lambda *s: torch.randn(*s, dtype=torch.bfloat16) * 0.05)(B, S, Dm)),
            "w_gate": _w((lambda *s: torch.randn(*s, dtype=torch.bfloat16) * 0.2)(Dm, Df) * (Dm ** -0.5)),
            "w_up": _w((lambda *s: torch.randn(*s, dtype=torch.bfloat16) * 0.2)(Dm, Df) * (Dm ** -0.5)),
            "w_down": _w((lambda *s: torch.randn(*s, dtype=torch.bfloat16) * 0.2)(Df, Dm) * (Df ** -0.5)),
        }
    _B_in = _B_setup()

    return {
        "A_q": _A_in["q"],
        "A_k": _A_in["k"],
        "A_v": _A_in["v"],
        "A_shift_k": _A_in["shift_k"],
        "A_ssm_k": _A_in["ssm_k"],
        "A_ssm_D": _A_in["ssm_D"],
        "B_x": _B_in["x"],
        "B_w_gate": _B_in["w_gate"],
        "B_w_up": _B_in["w_up"],
        "B_w_down": _B_in["w_down"],
    }

def reference(A_q, A_k, A_v, A_shift_k, A_ssm_k, A_ssm_D, B_x, B_w_gate, B_w_up, B_w_down):
    def _A_ref(q, k, v, shift_k, ssm_k, ssm_D):
        B, S, D = q.shape
        ks = shift_k.shape[-1]
        k_pad = _pad(k, ((0, 0), (ks - 1, 0), (0, 0)))
        k_shift = torch.zeros_like(k)
        for t in range(ks):
            k_shift = k_shift + k_pad[:, t:t + S, :] * shift_k[:, ks - 1 - t][None, None, :]
        kv = k_shift * v
        L = 2 * S
        kv_pad = _pad(kv, ((0, 0), (0, S), (0, 0)))
        kf_pad = _pad(ssm_k, ((0, 0), (0, S)))
        kv_f = (lambda x, axes=(-2,-1): torch.fft.rfft2(x.float(), dim=axes))(kv_pad[:, None, :, :], axes=(1, 2))
        kf_f = (lambda x, axes=(-2,-1): torch.fft.rfft2(x.float(), dim=axes))(kf_pad[:, None, :], axes=(1, 2))
        kf_f = (lambda x, *d: x.permute(*d))(kf_f, 1, 2, 0)
        y_f = kv_f * kf_f[None, :, :, :]
        y = (lambda x, s, axes=(-2,-1): torch.fft.irfft2(x, s=s, dim=axes).to(torch.bfloat16))(y_f, (1, L), axes=(1, 2))[:, 0, :S, :]
        y = y + kv * ssm_D[None, None, :]
        return q * y

    def _B_ref(x, w_gate, w_up, w_down):
        g = torch.einsum("bsd,df->bsf", x, w_gate)
        u = torch.einsum("bsd,df->bsf", x, w_up)
        h = _gelu(g) * u
        return torch.einsum("bsf,fd->bsd", h, w_down)

    x = A_q
    xn = _layernorm(x, axis=-1)
    s = _A_ref(xn, A_k, A_v, A_shift_k, A_ssm_k, A_ssm_D)
    g = _silu(_B_ref(xn, B_w_gate, B_w_up, B_w_down))
    return x + s * g
```

```python
import re

TRANS = ("v_exp_f32", "v_log_f32", "v_rcp_f32", "v_rsq_f32", "v_sqrt_f32", "v_sin_f32", "v_cos_f32")
NO_DST_S = ("s_cmp", "s_waitcnt", "s_cbranch", "s_branch", "s_barrier", "s_nop", "s_setprio", "s_endpgm", "s_sleep",
            "s_bitcmp")


def vr(a, n=1):
    return f"v{a}" if n == 1 else f"v[{a}:{a + n - 1}]"


def sr(a, n=1):
    return f"s{a}" if n == 1 else f"s[{a}:{a + n - 1}]"


_REG = re.compile(r"\b([vs])(\d+)\b|\b([vs])\[(\d+):(\d+)\]|\b(vcc|exec|m0|vcc_lo|vcc_hi)\b")


def regs_of(text):
    out = set()
    for m in _REG.finditer(text):
        if m.group(1):
            out.add((m.group(1), int(m.group(2))))
        elif m.group(3):
            out.update((m.group(3), i) for i in range(int(m.group(4)), int(m.group(5)) + 1))
        else:
            name = m.group(6)
            out.add(("x", "vcc" if name.startswith("vcc") else name))
    return out


class Ins:
    def __init__(self, text):
        self.text = text
        t = text.split(";")[0].strip()
        self.label = t.endswith(":") or not t or t.startswith(".")
        self.op = ""
        self.rd, self.wr = set(), set()
        self.srcc = set()
        self.data = set()
        if self.label:
            return
        parts = t.split(None, 1)
        self.op = op = parts[0]
        rest = parts[1] if len(parts) > 1 else ""
        ops = [x.strip() for x in rest.split(",")] if rest else []
        R = [regs_of(x) for x in ops]
        allr = lambda k: set().union(*R[k:]) if len(R) > k else set()
        self.mfma = op.startswith("v_mfma")
        self.valu = op.startswith("v_") and not self.mfma
        self.trans = op.startswith(TRANS)
        self.dpp = "_dpp" in op or "row_" in rest or "quad_perm" in rest
        self.ds = op.startswith("ds_")
        self.vmem = op.startswith(("buffer_", "global_"))
        self.salu = op.startswith("s_")
        self.dma = self.vmem and re.search(r"\blds\b", rest) is not None
        self.store = self.vmem and "store" in op
        if self.mfma:
            self.wr, self.rd, self.srcc = R[0], allr(1), R[3]
            self.ab = R[1] | R[2]
            self.passes = 8 if "32x32x16" in op else 4
        elif op.startswith("v_permlane"):
            self.wr = self.rd = R[0] | R[1]
        elif self.valu:
            self.wr, self.rd = R[0], allr(1)
            if op.startswith(("v_fmac", "v_dot2c")) or self.dpp:
                self.rd = self.rd | R[0]
        elif self.ds:
            if op.startswith(("ds_read", "ds_bpermute")):
                self.wr, self.rd = R[0], allr(1)
            else:
                self.rd = allr(0)
            if "addtid" in op:
                self.rd = self.rd | {("x", "m0")}
        elif self.vmem:
            if self.store:
                self.rd = allr(0)
                if op.endswith(("x3", "x4")):
                    self.data = R[0] if op.startswith("buffer") else R[1]
            elif self.dma:
                self.rd = allr(0) | {("x", "m0")}
            else:
                self.wr, self.rd = R[0], allr(1)
        elif self.salu:
            if op.startswith(NO_DST_S):
                self.rd = allr(0)
            else:
                self.wr, self.rd = R[0], allr(1)

    def states(self):
        if self.label:
            return 0
        if self.op == "s_nop":
            return int(self.text.split()[1]) + 1
        return 1


def _need(p, c):
    n = 0
    isv = lambda s: {r for r in s if r[0] == "v"}
    iss = lambda s: {r for r in s if r[0] == "s" or r == ("x", "vcc")}
    if p.mfma:
        big = p.passes == 8
        if c.mfma:
            if p.wr & c.ab:
                n = max(n, 12 if big else 8)
            if p.wr & c.srcc and not (p.wr == c.srcc and p.passes == c.passes):
                n = max(n, 10 if big else 6)
            if p.wr & c.wr and not p.wr & c.srcc:
                n = max(n, 12 if big else 8)
        elif c.valu or c.ds or c.vmem:
            if p.wr & (c.rd | c.wr):
                n = max(n, 12 if big else 8)
            if c.valu and p.srcc & c.wr:
                n = max(n, 7 if big else 3)
    elif p.valu:
        wv, ws = isv(p.wr), iss(p.wr)
        if c.mfma and wv & c.rd:
            n = max(n, 2)
        if c.valu:
            if p.trans and not c.trans and wv & c.rd:
                n = max(n, 1)
            if c.op.startswith(("v_readfirstlane", "v_readlane")) and wv & c.rd:
                n = max(n, 1)
            if (c.dpp or c.op.startswith("v_permlane")) and wv & c.rd:
                n = max(n, 2)
            if ws & c.rd:
                n = max(n, 4 if c.op.startswith(("v_readlane", "v_writelane")) else 2)
            if ("op_sel" in p.text or "sdwa" in p.op) and wv & (c.rd | c.wr):
                n = max(n, 1)
        if c.vmem and ws & c.rd:
            n = max(n, 5)
        if p.trans and (c.vmem or c.ds) and wv & c.rd:
            n = max(n, 1)
    elif p.salu:
        if ("x", "m0") in p.wr and ("x", "m0") in c.rd and (c.dma or c.ds):
            n = max(n, 1)
    elif p.store and p.data:
        if p.data & c.wr:
            n = max(n, 2 if (c.valu or c.mfma) else 1)
    return n


def fix_hazards(lines):
    out = []
    hist = []
    added = 0
    for text in lines:
        ins = Ins(text)
        if not ins.label:
            dist, pad = 0, 0
            for p in reversed(hist):
                if dist >= 12:
                    break
                if not p.label:
                    pad = max(pad, _need(p, ins) - dist)
                dist += p.states()
            if pad > 0:
                nop = f"s_nop {pad - 1}"
                out.append(nop)
                hist.append(Ins(nop))
                added += pad
        out.append(text)
        hist.append(ins)
        if len(hist) > 40:
            hist = hist[-24:]
    return out, added


class Stream:
    uid = 0

    def __init__(self, name):
        self.name = name
        self.L = []
        self.vm = self.vm_done = 0
        self.lg = self.lg_done = 0
        self.cost = 0
        self.nbar = 0

    def e(self, text):
        for t in text.split("\n"):
            t = t.strip()
            if not t:
                continue
            self.L.append(t)
            op = t.split()[0]
            if op.startswith(TRANS):
                self.cost += 10
            elif op.startswith("v_mfma"):
                self.cost += 32 if "32x32" in op else 16
            elif op.startswith(("buffer_", "global_")):
                self.cost += 10
            elif op.startswith("ds_write_b128"):
                self.cost += 16
            elif not op.endswith(":"):
                self.cost += 5

    def vmem(self, text):
        assert self.vm - self.vm_done < 63
        self.e(text)
        self.vm += 1
        return self.vm

    def ds(self, text):
        if self.lg - self.lg_done >= 15:
            self.wait(lg=self.lg - 11)
        self.e(text)
        self.lg += 1
        return self.lg

    def wait(self, vm=None, lg=None):
        parts = []
        if vm is not None and vm > self.vm_done:
            parts.append(f"vmcnt({min(self.vm - vm, 63)})")
            self.vm_done = max(vm, self.vm - 63)
        if lg is not None and lg > self.lg_done:
            parts.append(f"lgkmcnt({min(self.lg - lg, 15)})")
            self.lg_done = max(lg, self.lg - 15)
        if parts:
            self.e("s_waitcnt " + " ".join(parts))

    def wait_all_lg(self):
        self.e("s_waitcnt lgkmcnt(0)")
        self.lg_done = self.lg

    def barrier(self, name=""):
        self.nbar += 1
        self.e("s_barrier" + (f" ; {name}" if name else ""))

    def label(self, base):
        Stream.uid += 1
        return f"L_{base}_{Stream.uid}"


class Addr:
    def __init__(self, s, reg, base):
        self.s, self.reg, self.base = s, reg, base

    def off(self, target, rebase_to=None):
        d = target - self.base
        if not 0 <= d <= 65535:
            nb = target if rebase_to is None else rebase_to
            self.s.e(f"v_add_u32 v{self.reg}, {(nb - self.base) & 0xffffffff:#x}, v{self.reg}")
            self.base = nb
            d = target - nb
            assert 0 <= d <= 65535
        return f"v{self.reg}", d
```

```python
import struct
import sys
from collections import deque

from asmlib import Addr, Stream, fix_hazards, vr

NAME = "recurrent_scan__ssm_conv_h3__glu_gated_geglu__prompt"

DEFAULTS = dict(stamp=0, kv_after=2, pf=4, upto="all", bud_a=500, bud_b=330, conv_lead=7, poll_limit=40000)

EPOCH, STATS, FKV, FY, FH, STAMPS = 0x0, 0x1000, 0x5000, 0x6000, 0x8000, 0x30000
KVT, YB, HB, WS_END = 0x100000, 0x300000, 0x500000, 0xC00000
TAG_STEP = 0x9E3779B1

X1, X2, X0 = 0, 33280, 66560
ACC0, ST1, ST2, SPARE = 99840, 116224, 132608, 148992
KVB, CFL = SPARE, SPARE + 9216
LDS_BYTES = 163840
G = 2
CH = 16384 + 4096 * G
XSLOT = {2: X1, 3: X2, 4: X0, 5: X1, 6: X2, 7: X0}
RA = (X2, ST1, X0)

sX, sWS, sWD, sOUT, sWG, sWU, sK, sV, sSH, sSK = 4, 8, 12, 16, 20, 24, 28, 32, 36, 40
sDP, sD, sT, sW, sW8 = 44, 46, 47, 48, 49
sXCD, sSLOT, sI, sJ, sROT, sP2, sDB, sBLK = 50, 51, 52, 53, 54, 55, 56, 57
sW1K, sW4K, sW8K, sW8320 = 61, 62, 63, 64
sA, sB_, sC, sE, sF, sCNT, sG = 65, 66, 67, 68, 69, 70, 71
sSTAMP = 72
NSTAMP = 15

srd = lambda n: f"s[{n}:{n + 3}]"
fhex = lambda x: "0x%08x" % struct.unpack("<I", struct.pack("<f", x))[0]
LOG2E = 1.4426950408889634
MFMA32 = "v_mfma_f32_32x32x16_bf16"
MFMA16 = "v_mfma_f32_16x16x32_bf16"


class Gen:
    def __init__(self, **kw):
        self.o = dict(DEFAULTS, **kw)
        self.stamp_names = {}

    def stamp(self, s, name):
        if not self.o["stamp"]:
            return
        names = self.stamp_names.setdefault(s.name, [])
        if len(names) >= NSTAMP - 2:
            return
        names.append(name)
        r = sSTAMP + 2 + 2 * len(names)
        s.e(f"s_memtime s[{r}:{r + 1}]")

    def finish(self, s):
        if self.o["stamp"]:
            s.e("s_waitcnt vmcnt(0)")
            self.stamp(s, "end")
            s.e(f"""s_waitcnt lgkmcnt(0)
                s_lshl_b32 s{sA}, s2, 9
                s_lshl_b32 s{sB_}, s{sW8}, 6
                s_add_u32 s{sA}, s{sA}, s{sB_}
                s_add_u32 s{sA}, s{sA}, {STAMPS}
                v_mov_b32 v1, 0""")
            for k in range(2 + len(self.stamp_names[s.name])):
                s.e(f"v_mov_b32 v2, s{sSTAMP + 2 * k}")
                s.e(f"buffer_store_dword v2, v1, {srd(sWS)}, s{sA} offen offset:{4 * k}")
        s.e("s_endpgm")

    def poll(self, s, tok, issue, regs):
        def check():
            s.e(f"v_cmp_ne_u32 vcc, s{sT}, v{regs[0]}")
            for r in regs[1:]:
                s.e(f"v_cmp_ne_u32 s[{sE}:{sE + 1}], s{sT}, v{r}")
                s.e(f"s_or_b64 vcc, vcc, s[{sE}:{sE + 1}]")
        ok, again = s.label("ok"), s.label("poll")
        s.wait(vm=tok)
        check()
        s.e(f"s_cbranch_vccz {ok}")
        s.e(f"s_mov_b32 s{sCNT}, 0")
        s.e(f"{again}:")
        for t in issue:
            s.e(t)
        s.e("s_waitcnt vmcnt(0)")
        check()
        s.e(f"""s_add_u32 s{sCNT}, s{sCNT}, 1
            s_cmp_gt_u32 s{sCNT}, {self.o['poll_limit']}
            s_cbranch_scc1 {ok}
            s_cbranch_vccnz {again}
            {ok}:""")

    def flag(self, s, vT, vZ, soff):
        s.e("s_mov_b64 exec, 1")
        t = s.vmem(f"buffer_store_dword v{vT}, v{vZ}, {srd(sWS)}, {soff} offen sc1")
        s.e("s_mov_b64 exec, -1")
        return t

    def tag_ready(self, s):
        s.wait_all_lg()
        s.e(f"s_add_u32 s{sT}, s{sT}, {TAG_STEP:#x}")

    def row_of_group(self, s, dst, g):
        s.e(f"""s_add_u32 s{dst}, s{sJ}, {g >> 1}
            s_and_b32 s{dst}, s{dst}, 3
            s_lshl_b32 s{dst}, s{dst}, 6
            s_add_u32 s{dst}, s{dst}, s{sI}""")
        if g & 1:
            s.e(f"s_add_u32 s{dst}, s{dst}, 32")

    def block_ids(self, s, first, count):
        for b in range(count):
            d = sBLK + b
            s.e(f"""s_add_u32 s{sA}, s{sW}, {first + 4 * b}
                s_mul_i32 s{sB_}, s{sA}, 37
                s_lshr_b32 s{sB_}, s{sB_}, 8
                s_mul_i32 s{sC}, s{sB_}, 7
                s_sub_u32 s{sA}, s{sA}, s{sC}
                s_add_u32 s{sA}, s{sA}, s{sDB}
                s_sub_u32 s{sC}, s{sA}, 7
                s_cmp_ge_u32 s{sA}, 7
                s_cselect_b32 s{sA}, s{sC}, s{sA}
                s_sub_u32 s{sB_}, s{sP2}, s{sB_}
                s_and_b32 s{sB_}, s{sB_}, 3
                s_lshl_b32 s{sA}, s{sA}, 2
                s_add_u32 s{d}, s{sA}, s{sB_}""")
        for b in range(count, 4):
            s.e(f"s_mov_b32 s{sBLK + b}, s{sBLK + count - 1}")

    def hflag_addr(self, s, v, t):
        s.e(f"""v_bfe_u32 v{t}, v0, 2, 2
            v_mov_b32 v{v}, s{sBLK}""")
        for b in range(1, 4):
            s.e(f"""v_mov_b32 v{t + 1}, s{sBLK + b}
                v_cmp_eq_u32 vcc, {b}, v{t}
                v_cndmask_b32 v{v}, v{v}, v{t + 1}, vcc""")
        s.e(f"""s_mul_i32 s{sA}, s{sP2}, {28 * 128}
            s_add_u32 s{sA}, s{sA}, {FH}
            v_and_b32 v{t}, 3, v0
            v_lshlrev_b32 v{t}, 2, v{t}
            v_lshl_add_u32 v{v}, v{v}, 7, v{t}
            v_add_u32 v{v}, s{sA}, v{v}""")

    def wd_lane_addrs(self, s, vD, vR0, vR1, t, base):
        s.e(f"""v_lshrrev_b32 v{t}, 3, v0
            v_bfe_u32 v{t + 1}, v0, 4, 1
            v_lshlrev_b32 v{t + 1}, 2, v{t + 1}
            v_and_b32 v{vD}, 7, v0
            v_xor_b32 v{vD}, v{vD}, v{t + 1}
            v_lshlrev_b32 v{vD}, 4, v{vD}
            v_lshl_add_u32 v{vD}, v{t}, 10, v{vD}
            v_lshrrev_b32 v{t}, 5, v0
            v_lshlrev_b32 v{vR0}, 10, v{t}
            v_bfe_u32 v{t}, v0, 2, 2
            v_lshl_add_u32 v{vR0}, v{t}, 7, v{vR0}
            v_bfe_u32 v{t}, v0, 3, 1
            v_lshl_add_u32 v{vR0}, v{t}, 6, v{vR0}
            v_bfe_u32 v{t}, v0, 4, 1
            v_lshl_add_u32 v{vR0}, v{t}, 5, v{vR0}
            v_and_b32 v{t}, 3, v0
            v_lshl_add_u32 v{vR0}, v{t}, 3, v{vR0}
            v_xor_b32 v{vR1}, 64, v{vR0}
            s_add_u32 s{sA}, s{sW8K}, {base}
            v_add_u32 v{vR0}, s{sA}, v{vR0}
            v_add_u32 v{vR1}, s{sA}, v{vR1}""")

    def wd_dma(self, s, vD, b, e, lds):
        s.e(f"""s_lshl_b32 s{sA}, s{sBLK + b}, 16
            s_add_u32 s{sA}, s{sA}, s{sG}
            s_add_u32 m0, s{sW8K}, {lds}""")
        if e:
            s.e(f"s_add_u32 s{sA}, s{sA}, {e * 8192}")
        return s.vmem(f"buffer_load_dwordx4 v{vD}, {srd(sWD)}, s{sA} offen lds")

    def partial_addrs(self, s, v, t):
        s.e(f"""v_and_b32 v{t}, 31, v0
            v_lshlrev_b32 v{t}, 8, v{t}
            v_add_u32 v{t}, s{sW8K}, v{t}
            v_lshrrev_b32 v{t + 1}, 5, v0
            v_and_b32 v{t + 2}, 7, v0
            v_xor_b32 v{t + 1}, v{t + 1}, v{t + 2}""")
        for i in range(4):
            s.e(f"""v_xor_b32 v{t + 2}, {2 * i}, v{t + 1}
                v_lshl_add_u32 v{v + i}, v{t + 2}, 4, v{t}""")
        return [Addr(s, v + i, 0) for i in range(4)]

    def partial_write(self, s, pa, acc, region, dt, i):
        r, o = pa[i].off(region + dt * 128, region)
        return s.ds(f"ds_write_b128 {r}, {vr(acc + 16 * dt + 4 * i, 4)} offset:{o}")

    def h_soff(self, s, b, th):
        s.e(f"""s_lshl_b32 s{sA}, s{sBLK + b}, 12
            s_add_u32 s{sC}, s{sA}, s{sF}""")
        if th:
            s.e(f"s_add_u32 s{sC}, s{sC}, 114688")

    def entry(self):
        s = Stream("entry")
        if self.o["stamp"]:
            s.e(f"s_memrealtime s[{sSTAMP}:{sSTAMP + 1}]")
            s.e(f"s_memtime s[{sSTAMP + 2}:{sSTAMP + 3}]")
        s.e("s_cmp_ge_u32 s2, 256\ns_cbranch_scc1 L_exit")
        for reg, slot in ((sWG, 7), (sWU, 8), (sX, 0), (sWS, 12), (sK, 1), (sV, 2), (sSH, 3), (sSK, 4), (sDP, 5),
                          (sWD, 9), (sOUT, 10)):
            s.e(f"s_load_dwordx2 s[{reg}:{reg + 1}], s[0:1], {slot * 8}")
        s.e(f"""v_lshrrev_b32 v1, 6, v0
            v_and_b32 v0, 63, v0
            v_readfirstlane_b32 s{sW8}, v1""")
        for reg, size in ((sX, 2097152), (sWS, WS_END), (sWD, 1835008), (sOUT, 2097152), (sWG, 1835008),
                          (sWU, 1835008), (sK, 2097152), (sV, 2097152), (sSH, 4096), (sSK, 2097152)):
            s.e(f"s_mov_b32 s{reg + 2}, {size}\ns_mov_b32 s{reg + 3}, 0x00020000")
        s.e(f"""s_and_b32 s{sW}, s{sW8}, 3
            s_and_b32 s{sXCD}, s2, 7
            s_lshr_b32 s{sSLOT}, s2, 3
            s_and_b32 s{sA}, s{sXCD}, 1
            s_lshl_b32 s{sA}, s{sA}, 2
            s_lshr_b32 s{sB_}, s{sXCD}, 1
            s_and_b32 s{sC}, s{sSLOT}, 3
            s_lshr_b32 s{sDB}, s{sSLOT}, 2
            s_add_u32 s{sI}, s{sA}, s{sC}
            s_lshl_b32 s{sI}, s{sI}, 8
            s_mul_i32 s{sJ}, s{sB_}, 7
            s_add_u32 s{sJ}, s{sJ}, s{sDB}
            s_lshr_b32 s{sROT}, s{sDB}, 2
            s_lshl_b32 s{sE}, s{sC}, 1
            s_add_u32 s{sROT}, s{sROT}, s{sE}
            s_add_u32 s{sP2}, s{sA}, s{sB_}
            s_lshl_b32 s{sP2}, s{sP2}, 2
            s_add_u32 s{sP2}, s{sP2}, s{sC}
            s_lshl_b32 s{sW1K}, s{sW}, 10
            s_lshl_b32 s{sW4K}, s{sW}, 12
            s_lshl_b32 s{sW8K}, s{sW}, 13
            s_mul_i32 s{sW8320}, s{sW}, 8320
            s_cmp_ge_u32 s{sSLOT}, 28
            s_cbranch_scc1 L_role_p
            s_cmp_ge_u32 s{sW8}, 4
            s_cbranch_scc1 L_GB
            s_branch L_GA
            L_role_p:
            s_cmp_ge_u32 s{sW8}, 4
            s_cbranch_scc1 L_PB
            s_branch L_PA
            L_exit:
            s_endpgm""")
        return s

    def late_scalars(self, s):
        s.e(f"""s_waitcnt lgkmcnt(0)
            s_lshl_b32 s3, s2, 2
            s_load_dword s{sT}, s[{sWS}:{sWS + 1}], {EPOCH}
            s_load_dword s{sD}, s[{sDP}:{sDP + 1}], s3""")

    A_XF, A_ACC, A_ONE, A_W = 16, (48, 64, 80, 96), 112, 128

    def a_post_setup(self, s):
        items = []

        def conv_addr():
            s.e(f"""v_and_b32 v14, 15, v0
                v_sub_u32 v15, 15, v14
                v_and_b32 v15, 3, v15
                v_add_u32 v2, v14, v15
                v_lshlrev_b32 v2, 1, v2
                v_mul_u32_u24 v15, 4160, v15
                v_add_u32 v2, v2, v15""")

        def conv_addr2():
            s.e(f"""v_lshrrev_b32 v15, 4, v0
                v_lshl_add_u32 v2, v15, 4, v2
                s_lshr_b32 s{sA}, s{sW}, 1
                s_mul_i32 s{sB_}, s{sA}, 16640
                s_add_u32 s{sB_}, s{sB_}, {X1 + 2}
                v_add_u32 v2, s{sB_}, v2""")

        def conv_addr3():
            s.e(f"""v_lshlrev_b32 v3, 4, v15
                v_lshlrev_b32 v14, 5, v14
                v_sub_u32 v3, v3, v14
                s_mul_i32 s{sB_}, s{sA}, 4608
                s_add_u32 s{sB_}, s{sB_}, {KVB + 480}
                v_add_u32 v3, s{sB_}, v3""")

        items += [conv_addr, conv_addr2, conv_addr3]
        items.append(lambda: self.block_ids(s, 16, 3))
        items.append(lambda: self.wd_lane_addrs(s, 4, 5, 8, 14, RA[0]))
        items.append(lambda: self.hflag_addr(s, 9, 14))
        items.append(lambda: s.e(f"""s_lshl_b32 s{sG}, s{sDB}, 7
            s_mul_i32 s{sF}, s{sP2}, {2 * 114688}
            s_add_u32 s{sF}, s{sF}, {HB}
            v_lshlrev_b32 v1, 4, v0
            v_mov_b32 v10, s{sT}
            v_mov_b32 v11, 0"""))
        return items

    def stream_GA(self):
        s = Stream("GA")
        o = self.o
        XF, S, ONE, W = self.A_XF, self.A_ACC, self.A_ONE, self.A_W
        s.e("L_GA:\ns_setprio 2")
        s.e(f"""v_bfe_u32 v8, v0, 4, 1
            v_lshrrev_b32 v9, 5, v0
            v_bfe_u32 v10, v0, 2, 2
            v_lshlrev_b32 v1, 11, v8
            v_lshl_add_u32 v1, v9, 10, v1
            v_lshl_add_u32 v1, v10, 7, v1
            v_bfe_u32 v10, v0, 3, 1
            v_lshl_add_u32 v10, v8, 1, v10
            v_xor_b32 v10, s{sW}, v10
            v_lshl_add_u32 v1, v10, 5, v1
            v_and_b32 v10, 1, v0
            v_lshl_add_u32 v1, v10, 4, v1
            v_bfe_u32 v10, v0, 1, 1
            v_lshl_add_u32 v1, v10, 3, v1
            v_add_u32 v1, {X0}, v1
            v_and_b32 v8, 31, v0
            v_bfe_u32 v10, v0, 1, 3
            v_xor_b32 v10, v10, v9
            v_lshlrev_b32 v11, 7, v8
            v_add_u32 v11, {X0}, v11""")
        for k in range(4):
            s.e(f"v_xor_b32 v12, {2 * k}, v10\nv_lshl_add_u32 v{2 + k}, v12, 4, v11")
        s.e(f"""v_mul_u32_u24 v6, 1040, v8
            v_lshl_add_u32 v6, v9, 4, v6
            v_lshlrev_b32 v7, 4, v0
            v_add_u32 v7, s{sW4K}, v7
            v_add_u32 v7, {ACC0}, v7""")
        for k in range(4):
            s.e(f"v_mov_b32 v{ONE + k}, 0x3f803f80")
        self.late_scalars(s)
        aTR = Addr(s, 1, X0)
        aXA = [Addr(s, 2 + k, X0) for k in range(4)]
        aXR = Addr(s, 6, 0)
        acc_of = {0: S[0], 1: S[1], 2: S[3], 3: S[0], 4: S[3], 5: S[0], 6: S[3], 7: S[0]}
        cs = lambda c: X0 + (c % 3) * CH

        def rd1(n):
            c, st = divmod(n, 4)
            for x in range(2):
                r, off = aTR.off(cs(c) + st * 4096 + x * 512, cs(c))
                s.ds(f"ds_read_b64_tr_b16 {vr(W + 4 * n + 2 * x, 2)}, {r} offset:{off}")
            for g in range(G):
                r, off = aXA[st].off(cs(c) + 16384 + g * 4096, cs(c))
                t = s.ds(f"ds_read_b128 {vr(XF + 4 * ((n & 1) * G + g), 4)}, {r} offset:{off}")
            return t

        frag = lambda g, k: XF + 4 * (((g - G) * 32 + k + 4) % 8)
        xt = {}

        def rd2(g, k):
            r, off = aXR.off(XSLOT[g] + 32 * k, XSLOT[g])
            xt[g, k] = s.ds(f"ds_read_b128 {vr(frag(g, k), 4)}, {r} offset:{off}")

        PF = o["pf"]
        s.barrier("b0")
        self.stamp(s, "b0")
        tok = rd1(0)
        for n in range(32):
            nxt = None
            if n % 4 == 3:
                if n == 3:
                    self.tag_ready(s)
                s.wait(lg=tok)
                s.barrier(f"b{n // 4 + 1}")
                if n in (15, 31):
                    self.stamp(s, f"b{n // 4 + 1}")
            if n < 31:
                nxt = rd1(n + 1)
            else:
                for k in range(PF):
                    rd2(G, k)
            s.wait(lg=tok)
            for g in range(G):
                a = acc_of[g]
                s.e(f"{MFMA32} {vr(a, 16)}, {vr(W + 4 * n, 4)}, {vr(XF + 4 * ((n & 1) * G + g), 4)}, "
                    f"{vr(a, 16) if n else 0}")
            s.e(f"{MFMA32} {vr(S[2], 16)}, {vr(W + 4 * n, 4)}, {vr(ONE, 4)}, {vr(S[2], 16) if n else 0}")
            tok = nxt

        def accw(a, dst, i):
            return s.ds(f"ds_write_b128 v7, {vr(a + 4 * i, 4)} offset:{dst - ACC0 + 1024 * i}")

        setup = deque(self.a_post_setup(s))
        wd_tok = [None] * 3
        for g in range(G, 8):
            side = {}
            if g == G:
                jobs = [(S[2], ST2, i) for i in range(4)] + [(acc_of[0], ACC0, i) for i in range(4)]
                late = [(acc_of[1], ST1, i) for i in range(4)]
            else:
                jobs, late = [(acc_of[g - 1], ACC0, i) for i in range(4)], []
            k_alpha = 4 + len(jobs) + 1
            wtok = None
            for k in range(32):
                idx = k + PF
                if idx < 32:
                    rd2(g, idx)
                else:
                    if idx == 32:
                        s.wait(lg=wtok)
                        s.barrier(f"beta{g + 1}")
                    if g < 7:
                        rd2(g + 1, idx - 32)
                if 4 <= k < 4 + len(jobs):
                    wtok = accw(*jobs[k - 4])
                if k == k_alpha:
                    s.wait(lg=wtok)
                    s.barrier(f"alpha{g}")
                    self.stamp(s, f"al{g}") if g in (2, 4, 7) else None
                if late and k_alpha < k <= k_alpha + 4:
                    wtok = accw(*late[k - k_alpha - 1])
                if g in (4, 5, 6) and k > k_alpha and k % 6 == 0 and setup:
                    setup.popleft()()
                if g == 7 and k_alpha < k <= k_alpha + 16 and (k - k_alpha) % 2:
                    e = (k - k_alpha) // 2
                    wd_tok[0] = self.wd_dma(s, 4, 0, e, RA[0] + 1024 * e)
                s.wait(lg=xt[g, k])
                a = acc_of[g]
                s.e(f"{MFMA32} {vr(a, 16)}, {vr(W + 4 * k, 4)}, {vr(frag(g, k), 4)}, {vr(a, 16) if k else 0}")
        assert not setup
        self.stamp(s, "g1end")
        self.a_post(s, wd_tok, lambda i: accw(acc_of[7], ACC0, i))
        return s

    def stream_PA(self):
        s = Stream("PA")
        s.e("L_PA:")
        s.e(f"""s_getpc_b64 s[{sE}:{sE + 1}]
            L_pc:
            s_sub_u32 s{sE}, s{sE}, L_pc-{NAME}_kernel
            s_subb_u32 s{sE + 1}, s{sE + 1}, 0
            s_and_b32 s{sA}, s{sSLOT}, 3
            s_lshl_b32 s{sA}, s{sA}, 2
            s_add_u32 s{sA}, s{sA}, s{sW}
            v_lshlrev_b32 v1, 4, v0
            v_add_u32 v1, s{sA}, v1
            v_lshlrev_b32 v1, 7, v1
            v_min_u32 v1, L_code_end-{NAME}_kernel-4, v1""")
        s.vmem(f"global_load_dword v16, v1, s[{sE}:{sE + 1}]")
        self.late_scalars(s)
        self.tag_ready(s)
        for f in self.a_post_setup(s):
            f()
        s.barrier("p1")
        s.barrier("p2")
        wd_tok = [None] * 3
        for e in range(8):
            wd_tok[0] = self.wd_dma(s, 4, 0, e, RA[0] + 1024 * e)
        s.e("s_setprio 2")
        s.barrier("beta8")
        self.stamp(s, "beta8")
        self.a_post(s, wd_tok, None)
        return s

    def a_post(self, s, wd_tok, accw):
        o = self.o
        join1, set1 = s.label("convjoin"), s.label("set1")
        s.e(f"s_bitcmp1_b32 s{sW}, 0\ns_cbranch_scc1 {set1}")
        snap = (s.vm, s.vm_done, s.lg, s.lg_done, s.nbar)
        res = []
        for st, tiles in enumerate(((7, 4, 3, 0), (6, 5, 2, 1))):
            s.vm, s.vm_done, s.lg, s.lg_done, s.nbar = snap
            if st:
                s.e(f"{set1}:\ns_nop 7")
            wt = list(wd_tok)
            ytok, ptok = self.conv(s, st, tiles, wt, accw)
            s.wait_all_lg()
            res.append((s.vm, s.vm_done, s.nbar, tuple(wt), ytok, ptok))
            if not st:
                s.e(f"s_branch {join1}")
        assert res[0] == res[1]
        s.e(f"{join1}:")
        self.stamp(s, "conv")
        wt, ytok, ptok = res[0][3:]
        if o["upto"] == "conv":
            s.wait(vm=ytok)
            self.y_flag(s)
            self.epoch(s)
            self.finish(s)
            return
        WD, ACC = 160, (48, 80)
        slots = [16 + 4 * i for i in range(8)] + [128 + 4 * i for i in range(8)]
        pa = self.partial_addrs(s, 112, 116)
        aR = [Addr(s, 5, RA[0]), Addr(s, 8, RA[0])]
        poll_txt = lambda th: f"buffer_load_dword v12, v9, {srd(sWS)}, 0 offen offset:{16 * th} sc1"
        ht = {}

        def hload(th, n):
            b, ks = divmod(n, 4)
            if ks == 0:
                self.h_soff(s, b, th)
            r = slots[(12 * th + n) % 16]
            ht[th, n] = s.vmem(f"buffer_load_dwordx4 {vr(r, 4)}, v1, {srd(sWS)}, s{sC} offen offset:{1024 * ks} sc1")

        def wdread(n):
            b, ks = divmod(n, 4)
            s.wait(vm=wt[b])
            for dt in range(2):
                for x in range(2):
                    r, off = aR[dt].off(RA[b] + 2048 * ks + 512 * x, RA[b])
                    t = s.ds(f"ds_read_b64_tr_b16 {vr(WD + 8 * n + 4 * dt + 2 * x, 2)}, {r} offset:{off}")
            return t

        def mm(th, n):
            r = slots[(12 * th + n) % 16]
            for dt in range(2):
                a = ACC[th] + 16 * dt
                s.e(f"{MFMA32} {vr(a, 16)}, {vr(WD + 8 * n + 4 * dt, 4)}, {vr(r, 4)}, {vr(a, 16) if n else 0}")

        self.poll(s, ptok, [poll_txt(0)], [12])
        self.stamp(s, "hp0")
        for n in range(6):
            hload(0, n)
        p1 = s.vmem(poll_txt(1))
        for n in range(6, 12):
            hload(0, n)
        wr = {0: wdread(0), 1: wdread(1)}
        issued1 = 0
        for n in range(12):
            if n + 2 < 12:
                wr[n + 2] = wdread(n + 2)
            s.wait(vm=ht[0, n], lg=wr[n])
            if n == 0:
                self.y_flag(s)
            if n == 6:
                self.poll(s, p1, [poll_txt(1)], [12])
            mm(0, n)
            if n >= 6:
                while issued1 < 12 and issued1 < min(n + 5, 3 * (n - 5)):
                    hload(1, issued1)
                    issued1 += 1
        while issued1 < 12:
            hload(1, issued1)
            issued1 += 1
        self.stamp(s, "th0")
        wtok = None
        for n in range(12):
            s.wait(vm=ht[1, n])
            mm(1, n)
            if 1 <= n < 5:
                for z in range(2):
                    q = 2 * (n - 1) + z
                    wtok = self.partial_write(s, pa, ACC[0], RA[0], q >> 2, q & 3)
            if n == 5:
                s.wait(lg=wtok)
                s.barrier("Z1")
        self.stamp(s, "th1")
        s.barrier("Z1b")
        for q in range(8):
            wtok = self.partial_write(s, pa, ACC[1], RA[1], q >> 2, q & 3)
        s.wait(lg=wtok)
        s.barrier("Z2")
        self.epoch(s)
        self.finish(s)

    def y_flag(self, s):
        s.e(f"""s_and_b32 s{sA}, s{sW}, 1
            s_lshl_b32 s{sA}, s{sA}, 11
            s_lshr_b32 s{sB_}, s{sW}, 1
            s_lshl_b32 s{sB_}, s{sB_}, 2
            s_add_u32 s{sA}, s{sA}, s{sB_}
            s_lshl_b32 s{sB_}, s2, 3
            s_add_u32 s{sA}, s{sA}, s{sB_}
            s_add_u32 s{sA}, s{sA}, {FY}""")
        self.flag(s, 10, 11, f"s{sA}")

    def epoch(self, s):
        if s.name != "PA":
            return
        skip = s.label("noepoch")
        s.e(f"""s_cmp_lg_u32 s2, 255
            s_cbranch_scc1 {skip}
            s_cmp_lg_u32 s{sW8}, 0
            s_cbranch_scc1 {skip}
            s_mov_b32 s{sG}, {FY}""")
        txt = [f"buffer_load_dwordx4 v[{16 + 4 * z}:{19 + 4 * z}], v1, {srd(sWS)}, s{sG} offen offset:{1024 * z} sc1"
               for z in range(2)]
        for t in txt:
            tok = s.vmem(t)
        self.poll(s, tok, txt, list(range(16, 24)))
        self.flag(s, 10, 11, "0")
        s.e(f"{skip}:")

    def conv(self, s, st, tiles, wt, accw):
        o = self.o
        CACC, DF = 112, 16
        acc = {n: CACC + 4 * i for i, n in enumerate(tiles)}
        pool = deque([64 + 4 * i for i in range(12)] + [128 + 4 * i for i in range(8)])
        ops = []
        for r in range(8):
            for i in range(8):
                ops += [(n, ("A", r + 8 * i), ("G", r, n - i)) for n in tiles if n >= i]
                if r == 0 and i == 2:
                    ops += [(n, ("D",), ("G", 0, n)) for n in tiles]
        first, last = {}, {}
        for idx, (n, a, g) in enumerate(ops):
            for key in (a, g):
                first.setdefault(key, idx)
                last[key] = idx
        loads = deque(sorted((k for k in first if k[0] != "D"), key=lambda k: first[k]))
        total = sum(2 if k[0] == "A" else 1 for k in loads)
        reg, tok = {("D",): DF}, {("D",): 0}
        issued = 0

        def load(key):
            nonlocal issued
            r = reg[key] = pool.popleft()
            if key[0] == "A":
                s.ds(f"ds_read_b64 {vr(r, 2)}, v2 offset:{64 * key[1]}")
                tok[key] = s.ds(f"ds_read_b64 {vr(r + 2, 2)}, v2 offset:{64 * key[1] + 8}")
                issued += 2
            else:
                tok[key] = s.ds(f"ds_read_b128 {vr(r, 4)}, v3 offset:{512 * (7 - key[2]) + 64 * key[1]}")
                issued += 1

        lead = o["conv_lead"]
        while loads and first[loads[0]] < 4:
            load(loads.popleft())
        s.e(f"""s_lshr_b32 s{sA}, s{sW}, 1
            s_lshl_b32 s{sA}, s{sA}, 4
            s_lshr_b32 s{sA}, s{sD}, s{sA}
            s_and_b32 s{sA}, s{sA}, 0xffff
            v_and_b32 v14, 15, v0
            v_lshrrev_b32 v15, 4, v0
            v_lshl_add_u32 v14, v15, 3, v14
            v_sub_u32 v14, 15, v14
            v_and_b32 v15, 1, v14
            v_lshlrev_b32 v15, 4, v15
            v_lshlrev_b32 v15, v15, s{sA}
            v_ashrrev_i32 v14, 1, v14""")
        for x in range(4):
            s.e(f"v_cmp_eq_u32 vcc, {x}, v14\nv_cndmask_b32 v{DF + x}, 0, v15, vcc")
        wtok = None
        if accw:
            for i in range(4):
                wtok = accw(i)
        started = set()
        dma = deque((b, e) for b in (1, 2) for e in range(8))
        ptok = None
        for idx, (n, a, g) in enumerate(ops):
            while loads and pool and s.lg - s.lg_done <= 12 and (
                    first[loads[0]] <= idx + lead or issued < total * (idx + 2 * lead) / len(ops)):
                load(loads.popleft())
            if idx == 3:
                s.wait(lg=wtok)
                s.barrier("alpha8")
            if idx > 3 and idx % 5 == 0 and dma:
                b, e = dma.popleft()
                wt[b] = self.wd_dma(s, 4, b, e, RA[b] + 1024 * e)
            if idx == len(ops) - 24:
                ptok = s.vmem(f"buffer_load_dword v12, v9, {srd(sWS)}, 0 offen sc1")
            assert a in tok and g in tok, "fragment pool exhausted"
            s.wait(lg=max(tok[a], tok[g]))
            c = vr(acc[n], 4) if n in started else 0
            started.add(n)
            s.e(f"{MFMA16} {vr(acc[n], 4)}, {vr(reg[a], 4)}, {vr(reg[g], 4)}, {c}")
            for key in (a, g):
                if last[key] == idx and key[0] != "D":
                    pool.append(reg[key])
        assert not dma and not loads
        s.e(f"""s_lshl_b32 s{sA}, s{sW}, 2
            s_add_u32 s{sA}, s{sA}, {CFL}
            v_mov_b32 v14, s{sA}
            v_mov_b32 v15, 1""")
        s.ds("ds_write_b32 v14, v15")
        step = 1536 if st == 0 else 512
        s.e(f"""v_bfe_u32 v14, v0, 1, 4
            v_lshrrev_b32 v15, 5, v0
            v_lshl_add_u32 v14, v15, 4, v14
            v_and_b32 v13, 1, v0
            v_lshl_add_u32 v14, v13, 5, v14
            v_lshlrev_b32 v14, 2, v14
            v_mul_u32_u24 v15, {step}, v15
            v_and_b32 v13, 31, v0
            v_lshl_add_u32 v13, v13, 4, v15
            s_lshr_b32 s{sA}, s{sW}, 1
            s_lshl_b32 s{sB_}, s2, 1
            s_add_u32 s{sA}, s{sA}, s{sB_}
            s_lshl_b32 s{sA}, s{sA}, 12
            s_add_u32 s{sA}, s{sA}, {YB}""")
        pairs = ((tiles[3], tiles[2]), (tiles[1], tiles[0]))
        toks = []
        for z, (n1, n2) in enumerate(pairs):
            R = 64 + 8 * z
            for q, n in enumerate((n1, n2)):
                s.e(f"v_cvt_pk_bf16_f32 v{R + 2 * q}, v{acc[n]}, v{acc[n] + 1}")
                s.e(f"v_cvt_pk_bf16_f32 v{R + 2 * q + 1}, v{acc[n] + 2}, v{acc[n] + 3}")
            s.e(f"v_permlane16_swap_b32 v{R}, v{R + 2}\nv_permlane16_swap_b32 v{R + 1}, v{R + 3}")
            for x in range(4):
                t = s.ds(f"ds_bpermute_b32 v{R + 4 + x}, v14, v{R + x}")
            toks.append(t)
        for z, (n1, n2) in enumerate(pairs):
            s.wait(lg=toks[z])
            ytok = s.vmem(f"buffer_store_dwordx4 {vr(68 + 8 * z, 4)}, v13, {srd(sWS)}, s{sA} offen "
                          f"offset:{512 * n1} sc1")
        return ytok, ptok

    B_CS, B_STP, B_CON, B_OUT, B_AI, B_P, B_WD = 24, 40, 48, 52, (64, 80), 96, 128

    def b_common_addrs(self, s):
        s.e(f"""v_lshlrev_b32 v5, 4, v0
            v_lshrrev_b32 v13, 3, v0
            v_and_b32 v14, 7, v0
            v_lshlrev_b32 v6, 4, v14
            v_lshl_add_u32 v6, v13, 10, v6
            v_mov_b32 v12, 0""")

    def b_stats_load(self, s):
        s.e(f"""v_lshrrev_b32 v15, 5, v0
            v_and_b32 v16, 31, v0
            v_lshlrev_b32 v16, 4, v16
            v_lshl_add_u32 v16, v15, 10, v16
            s_lshr_b32 s{sA}, s{sP2}, 2
            s_lshl_b32 s{sA}, s{sA}, 5
            s_add_u32 s{sA}, s{sA}, s{sSLOT}
            s_lshl_b32 s{sA}, s{sA}, 2
            s_add_u32 s{sA}, s{sA}, s{sW}
            s_lshl_b32 s{sB_}, s{sA}, 11
            s_lshl_b32 s{sA}, s{sA}, 4
            s_add_u32 s{sA}, s{sA}, {STATS}
            v_lshlrev_b32 v15, 3, v15
            v_add_u32 v15, s{sA}, v15""")
        s.vmem(f"buffer_load_dwordx4 v[200:203], v16, {srd(sX)}, s{sB_} offen")
        return s.vmem(f"buffer_load_dwordx4 v[204:207], v16, {srd(sX)}, s{sB_} offen offset:512")

    def b_stats(self, s, tok):
        F = 208

        def reduce(r):
            for sh in (8, 4, 2, 1):
                s.e(f"v_add_f32_dpp v{r}, v{r}, v{r} row_ror:{sh} row_mask:0xf bank_mask:0xf")
            s.e(f"v_mov_b32 v{r + 1}, v{r}\nv_permlane16_swap_b32 v{r}, v{r + 1}\nv_add_f32 v{r}, v{r}, v{r + 1}")

        s.wait(vm=tok)
        for k in range(8):
            s.e(f"v_lshlrev_b32 v{F + 2 * k}, 16, v{200 + k}\nv_and_b32 v{F + 2 * k + 1}, 0xffff0000, v{200 + k}")
        for k in range(8):
            s.e(f"v_add_f32 v{200 + k}, v{F + 2 * k}, v{F + 2 * k + 1}")
        for w in (4, 2, 1):
            for k in range(w):
                s.e(f"v_add_f32 v{200 + k}, v{200 + k}, v{200 + k + w}")
        reduce(200)
        s.e(f"v_mul_f32 v200, {fhex(1 / 512)}, v200")
        for k in range(16):
            s.e(f"v_sub_f32 v{F + k}, v{F + k}, v200")
        s.e(f"v_mul_f32 v202, v{F}, v{F}\nv_mul_f32 v203, v{F + 1}, v{F + 1}")
        for k in range(2, 16):
            s.e(f"v_fmac_f32 v{202 + (k & 1)}, v{F + k}, v{F + k}")
        s.e("v_add_f32 v202, v202, v203")
        reduce(202)
        s.e(f"""v_mul_f32 v202, {fhex(1 / 512)}, v202
            v_cvt_pk_bf16_f32 v202, v202, v202
            v_and_b32 v202, 0xffff0000, v202
            v_add_f32 v202, {fhex(1e-5)}, v202
            v_cvt_pk_bf16_f32 v202, v202, v202
            v_and_b32 v202, 0xffff0000, v202
            v_sqrt_f32 v202, v202""")
        self.tag_ready(s)
        s.e(f"""v_cvt_pk_bf16_f32 v205, v200, v202
            v_mov_b32 v204, s{sT}
            v_mov_b32 v11, s{sT}
            s_mov_b32 exec_lo, 1
            s_mov_b32 exec_hi, 1""")
        s.vmem(f"buffer_store_dwordx2 v[204:205], v15, {srd(sWS)}, 0 offen sc1")
        s.e("s_mov_b64 exec, -1")

    def b_kv_dma(self, s):
        s.e(f"""v_mov_b32 v17, 0x40000000
            v_cmp_lt_u32 vcc, 39, v0
            v_cndmask_b32 v17, v17, v6, vcc
            s_lshl_b32 s{sA}, s{sSLOT}, 16
            s_lshl_b32 s{sB_}, s{sXCD}, 7
            s_add_u32 s{sA}, s{sA}, s{sB_}
            s_sub_u32 s{sB_}, s{sA}, 8192
            s_mov_b32 m0, {X2}
            s_mul_i32 s{sC}, s{sW}, 2080""")
        s.vmem(f"buffer_load_dwordx4 v17, {srd(sK)}, s{sB_} offen lds")
        s.e(f"s_lshl_b32 s{sB_}, s{sW}, 14\ns_add_u32 s{sA}, s{sA}, s{sB_}")
        for z in range(2):
            s.e(f"s_add_u32 m0, s{sC}, {X2 + (1 + z) * 1040}")
            s.vmem(f"buffer_load_dwordx4 v6, {srd(sK)}, s{sA} offen lds")
            s.e(f"s_add_u32 m0, s{sC}, {X2 + (9 + z) * 1040}")
            s.vmem(f"buffer_load_dwordx4 v6, {srd(sV)}, s{sA} offen lds")
            if z == 0:
                s.e(f"s_add_u32 s{sA}, s{sA}, 8192")
        s.e(f"""v_lshrrev_b32 v17, 3, v0
            v_lshlrev_b32 v18, 4, v17
            s_lshl_b32 s{sA}, s{sXCD}, 9
            s_lshl_b32 s{sB_}, s{sW}, 7
            s_add_u32 s{sA}, s{sA}, s{sB_}""")
        return s.vmem(f"buffer_load_dwordx4 v[148:151], v18, {srd(sSH)}, s{sA} offen")

    def b_kv_reads(self, s):
        s.e(f"""v_and_b32 v18, 7, v0
            v_sub_u32 v19, 7, v18
            v_mul_u32_u24 v19, 1040, v19
            v_lshl_add_u32 v19, v17, 2, v19
            s_lshl_b32 s{sA}, s{sW}, 5
            s_add_u32 s{sA}, s{sA}, {X2}
            v_add_u32 v19, s{sA}, v19
            v_lshlrev_b32 v18, 4, v18
            v_lshl_add_u32 v18, v17, 13, v18""")
        for z in range(11):
            off = (5 + z) * 128 if z < 3 else 1040 + (z - 3) * 128
            t = s.ds(f"ds_read_b32 v{128 + z}, v19 offset:{off}")
        s.wait(lg=t - 6)
        for z in range(8):
            t = s.ds(f"ds_read_b32 v{139 + z}, v19 offset:{9 * 1040 + z * 128}")
        return t

    def b_kv_items(self, s, rtok, state):
        KF, VF, KS, TP, OUT = 160, 172, 180, 152, 188
        items = []

        def unpack(dst, src, e):
            s.e(f"v_and_b32 v{dst}, 0xffff0000, v{src}" if e else f"v_lshlrev_b32 v{dst}, 16, v{src}")

        def taps():
            s.wait(lg=rtok)
            for z in range(8):
                unpack(TP + z, 148 + (z >> 1), z & 1)

        items.append(taps)
        for e in range(2):
            items.append(lambda e=e: [unpack(KF + z, 128 + z, e) for z in range(11)])
            items.append(lambda e=e: [unpack(VF + z, 139 + z, e) for z in range(8)])
            items.append(lambda e=e: [s.e(f"v_mul_f32 v{KS + t}, v{KF + t}, v{TP + 4 * e + 3}") for t in range(8)])
            for i in (2, 1, 0):
                items.append(lambda e=e, i=i: [s.e(f"v_fmac_f32 v{KS + t}, v{KF + t + 3 - i}, v{TP + 4 * e + i}")
                                               for t in range(8)])
            items.append(lambda: [s.e(f"v_mul_f32 v{KS + t}, v{KS + t}, v{VF + t}") for t in range(8)])

            def out(e=e):
                for x in range(4):
                    s.e(f"v_cvt_pk_bf16_f32 v{OUT + 4 * e + x}, v{KS + 7 - 2 * x}, v{KS + 6 - 2 * x}")
                s.e(f"""s_lshl_b32 s{sA}, s{sXCD}, 18
                    s_lshl_b32 s{sB_}, s{sW}, 16
                    s_add_u32 s{sA}, s{sA}, s{sB_}
                    s_lshl_b32 s{sB_}, s{sSLOT}, 7
                    s_sub_u32 s{sA}, s{sA}, s{sB_}
                    s_add_u32 s{sA}, s{sA}, {KVT + 3968 + 4096 * e}""")
                state["kv"] = s.vmem(f"buffer_store_dwordx4 {vr(OUT + 4 * e, 4)}, v18, {srd(sWS)}, s{sA} offen sc1")

            items.append(out)
        return items

    def b_kv_flag(self, s, state):
        s.wait(vm=state["kv"])
        s.e(f"""s_lshl_b32 s{sA}, s{sXCD}, 2
            s_add_u32 s{sA}, s{sA}, s{sW}
            s_lshl_b32 s{sA}, s{sA}, 5
            s_add_u32 s{sA}, s{sA}, s{sSLOT}
            s_lshl_b32 s{sA}, s{sA}, 2
            s_add_u32 s{sA}, s{sA}, {FKV}""")
        self.flag(s, 11, 12, f"s{sA}")

    def b_late_setup(self, s):
        self.block_ids(s, 0, 4)
        self.wd_lane_addrs(s, 8, 9, 10, 13, ST1)
        self.hflag_addr(s, 20, 13)
        s.e(f"s_lshl_b32 s{sG}, s{sDB}, 7")

    def b_hb_issue(self, s, hb):
        for e in range(4):
            t = self.wd_dma(s, 8, hb >> 1, 4 * (hb & 1) + e, ST1 + 4096 * (hb & 1) + 1024 * e)
        return t

    def b_hb_consume(self, s, hb, tok):
        s.wait(vm=tok)
        for k2 in range(2):
            n = 2 * hb + k2
            for dt in range(2):
                for x in range(2):
                    t = s.ds(f"ds_read_b64_tr_b16 {vr(self.B_WD + 8 * n + 4 * dt + 2 * x, 2)}, v{9 + dt} "
                             f"offset:{4096 * (hb & 1) + 2048 * k2 + 512 * x}")
        return t

    def b_ssm_load(self, s):
        s.e(f"""s_and_b32 s{sA}, s{sW}, 1
            s_lshl_b32 s{sA}, s{sA}, 11
            v_add_u32 v13, s{sA}, v5
            v_subrev_u32 v14, 8, v13
            v_add_u32 v15, 1016, v13
            s_lshr_b32 s{sA}, s{sW}, 1
            s_lshl_b32 s{sB_}, s2, 1
            s_add_u32 s{sA}, s{sA}, s{sB_}
            s_lshl_b32 s{sA}, s{sA}, 12""")
        s.vmem(f"buffer_load_dwordx4 v[106:109], v13, {srd(sSK)}, s{sA} offen")
        s.vmem(f"buffer_load_dwordx2 v[104:105], v14, {srd(sSK)}, s{sA} offen")
        s.vmem(f"buffer_load_dwordx4 v[112:115], v13, {srd(sSK)}, s{sA} offen offset:1024")
        return s.vmem(f"buffer_load_dwordx2 v[110:111], v15, {srd(sSK)}, s{sA} offen")

    def b_copy_items(self, s, tok, state):
        items = []

        def pads():
            s.e(f"""s_lshr_b32 s{sA}, s{sW}, 1
                s_mul_i32 s{sA}, s{sA}, 16640
                s_add_u32 s{sA}, s{sA}, {X1 + 32}
                v_add_u32 v13, s{sA}, v13
                v_mov_b32 v116, 0
                v_mov_b32 v117, 0
                v_mov_b32 v118, 0
                v_mov_b32 v119, 0
                v_bfe_u32 v14, v0, 1, 3
                v_mul_u32_u24 v14, 4160, v14
                v_and_b32 v15, 1, v0
                v_lshl_add_u32 v14, v15, 4, v14
                v_lshrrev_b32 v15, 5, v0
                v_mul_u32_u24 v15, 4096, v15
                v_add_u32 v15, v15, v5
                v_add_u32 v15, {KVB + 4096}, v15
                v_mov_b32 v16, {CFL}
                s_mov_b64 exec, 0xffff""")
            s.ds(f"ds_write_b128 v14, v[116:119] offset:{X1}")
            s.e("s_mov_b64 exec, 1")
            s.ds("ds_write_b128 v16, v[116:119]")
            s.e("s_mov_b64 exec, -1")
            state["cp"] = s.ds("ds_write_b128 v15, v[116:119]")

        items.append(pads)
        for z in range(2):
            d = 106 + 6 * z

            def even(z=z, d=d):
                s.wait(vm=tok, lg=state["cp"])
                s.ds(f"ds_write_b128 v13, {vr(d, 4)} offset:{1024 * z}")
                for x in range(4):
                    s.e(f"v_mov_b32 v{116 + x}, v{d - 1 + x}")
                s.ds(f"ds_write_b128 v13, v[116:119] offset:{2 * 4160 + 1024 * z}")

            def odd(z=z, d=d):
                for x in range(4):
                    s.e(f"v_alignbyte_b32 v{120 + x}, v{d + x}, v{d + x - 1}, 2")
                s.ds(f"ds_write_b128 v13, v[120:123] offset:{4160 + 1024 * z}")
                for x in range(4):
                    s.e(f"v_alignbyte_b32 v{124 + x}, v{d + x - 1}, v{d + x - 2}, 2")
                state["cp"] = s.ds(f"ds_write_b128 v13, v[124:127] offset:{3 * 4160 + 1024 * z}")

            items += [even, odd]
        return items

    def b_kvpoll_txt(self):
        return f"buffer_load_dword v22, v21, {srd(sWS)}, 0 offen sc1"

    def b_kvpoll_issue(self, s):
        s.e(f"""s_lshl_b32 s{sA}, s{sSLOT}, 7
            s_add_u32 s{sA}, s{sA}, {FKV}
            v_and_b32 v21, 31, v0
            v_lshlrev_b32 v21, 2, v21
            v_add_u32 v21, s{sA}, v21""")
        return s.vmem(self.b_kvpoll_txt())

    def b_kvt_dma(self, s, ptok):
        self.poll(s, ptok, [self.b_kvpoll_txt()], [22])
        s.e(f"""s_lshl_b32 s{sA}, s2, 13
            s_lshl_b32 s{sB_}, s{sW}, 11
            s_add_u32 s{sA}, s{sA}, s{sB_}
            s_add_u32 s{sA}, s{sA}, {KVT}
            s_lshr_b32 s{sC}, s{sW}, 1
            s_lshl_b32 s{sC}, s{sC}, 9
            s_add_u32 s{sB_}, s{sB_}, s{sC}
            s_add_u32 m0, s{sB_}, {KVB}""")
        for z in range(2):
            t = s.vmem(f"buffer_load_dwordx4 v5, {srd(sWS)}, s{sA} offen offset:{1024 * z} sc1 lds")
        return t

    def b_epi_items(self, s, g, rtok, state):
        CS, P = self.B_CS, self.B_P
        AG = self.B_AI[g & 1]
        AU = AG + 8
        M, CA, CB, SD2 = (self.B_CON + k for k in range(4))
        OUT = self.B_OUT + 4 * (g & 1)
        stp = self.B_STP + g
        c0 = -2.0 * LOG2E * 0.7978845608028654
        R = range(8)
        each = lambda f: (lambda: [s.e(f(k)) for k in R])

        def consts():
            s.e(f"""v_and_b32 v{SD2}, 0xffff0000, v{stp}
                v_rcp_f32 v{CA}, v{SD2}
                v_lshlrev_b32 v{M}, 16, v{stp}
                v_mul_f32 v{SD2}, v{SD2}, v{SD2}
                v_mul_f32 v{CB}, v{CA}, v{CA}
                v_mul_f32 v{CA}, {fhex(c0)}, v{CA}
                v_mul_f32 v{CB}, {fhex(0.044715)}, v{CB}
                v_mul_f32 v{CB}, v{CB}, v{CA}""")
            s.wait(lg=rtok)

        def out():
            for x in range(4):
                s.e(f"v_cvt_pk_bf16_f32 v{OUT + x}, v{AU + 2 * x}, v{AU + 2 * x + 1}")
            self.row_of_group(s, sA, g)
            s.e(f"""s_mul_i32 s{sA}, s{sA}, 3584
                s_lshl_b32 s{sB_}, s{sJ}, 12
                s_add_u32 s{sA}, s{sA}, s{sB_}
                s_add_u32 s{sA}, s{sA}, s{sW1K}
                s_add_u32 s{sA}, s{sA}, {HB}""")
            state["h", g] = s.vmem(f"buffer_store_dwordx4 {vr(OUT, 4)}, v5, {srd(sWS)}, s{sA} offen sc1")

        return [
            consts,
            each(lambda k: f"v_fma_f32 v{AG + k}, -v{M}, v{CS + k}, v{AG + k}"),
            each(lambda k: f"v_mul_f32 v{P + k}, v{AG + k}, v{AG + k}"),
            each(lambda k: f"v_fma_f32 v{P + k}, v{P + k}, v{CB}, v{CA}"),
            each(lambda k: f"v_mul_f32 v{P + k}, v{P + k}, v{AG + k}"),
            each(lambda k: f"v_exp_f32 v{P + k}, v{P + k}"),
            each(lambda k: f"v_fma_f32 v{AU + k}, -v{M}, v{CS + 8 + k}, v{AU + k}"),
            each(lambda k: f"v_fma_f32 v{P + k}, v{P + k}, v{SD2}, v{SD2}"),
            each(lambda k: f"v_rcp_f32 v{P + k}, v{P + k}"),
            each(lambda k: f"v_mul_f32 v{AU + k}, v{AU + k}, v{AG + k}"),
            each(lambda k: f"v_mul_f32 v{AU + k}, v{AU + k}, v{P + k}"),
            out,
        ]

    def b_h_flag(self, s, g, state):
        s.wait(vm=state["h", g])
        self.row_of_group(s, sA, g & ~1)
        s.e(f"""s_mul_i32 s{sA}, s{sA}, 56
            s_lshl_b32 s{sB_}, s{sJ}, 7
            s_add_u32 s{sA}, s{sA}, s{sB_}
            s_lshl_b32 s{sB_}, s{sW}, 2
            s_add_u32 s{sA}, s{sA}, s{sB_}
            s_add_u32 s{sA}, s{sA}, {FH + 16 * (g & 1)}""")
        self.flag(s, 11, 12, f"s{sA}")

    def stream_GB(self):
        s = Stream("GB")
        o = self.o
        s.e("L_GB:")
        self.b_common_addrs(s)
        s.e(f"""v_bfe_u32 v15, v0, 4, 1
            v_lshlrev_b32 v15, 1, v15
            v_xor_b32 v15, v15, v14
            v_mul_u32_u24 v1, 3584, v13
            v_lshl_add_u32 v1, v15, 4, v1
            v_xor_b32 v2, 64, v1
            s_lshl_b32 s{sA}, s{sW}, 2
            v_lshrrev_b32 v15, 1, v13
            v_add_u32 v15, s{sA}, v15
            v_and_b32 v15, 7, v15
            v_xor_b32 v15, v15, v14
            v_lshlrev_b32 v3, 10, v13
            v_lshl_add_u32 v3, v15, 4, v3
            s_lshl_b32 s{sA}, s{sROT}, 3
            v_add_u32 v4, s{sA}, v0
            v_and_b32 v4, 63, v4
            v_lshlrev_b32 v4, 4, v4
            v_add_u32 v7, s{sW4K}, v5
            v_add_u32 v7, {ACC0}, v7
            s_mul_i32 s{sG}, s{sW}, 57344
            s_lshl_b32 s{sA}, s{sJ}, 7
            s_add_u32 s{sG}, s{sG}, s{sA}""")
        self.row_of_group(s, sF, 0)
        s.e(f"s_lshl_b32 s{sF}, s{sF}, 10\ns_add_u32 s{sF}, s{sF}, s{sW8K}")
        self.late_scalars(s)
        cs = lambda c: X0 + (c % 3) * CH

        def chunk(c):
            s.e(f"""s_add_u32 s{sA}, s{sROT}, {c}
                s_and_b32 s{sA}, s{sA}, 7
                s_mul_i32 s{sB_}, s{sA}, 229376
                s_add_u32 s{sB_}, s{sB_}, s{sG}
                s_lshl_b32 s{sA}, s{sA}, 7
                s_add_u32 s{sA}, s{sA}, s{sF}""")
            for e in range(2):
                for mat in range(2):
                    s.e(f"s_add_u32 m0, s{sW4K}, {cs(c) + mat * 2048 + e * 1024}")
                    s.vmem(f"buffer_load_dwordx4 v{1 + mat}, {srd(sWU if mat else sWG)}, s{sB_} offen lds")
                if e == 0:
                    s.e(f"s_add_u32 s{sB_}, s{sB_}, 28672")
            for g in range(G):
                s.e(f"s_add_u32 m0, s{sW1K}, {cs(c) + 16384 + g * 4096}")
                t = s.vmem(f"buffer_load_dwordx4 v3, {srd(sX)}, s{sA} offen lds")
                if g + 1 < G:
                    s.e(f"s_add_u32 s{sA}, s{sA}, 32768")
            return t

        def xrows(g):
            self.row_of_group(s, sA, g)
            s.e(f"s_lshl_b32 s{sA}, s{sA}, 10\ns_add_u32 s{sA}, s{sA}, s{sW8K}")
            for r in range(8):
                if r == 4:
                    s.e(f"s_add_u32 s{sA}, s{sA}, 4096")
                s.e(f"s_add_u32 m0, s{sW8320}, {XSLOT[g] + r * 1040 - (r & 3) * 1024}")
                t = s.vmem(f"buffer_load_dwordx4 v4, {srd(sX)}, s{sA} offen offset:{(r & 3) * 1024} lds")
            return t

        def accr(dst, src):
            for i in range(4):
                t = s.ds(f"ds_read_b128 {vr(dst + 4 * i, 4)}, v7 offset:{src - ACC0 + 1024 * i}")
            return t

        state = {}
        Q = deque()

        def run(budget):
            c0 = s.cost
            while Q and s.cost - c0 < budget:
                Q.popleft()()

        def drain_until(key):
            while key not in state:
                Q.popleft()()

        ct = {0: chunk(0)}
        stok = self.b_stats_load(s)
        ct[1] = chunk(1)
        ct[2] = chunk(2)
        kva = o["kv_after"]
        kvt = self.b_kv_dma(s) if kva == 2 else None
        s.wait(vm=ct[0])
        s.barrier("b0")
        self.stamp(s, "b0")
        self.b_stats(s, stok)
        xt = {}
        gran_txt = []
        for c in range(1, 8):
            s.wait(vm=ct[c])
            if c == kva + 2:
                s.wait(lg=kvr)
            s.barrier(f"b{c}")
            if c + 2 < 8:
                ct[c + 2] = chunk(c + 2)
                if c + 2 == kva:
                    kvt = self.b_kv_dma(s)
            if c == kva + 1:
                kvr = self.b_kv_reads(s)
                Q.extend(self.b_kv_items(s, kvr, state))
            if c == 5:
                xt[2] = xrows(2)
            if c == 6:
                s.e("v_lshlrev_b32 v21, 3, v0")
                for q in range(4):
                    self.row_of_group(s, sBLK + q, 2 * q)
                    s.e(f"s_lshl_b32 s{sBLK + q}, s{sBLK + q}, 3\ns_add_u32 s{sBLK + q}, s{sBLK + q}, {STATS}")
                    gran_txt.append(f"buffer_load_dwordx2 v[{104 + 2 * q}:{105 + 2 * q}], v21, {srd(sWS)}, "
                                    f"s{sBLK + q} offen sc1")
                    gtok = s.vmem(gran_txt[-1])
            if c == max(6, kva + 2):
                xt[3] = xrows(3)
            run(260)
        s.wait(vm=xt[2])
        s.barrier("b8")
        self.stamp(s, "b8")
        run(10000)
        self.poll(s, gtok, gran_txt, [104, 106, 108, 110])
        for q in range(4):
            a = self.B_STP + 2 * q
            s.e(f"v_mov_b32 v{a}, v{105 + 2 * q}\nv_mov_b32 v{a + 1}, v{105 + 2 * q}")
        for q in range(4):
            a = self.B_STP + 2 * q
            s.e(f"v_permlane32_swap_b32 v{a}, v{a + 1}")
        self.stamp(s, "stats")
        self.b_kv_flag(s, state)

        hb_tok, hb_rd = {}, {}
        plan = {("a", 3): ([], [0, 1]), ("a", 4): ([0], [2]), ("b", 5): ([1], [3]), ("a", 5): ([2], [4]),
                ("b", 6): ([3], [5]), ("a", 6): ([4], [6]), ("b", 7): ([5], [7]), ("a", 7): ([6], []),
                ("b", 8): ([7], [])}
        flagged = set()

        def flags(upto):
            for g in range(upto + 1):
                if ("h", g) in state and g not in flagged:
                    self.b_h_flag(s, g, state)
                    flagged.add(g)

        def staging(key, budget):
            cons, iss = plan.get(key, ([], []))
            c0 = s.cost
            rd = None
            for hb in cons:
                rd = self.b_hb_consume(s, hb, hb_tok[hb])
            if rd and iss:
                run(60)
            s.wait(lg=rd)
            for hb in iss:
                hb_tok[hb] = self.b_hb_issue(s, hb)
            run(budget - (s.cost - c0))

        for g in range(G, 9):
            s.barrier(f"alpha{g}")
            if g in (2, 8):
                self.stamp(s, f"al{g}")
            c0 = s.cost
            if g > G:
                drain_until(("h", g - 3))
            if g == G:
                accr(self.B_CS, ST2)
                rt = accr(self.B_AI[0], ACC0)
                Q.extend(self.b_epi_items(s, 0, rt, state))
            else:
                rt = accr(self.B_AI[(g - 1) & 1], ACC0)
                Q.extend(self.b_epi_items(s, g - 1, rt, state))
            if g == 8:
                break
            if g + 2 <= 7:
                xt[g + 2] = xrows(g + 2)
            if g == G:
                self.b_late_setup(s)
            if g == 6:
                Q.extend(self.b_copy_items(s, ssm_tok, state))
                kvp = self.b_kvpoll_issue(s)
            staging(("a", g), o["bud_a"] - (s.cost - c0))
            flags(g - 3)
            if g == 7:
                run(10000)
                s.wait(vm=kvt_tok, lg=state["cp"])
            else:
                s.wait(vm=xt[g + 1])
            s.wait(lg=rt)
            s.barrier(f"beta{g + 1}")
            c0 = s.cost
            if g == G:
                rt = accr(self.B_AI[1], ST1)
                Q.extend(self.b_epi_items(s, 1, rt, state))
            if g == 5:
                ssm_tok = self.b_ssm_load(s)
            if g == 6:
                kvt_tok = self.b_kvt_dma(s, kvp)
            if g == 7:
                hp0 = s.vmem(f"buffer_load_dword v22, v20, {srd(sWS)}, 0 offen sc1")
            staging(("b", g + 1), o["bud_b"] - (s.cost - c0))
            flags(g - 2)
            s.wait(lg=s.lg)
        flags(6)
        run(10000)
        self.stamp(s, "epi7")
        self.b_post(s, hp0, lambda: flags(7))
        return s

    def stream_PB(self):
        s = Stream("PB")
        s.e("L_PB:")
        self.b_common_addrs(s)
        self.late_scalars(s)
        state = {}
        stok = self.b_stats_load(s)
        kvt = self.b_kv_dma(s)
        self.b_stats(s, stok)
        s.wait(vm=kvt)
        s.barrier("p1")
        kvr = self.b_kv_reads(s)
        s.wait(lg=kvr)
        s.barrier("p2")
        for f in self.b_kv_items(s, kvr, state):
            f()
        self.b_late_setup(s)
        ssm_tok = self.b_ssm_load(s)
        hb_tok = {0: self.b_hb_issue(s, 0), 1: self.b_hb_issue(s, 1)}
        self.b_kv_flag(s, state)
        for f in self.b_copy_items(s, ssm_tok, state):
            f()
        for hb in range(8):
            s.wait(lg=self.b_hb_consume(s, hb, hb_tok[hb]))
            if hb + 2 < 8:
                hb_tok[hb + 2] = self.b_hb_issue(s, hb + 2)
        kvt_tok = self.b_kvt_dma(s, self.b_kvpoll_issue(s))
        s.wait(vm=kvt_tok, lg=s.lg)
        s.barrier("beta8")
        self.stamp(s, "beta8")
        hp0 = s.vmem(f"buffer_load_dword v22, v20, {srd(sWS)}, 0 offen sc1")
        s.barrier("alpha8")
        self.b_post(s, hp0, lambda: None)
        return s

    def b_post(self, s, hp0, last_flag):
        o = self.o
        if o["upto"] == "conv":
            last_flag()
            self.finish(s)
            return
        WD, ACC = self.B_WD, (64, 96)
        NS = 10
        slot = lambda n: 24 + 4 * (n % NS)
        poll_txt = lambda th: f"buffer_load_dword v22, v20, {srd(sWS)}, 0 offen offset:{16 * th} sc1"
        s.e(f"s_mul_i32 s{sF}, s{sP2}, {2 * 114688}\ns_add_u32 s{sF}, s{sF}, {HB}")
        ht = {}

        def hload(n):
            th, r = divmod(n, 16)
            b, ks = divmod(r, 4)
            if ks == 0:
                self.h_soff(s, b, th)
            ht[n] = s.vmem(f"buffer_load_dwordx4 {vr(slot(n), 4)}, v5, {srd(sWS)}, s{sC} offen "
                           f"offset:{1024 * ks} sc1")

        self.poll(s, hp0, [poll_txt(0)], [22])
        self.stamp(s, "hp0")
        for n in range(5):
            hload(n)
        p1 = s.vmem(poll_txt(1))
        for n in range(5, NS):
            hload(n)
        pa = self.partial_addrs(s, 1, 13)
        ypoll = f"buffer_load_dword v23, v21, {srd(sWS)}, 0 offen sc1"
        s.e(f"""s_lshr_b32 s{sA}, s{sP2}, 2
            s_lshr_b32 s{sB_}, s{sP2}, 3
            s_xor_b32 s{sA}, s{sA}, s{sB_}
            s_and_b32 s{sA}, s{sA}, 1
            s_lshl_b32 s{sA}, s{sA}, 11
            s_lshl_b32 s{sB_}, s{sDB}, 8
            s_add_u32 s{sA}, s{sA}, s{sB_}
            s_add_u32 s{sA}, s{sA}, {FY}
            v_lshlrev_b32 v21, 2, v0
            v_add_u32 v21, s{sA}, v21""")
        for n in range(32):
            th, r = divmod(n, 16)
            s.wait(vm=ht[n])
            if n == 0:
                last_flag()
            for dt in range(2):
                a = ACC[th] + 16 * dt
                s.e(f"{MFMA32} {vr(a, 16)}, {vr(WD + 8 * r + 4 * dt, 4)}, {vr(slot(n), 4)}, {vr(a, 16) if r else 0}")
            if n + NS == 16:
                self.poll(s, p1, [poll_txt(1)], [22])
            if n + NS < 32:
                hload(n + NS)
        self.stamp(s, "g2b")
        XR, SR, XU, XM, YF, F0, F1, RB = (24, 28), (32, 33), (128, 136), (144, 152), (160, 168), 176, 184, 192
        s.e(f"""s_lshl_b32 s{sG}, s{sP2}, 16
            s_add_u32 s{sG}, s{sG}, s{sW8K}
            s_lshl_b32 s{sA}, s{sDB}, 7
            s_add_u32 s{sG}, s{sG}, s{sA}
            s_add_u32 s{sF}, s{sG}, 32768
            s_lshl_b32 s{sA}, s{sP2}, 9
            s_lshl_b32 s{sB_}, s{sW}, 6
            s_add_u32 s{sA}, s{sA}, s{sB_}
            s_add_u32 s{sA}, s{sA}, {STATS + 4}
            v_lshrrev_b32 v13, 3, v0
            v_lshlrev_b32 v14, 3, v13""")
        s.vmem(f"buffer_load_dwordx4 {vr(XR[0], 4)}, v6, {srd(sX)}, s{sG} offen")
        s.vmem(f"buffer_load_dwordx4 {vr(XR[1], 4)}, v6, {srd(sX)}, s{sF} offen")
        s.vmem(f"buffer_load_dword v{SR[0]}, v14, {srd(sWS)}, s{sA} offen sc1")
        xtok = s.vmem(f"buffer_load_dword v{SR[1]}, v14, {srd(sWS)}, s{sA} offen offset:256 sc1")
        yp = s.vmem(ypoll)
        spin, free = s.label("cfl"), s.label("cflok")
        s.e(f"v_mov_b32 v15, {CFL}\ns_mov_b32 s{sCNT}, 0\n{spin}:\nds_read_b128 v[16:19], v15\ns_waitcnt lgkmcnt(0)")
        s.lg_done = s.lg
        s.e(f"""v_and_b32 v16, v16, v17
            v_and_b32 v18, v18, v19
            v_and_b32 v16, v16, v18
            v_cmp_ne_u32 vcc, 1, v16
            s_add_u32 s{sCNT}, s{sCNT}, 1
            s_cmp_gt_u32 s{sCNT}, {64 * o['poll_limit']}
            s_cbranch_scc1 {free}
            s_cbranch_vccnz {spin}
            {free}:""")
        for q in range(8):
            wtok = self.partial_write(s, pa, ACC[0], X1, q >> 2, q & 3)
        s.e(f"""v_and_b32 v14, 7, v0
            v_lshlrev_b32 v15, 1, v14
            v_xor_b32 v15, v15, v13
            s_lshl_b32 s{sA}, s{sW}, 11
            v_lshlrev_b32 v16, 8, v13
            v_add_u32 v16, s{sA}, v16
            v_lshl_add_u32 v7, v15, 4, v16
            v_xor_b32 v8, 16, v7
            v_lshrrev_b32 v15, 1, v14
            v_lshlrev_b32 v9, 12, v15
            v_and_b32 v15, 1, v14
            v_lshl_add_u32 v9, v15, 10, v9
            v_lshl_add_u32 v9, v14, 4, v9
            v_lshl_add_u32 v9, v13, 1, v9
            s_lshl_b32 s{sA}, s{sW}, 4
            s_add_u32 s{sA}, s{sA}, {ACC0}
            v_add_u32 v9, s{sA}, v9
            v_lshlrev_b32 v10, 4, v14
            v_lshl_add_u32 v10, v13, 12, v10""")
        ra = [Addr(s, 7, 0), Addr(s, 8, 0)]
        s.wait(vm=xtok)
        for th in range(2):
            for k in range(4):
                s.e(f"v_lshlrev_b32 v{XU[th] + 2 * k}, 16, v{XR[th] + k}")
                s.e(f"v_and_b32 v{XU[th] + 2 * k + 1}, 0xffff0000, v{XR[th] + k}")
            s.e(f"v_lshlrev_b32 v15, 16, v{SR[th]}\nv_and_b32 v{SR[th]}, 0xffff0000, v{SR[th]}")
            for k in range(8):
                s.e(f"v_sub_f32 v{XM[th] + k}, v{XU[th] + k}, v15")
            for k in range(8):
                s.e(f"v_mov_b32 v{YF[th] + k}, 0")
        s.wait(lg=wtok)
        s.barrier("Z1")
        self.stamp(s, "Z1")

        def preads(region, dst):
            toks = []
            for w in range(4):
                for e in range(2):
                    r, off = ra[e].off(region + 8192 * w, region)
                    t = s.ds(f"ds_read_b128 {vr(dst + 8 * w + 4 * e, 4)}, {r} offset:{off}")
                toks.append(t)
            return toks

        def psum(F, src, toks, init):
            for w in range(4):
                s.wait(lg=toks[w])
                if init and w == 0:
                    continue
                a = src if init and w == 1 else F
                for k in range(8):
                    s.e(f"v_add_f32 v{F + k}, v{a + k}, v{src + 8 * w + k}")

        def gate(F, th, T):
            for k in range(8):
                s.e(f"v_mul_f32 v{T + k}, {fhex(-LOG2E)}, v{F + k}")
            for k in range(8):
                s.e(f"v_exp_f32 v{T + k}, v{T + k}")
            for k in range(8):
                s.e(f"v_mul_f32 v{F + k}, v{F + k}, v{XM[th] + k}")
            for k in range(8):
                s.e(f"v_fma_f32 v{T + k}, v{T + k}, v{SR[th]}, v{SR[th]}")
            for k in range(8):
                s.e(f"v_rcp_f32 v{T + k}, v{T + k}")

        def store(F, th):
            R = 36 + 4 * th
            for x in range(4):
                s.e(f"v_cvt_pk_bf16_f32 v{R + x}, v{F + 2 * x}, v{F + 2 * x + 1}")
            s.vmem(f"buffer_store_dwordx4 {vr(R, 4)}, v6, {srd(sOUT)}, s{sF if th else sG} offen")

        t1 = preads(X1, RB)
        psum(F0, RB, t1[:2] + [t1[2], t1[3]], True)
        t2 = preads(RA[0], RB + 32)
        self.poll(s, yp, [ypoll], [23])
        self.stamp(s, "yp")
        s.e(f"""s_lshl_b32 s{sA}, s{sDB}, 18
            s_lshl_b32 s{sB_}, s{sW}, 16
            s_add_u32 s{sA}, s{sA}, s{sB_}
            s_lshl_b32 s{sB_}, s{sP2}, 7
            s_add_u32 s{sA}, s{sA}, s{sB_}
            s_add_u32 s{sA}, s{sA}, {YB}
            s_lshl_b32 s{sB_}, s{sW}, 5
            s_add_u32 s{sB_}, s{sB_}, s{sW4K}""")
        for z in range(2):
            s.e(f"s_add_u32 m0, s{sB_}, {ACC0 + 1040 * z}")
            ytok = s.vmem(f"buffer_load_dwordx4 v10, {srd(sWS)}, s{sA} offen sc1 lds")
            if z == 0:
                s.e(f"s_add_u32 s{sA}, s{sA}, 32768")
        psum(F0, RB + 32, t2, False)
        for q in range(8):
            wtok = self.partial_write(s, pa, ACC[1], RA[2], q >> 2, q & 3)
        gate(F0, 0, RB)
        for k in range(8):
            s.e(f"v_mul_f32 v{F0 + k}, v{F0 + k}, v{RB + k}")
        s.wait(vm=ytok, lg=wtok)
        s.barrier("Z1b")
        self.stamp(s, "Z1b")
        yt = []
        for th in range(2):
            for k in range(8):
                t = s.ds(f"ds_read_u16_d16_hi v{YF[th] + k}, v9 offset:{128 * k + 64 * th}")
                if th == 1 and k == 3:
                    s.wait(lg=yt[0])
            yt.append(t)
        t3 = preads(RA[2], RB)
        for k in range(8):
            s.e(f"v_fma_f32 v{F0 + k}, v{F0 + k}, v{YF[0] + k}, v{XU[0] + k}")
        store(F0, 0)
        s.wait(lg=yt[1])
        for k in range(8):
            s.e(f"v_mul_f32 v{XM[1] + k}, v{XM[1] + k}, v{YF[1] + k}")
        psum(F1, RB, t3, True)
        s.barrier("Z2")
        self.stamp(s, "Z2")
        t4 = preads(RA[1], RB + 32)
        psum(F1, RB + 32, t4, False)
        gate(F1, 1, RB)
        for k in range(8):
            s.e(f"v_fma_f32 v{F1 + k}, v{F1 + k}, v{RB + k}, v{XU[1] + k}")
        store(F1, 1)
        self.finish(s)

    def build(self):
        streams = [self.entry(), self.stream_GB(), self.stream_GA(), self.stream_PB(), self.stream_PA()]
        by = {s.name: s for s in streams}
        assert by["GA"].nbar == by["GB"].nbar, (by["GA"].nbar, by["GB"].nbar)
        assert by["PA"].nbar == by["PB"].nbar, (by["PA"].nbar, by["PB"].nbar)
        body = []
        self.info = {}
        for s in streams:
            lines, added = fix_hazards(s.L)
            self.info[s.name] = (len(lines), added, s.nbar)
            body += lines
        ref = open(f"cdna_kernels/{NAME}.s.ref").read().split("\n")
        head = [l for l in ref if l.startswith(";") and "@launch" not in l]
        out = head + [f"; @launch grid=(256,1,1) block=(512,1,1) lds={LDS_BYTES}",
                      '.amdgcn_target "amdgcn-amd-amdhsa--gfx950"', ".text", f".globl {NAME}_kernel", ".p2align 8",
                      f".type {NAME}_kernel,@function", f"{NAME}_kernel:"]
        out += [l if l.endswith(":") else "    " + l for l in body]
        out += ["L_code_end:", '.section .rodata,"a"', ".p2align 6", f".amdhsa_kernel {NAME}_kernel",
                "  .amdhsa_next_free_vgpr 256", "  .amdhsa_next_free_sgpr 102", "  .amdhsa_accum_offset 256",
                "  .amdhsa_group_segment_fixed_size 0", "  .amdhsa_kernarg_size 104", "  .amdhsa_user_sgpr_count 2",
                "  .amdhsa_user_sgpr_kernarg_segment_ptr 1", "  .amdhsa_system_sgpr_workgroup_id_x 1",
                "  .amdhsa_float_denorm_mode_32 3", ".end_amdhsa_kernel", ""]
        return "\n".join(out)


def parse_opts(args):
    kw = {}
    for a in args:
        k, v = a.split("=")
        kw[k] = int(v) if v.lstrip("-").isdigit() else v
    return kw


if __name__ == "__main__":
    path = sys.argv[1]
    g = Gen(**parse_opts(sys.argv[2:]))
    open(path, "w").write(g.build())
    print(g.info)
```

```python
import struct
import sys
from collections import deque

from asmlib import Addr, Stream, fix_hazards, vr

NAME = "recurrent_scan__ssm_conv_h3__glu_gated_geglu__prompt"

DEFAULTS = dict(stamp=0, kv_after=2, pf=4, upto="all", bud_a=500, bud_b=330, conv_lead=7, poll_limit=40000,
                nt="", diag="")

EPOCH, STATS, FKV, FY, FH, STAMPS = 0x0, 0x1000, 0x5000, 0x6000, 0x8000, 0x30000
KVT, YB, HB, WS_END = 0x100000, 0x300000, 0x500000, 0xC00000
TAG_STEP = 0x9E3779B1

X1, X2, X0 = 0, 33280, 66560
ACC0, ST1, ST2, SPARE = 99840, 116224, 132608, 148992
KVB, CFL = SPARE, SPARE + 9216
LDS_BYTES = 163840
G = 2
CH = 16384 + 4096 * G
XSLOT = {2: X1, 3: X2, 4: X0, 5: X1, 6: X2, 7: X0}
RA = (X2, ST1, X0)

sX, sWS, sWD, sOUT, sWG, sWU, sK, sV, sSH, sSK = 4, 8, 12, 16, 20, 24, 28, 32, 36, 40
sDP, sD, sT, sW, sW8 = 44, 46, 47, 48, 49
sXCD, sSLOT, sI, sJ, sROT, sP2, sDB, sBLK = 50, 51, 52, 53, 54, 55, 56, 57
sW1K, sW4K, sW8K, sW8320 = 61, 62, 63, 64
sA, sB_, sC, sE, sF, sCNT, sG = 65, 66, 67, 68, 69, 70, 71
sSTAMP = 72
NSTAMP = 15

srd = lambda n: f"s[{n}:{n + 3}]"
fhex = lambda x: "0x%08x" % struct.unpack("<I", struct.pack("<f", x))[0]
LOG2E = 1.4426950408889634
MFMA32 = "v_mfma_f32_32x32x16_bf16"
MFMA16 = "v_mfma_f32_16x16x32_bf16"


class Gen:
    def __init__(self, **kw):
        self.o = dict(DEFAULTS, **kw)
        self.stamp_names = {}

    def stamp(self, s, name):
        if not self.o["stamp"]:
            return
        names = self.stamp_names.setdefault(s.name, [])
        if len(names) >= NSTAMP - 2:
            return
        names.append(name)
        r = sSTAMP + 2 + 2 * len(names)
        s.e(f"s_memtime s[{r}:{r + 1}]")

    def finish(self, s):
        if self.o["stamp"]:
            s.e("s_waitcnt vmcnt(0)")
            self.stamp(s, "end")
            self.diag(s)
            s.e(f"""s_waitcnt lgkmcnt(0)
                s_lshl_b32 s{sA}, s2, 9
                s_lshl_b32 s{sB_}, s{sW8}, 6
                s_add_u32 s{sA}, s{sA}, s{sB_}
                s_add_u32 s{sA}, s{sA}, {STAMPS}
                v_mov_b32 v1, 0""")
            for k in range(2 + len(self.stamp_names[s.name])):
                s.e(f"v_mov_b32 v2, s{sSTAMP + 2 * k}")
                s.e(f"buffer_store_dword v2, v1, {srd(sWS)}, s{sA} offen offset:{4 * k}")
        s.e("s_endpgm")

    def diag(self, s):
        if not self.o["diag"]:
            return
        stream, name, wg, mult = self.o["diag"].split(":")
        if stream != s.name:
            return
        loop, skip = s.label("diag"), s.label("nodiag")
        names = self.stamp_names[s.name]
        e = sSTAMP + 2 + 2 * len(names)
        s.e(f"s_waitcnt lgkmcnt(0)\ns_cmp_lg_u32 s2, {wg}\ns_cbranch_scc1 {skip}")
        if name == "fixed":
            s.e(f"s_mov_b32 s{sA}, {mult}")
        else:
            r = sSTAMP + 2 + 2 * (names.index(name) + 1)
            s.e(f"s_sub_u32 s{sA}, s{r}, s{sSTAMP + 2}\ns_mul_i32 s{sA}, s{sA}, {mult}")
        s.e(f"""s_min_u32 s{sA}, s{sA}, 2000000
            {loop}:
            s_memtime s[{sE}:{sE + 1}]
            s_waitcnt lgkmcnt(0)
            s_sub_u32 s{sB_}, s{sE}, s{e}
            s_cmp_lt_u32 s{sB_}, s{sA}
            s_cbranch_scc1 {loop}
            {skip}:""")

    def poll(self, s, tok, issue, regs):
        def check():
            s.e(f"v_cmp_ne_u32 vcc, s{sT}, v{regs[0]}")
            for r in regs[1:]:
                s.e(f"v_cmp_ne_u32 s[{sE}:{sE + 1}], s{sT}, v{r}")
                s.e(f"s_or_b64 vcc, vcc, s[{sE}:{sE + 1}]")
        ok, again = s.label("ok"), s.label("poll")
        s.wait(vm=tok)
        check()
        s.e(f"s_cbranch_vccz {ok}")
        s.e(f"s_mov_b32 s{sCNT}, 0")
        s.e(f"{again}:")
        for t in issue:
            s.e(t)
        s.e("s_waitcnt vmcnt(0)")
        check()
        s.e(f"""s_add_u32 s{sCNT}, s{sCNT}, 1
            s_cmp_gt_u32 s{sCNT}, {self.o['poll_limit']}
            s_cbranch_scc1 {ok}
            s_cbranch_vccnz {again}
            {ok}:""")

    def flag(self, s, vT, vZ, soff):
        s.e("s_mov_b64 exec, 1")
        t = s.vmem(f"buffer_store_dword v{vT}, v{vZ}, {srd(sWS)}, {soff} offen sc1")
        s.e("s_mov_b64 exec, -1")
        return t

    def tag_ready(self, s):
        s.wait_all_lg()
        s.e(f"s_add_u32 s{sT}, s{sT}, {TAG_STEP:#x}")

    def row_of_group(self, s, dst, g):
        s.e(f"""s_add_u32 s{dst}, s{sJ}, {g >> 1}
            s_and_b32 s{dst}, s{dst}, 3
            s_lshl_b32 s{dst}, s{dst}, 6
            s_add_u32 s{dst}, s{dst}, s{sI}""")
        if g & 1:
            s.e(f"s_add_u32 s{dst}, s{dst}, 32")

    def block_ids(self, s, first, count):
        for b in range(count):
            d = sBLK + b
            s.e(f"""s_add_u32 s{sA}, s{sW}, {first + 4 * b}
                s_mul_i32 s{sB_}, s{sA}, 37
                s_lshr_b32 s{sB_}, s{sB_}, 8
                s_mul_i32 s{sC}, s{sB_}, 7
                s_sub_u32 s{sA}, s{sA}, s{sC}
                s_add_u32 s{sA}, s{sA}, s{sDB}
                s_sub_u32 s{sC}, s{sA}, 7
                s_cmp_ge_u32 s{sA}, 7
                s_cselect_b32 s{sA}, s{sC}, s{sA}
                s_sub_u32 s{sB_}, s{sP2}, s{sB_}
                s_and_b32 s{sB_}, s{sB_}, 3
                s_lshl_b32 s{sA}, s{sA}, 2
                s_add_u32 s{d}, s{sA}, s{sB_}""")
        for b in range(count, 4):
            s.e(f"s_mov_b32 s{sBLK + b}, s{sBLK + count - 1}")

    def hflag_addr(self, s, v, t):
        s.e(f"""v_bfe_u32 v{t}, v0, 2, 2
            v_mov_b32 v{v}, s{sBLK}""")
        for b in range(1, 4):
            s.e(f"""v_mov_b32 v{t + 1}, s{sBLK + b}
                v_cmp_eq_u32 vcc, {b}, v{t}
                v_cndmask_b32 v{v}, v{v}, v{t + 1}, vcc""")
        s.e(f"""s_mul_i32 s{sA}, s{sP2}, {28 * 128}
            s_add_u32 s{sA}, s{sA}, {FH}
            v_and_b32 v{t}, 3, v0
            v_lshlrev_b32 v{t}, 2, v{t}
            v_lshl_add_u32 v{v}, v{v}, 7, v{t}
            v_add_u32 v{v}, s{sA}, v{v}""")

    def wd_lane_addrs(self, s, vD, vR0, vR1, t, base):
        s.e(f"""v_lshrrev_b32 v{t}, 3, v0
            v_bfe_u32 v{t + 1}, v0, 4, 1
            v_lshlrev_b32 v{t + 1}, 2, v{t + 1}
            v_and_b32 v{vD}, 7, v0
            v_xor_b32 v{vD}, v{vD}, v{t + 1}
            v_lshlrev_b32 v{vD}, 4, v{vD}
            v_lshl_add_u32 v{vD}, v{t}, 10, v{vD}
            v_lshrrev_b32 v{t}, 5, v0
            v_lshlrev_b32 v{vR0}, 10, v{t}
            v_bfe_u32 v{t}, v0, 2, 2
            v_lshl_add_u32 v{vR0}, v{t}, 7, v{vR0}
            v_bfe_u32 v{t}, v0, 3, 1
            v_lshl_add_u32 v{vR0}, v{t}, 6, v{vR0}
            v_bfe_u32 v{t}, v0, 4, 1
            v_lshl_add_u32 v{vR0}, v{t}, 5, v{vR0}
            v_and_b32 v{t}, 3, v0
            v_lshl_add_u32 v{vR0}, v{t}, 3, v{vR0}
            v_xor_b32 v{vR1}, 64, v{vR0}
            s_add_u32 s{sA}, s{sW8K}, {base}
            v_add_u32 v{vR0}, s{sA}, v{vR0}
            v_add_u32 v{vR1}, s{sA}, v{vR1}""")

    def wd_dma(self, s, vD, b, e, lds):
        s.e(f"""s_lshl_b32 s{sA}, s{sBLK + b}, 16
            s_add_u32 s{sA}, s{sA}, s{sG}
            s_add_u32 m0, s{sW8K}, {lds}""")
        if e:
            s.e(f"s_add_u32 s{sA}, s{sA}, {e * 8192}")
        return s.vmem(f"buffer_load_dwordx4 v{vD}, {srd(sWD)}, s{sA} offen lds")

    def partial_addrs(self, s, v, t):
        s.e(f"""v_and_b32 v{t}, 31, v0
            v_lshlrev_b32 v{t}, 8, v{t}
            v_add_u32 v{t}, s{sW8K}, v{t}
            v_lshrrev_b32 v{t + 1}, 5, v0
            v_and_b32 v{t + 2}, 7, v0
            v_xor_b32 v{t + 1}, v{t + 1}, v{t + 2}""")
        for i in range(4):
            s.e(f"""v_xor_b32 v{t + 2}, {2 * i}, v{t + 1}
                v_lshl_add_u32 v{v + i}, v{t + 2}, 4, v{t}""")
        return [Addr(s, v + i, 0) for i in range(4)]

    def partial_write(self, s, pa, acc, region, dt, i):
        r, o = pa[i].off(region + dt * 128, region)
        return s.ds(f"ds_write_b128 {r}, {vr(acc + 16 * dt + 4 * i, 4)} offset:{o}")

    def h_soff(self, s, b, th):
        s.e(f"""s_lshl_b32 s{sA}, s{sBLK + b}, 12
            s_add_u32 s{sC}, s{sA}, s{sF}""")
        if th:
            s.e(f"s_add_u32 s{sC}, s{sC}, 114688")

    def entry(self):
        s = Stream("entry")
        if self.o["stamp"]:
            s.e(f"s_memrealtime s[{sSTAMP}:{sSTAMP + 1}]")
            s.e(f"s_memtime s[{sSTAMP + 2}:{sSTAMP + 3}]")
        s.e("s_cmp_ge_u32 s2, 256\ns_cbranch_scc1 L_exit")
        for reg, slot in ((sWG, 7), (sWU, 8), (sX, 0), (sWS, 12), (sK, 1), (sV, 2), (sSH, 3), (sSK, 4), (sDP, 5),
                          (sWD, 9), (sOUT, 10)):
            s.e(f"s_load_dwordx2 s[{reg}:{reg + 1}], s[0:1], {slot * 8}")
        s.e(f"""v_lshrrev_b32 v1, 6, v0
            v_and_b32 v0, 63, v0
            v_readfirstlane_b32 s{sW8}, v1""")
        for reg, size in ((sX, 2097152), (sWS, WS_END), (sWD, 1835008), (sOUT, 2097152), (sWG, 1835008),
                          (sWU, 1835008), (sK, 2097152), (sV, 2097152), (sSH, 4096), (sSK, 2097152)):
            s.e(f"s_mov_b32 s{reg + 2}, {size}\ns_mov_b32 s{reg + 3}, 0x00020000")
        s.e(f"""s_and_b32 s{sW}, s{sW8}, 3
            s_and_b32 s{sXCD}, s2, 7
            s_lshr_b32 s{sSLOT}, s2, 3
            s_and_b32 s{sA}, s{sXCD}, 1
            s_lshl_b32 s{sA}, s{sA}, 2
            s_lshr_b32 s{sB_}, s{sXCD}, 1
            s_and_b32 s{sC}, s{sSLOT}, 3
            s_lshr_b32 s{sDB}, s{sSLOT}, 2
            s_add_u32 s{sI}, s{sA}, s{sC}
            s_lshl_b32 s{sI}, s{sI}, 8
            s_mul_i32 s{sJ}, s{sB_}, 7
            s_add_u32 s{sJ}, s{sJ}, s{sDB}
            s_lshr_b32 s{sROT}, s{sDB}, 2
            s_lshl_b32 s{sE}, s{sC}, 1
            s_add_u32 s{sROT}, s{sROT}, s{sE}
            s_add_u32 s{sP2}, s{sA}, s{sB_}
            s_lshl_b32 s{sP2}, s{sP2}, 2
            s_add_u32 s{sP2}, s{sP2}, s{sC}
            s_lshl_b32 s{sW1K}, s{sW}, 10
            s_lshl_b32 s{sW4K}, s{sW}, 12
            s_lshl_b32 s{sW8K}, s{sW}, 13
            s_mul_i32 s{sW8320}, s{sW}, 8320
            s_cmp_ge_u32 s{sSLOT}, 28
            s_cbranch_scc1 L_role_p
            s_cmp_ge_u32 s{sW8}, 4
            s_cbranch_scc1 L_GB
            s_branch L_GA
            L_role_p:
            s_cmp_ge_u32 s{sW8}, 4
            s_cbranch_scc1 L_PB
            s_branch L_PA
            L_exit:
            s_endpgm""")
        return s

    def late_scalars(self, s):
        s.e(f"""s_waitcnt lgkmcnt(0)
            s_lshl_b32 s3, s2, 2
            s_load_dword s{sT}, s[{sWS}:{sWS + 1}], {EPOCH}
            s_load_dword s{sD}, s[{sDP}:{sDP + 1}], s3""")

    A_XF, A_ACC, A_ONE, A_W = 16, (48, 64, 80, 96), 112, 128

    def a_post_setup(self, s):
        items = []

        def conv_addr():
            s.e(f"""v_and_b32 v14, 15, v0
                v_sub_u32 v15, 15, v14
                v_and_b32 v15, 3, v15
                v_add_u32 v2, v14, v15
                v_lshlrev_b32 v2, 1, v2
                v_mul_u32_u24 v15, 4160, v15
                v_add_u32 v2, v2, v15""")

        def conv_addr2():
            s.e(f"""v_lshrrev_b32 v15, 4, v0
                v_lshl_add_u32 v2, v15, 4, v2
                s_lshr_b32 s{sA}, s{sW}, 1
                s_mul_i32 s{sB_}, s{sA}, 16640
                s_add_u32 s{sB_}, s{sB_}, {X1 + 2}
                v_add_u32 v2, s{sB_}, v2""")

        def conv_addr3():
            s.e(f"""v_lshlrev_b32 v3, 4, v15
                v_lshlrev_b32 v14, 5, v14
                v_sub_u32 v3, v3, v14
                s_mul_i32 s{sB_}, s{sA}, 4608
                s_add_u32 s{sB_}, s{sB_}, {KVB + 480}
                v_add_u32 v3, s{sB_}, v3""")

        items += [conv_addr, conv_addr2, conv_addr3]
        items.append(lambda: self.block_ids(s, 16, 3))
        items.append(lambda: self.wd_lane_addrs(s, 4, 5, 8, 14, RA[0]))
        items.append(lambda: self.hflag_addr(s, 9, 14))
        items.append(lambda: s.e(f"""s_lshl_b32 s{sG}, s{sDB}, 7
            s_mul_i32 s{sF}, s{sP2}, {2 * 114688}
            s_add_u32 s{sF}, s{sF}, {HB}
            v_lshlrev_b32 v1, 4, v0
            v_mov_b32 v10, s{sT}
            v_mov_b32 v11, 0"""))
        return items

    def stream_GA(self):
        s = Stream("GA")
        o = self.o
        XF, S, ONE, W = self.A_XF, self.A_ACC, self.A_ONE, self.A_W
        s.e("L_GA:\ns_setprio 2")
        s.e(f"""v_bfe_u32 v8, v0, 4, 1
            v_lshrrev_b32 v9, 5, v0
            v_bfe_u32 v10, v0, 2, 2
            v_lshlrev_b32 v1, 11, v8
            v_lshl_add_u32 v1, v9, 10, v1
            v_lshl_add_u32 v1, v10, 7, v1
            v_bfe_u32 v10, v0, 3, 1
            v_lshl_add_u32 v10, v8, 1, v10
            v_xor_b32 v10, s{sW}, v10
            v_lshl_add_u32 v1, v10, 5, v1
            v_and_b32 v10, 1, v0
            v_lshl_add_u32 v1, v10, 4, v1
            v_bfe_u32 v10, v0, 1, 1
            v_lshl_add_u32 v1, v10, 3, v1
            v_add_u32 v1, {X0}, v1
            v_and_b32 v8, 31, v0
            v_bfe_u32 v10, v0, 1, 3
            v_xor_b32 v10, v10, v9
            v_lshlrev_b32 v11, 7, v8
            v_add_u32 v11, {X0}, v11""")
        for k in range(4):
            s.e(f"v_xor_b32 v12, {2 * k}, v10\nv_lshl_add_u32 v{2 + k}, v12, 4, v11")
        s.e(f"""v_mul_u32_u24 v6, 1040, v8
            v_lshl_add_u32 v6, v9, 4, v6
            v_lshlrev_b32 v7, 4, v0
            v_add_u32 v7, s{sW4K}, v7
            v_add_u32 v7, {ACC0}, v7""")
        for k in range(4):
            s.e(f"v_mov_b32 v{ONE + k}, 0x3f803f80")
        self.late_scalars(s)
        aTR = Addr(s, 1, X0)
        aXA = [Addr(s, 2 + k, X0) for k in range(4)]
        aXR = Addr(s, 6, 0)
        acc_of = {0: S[0], 1: S[1], 2: S[3], 3: S[0], 4: S[3], 5: S[0], 6: S[3], 7: S[0]}
        cs = lambda c: X0 + (c % 3) * CH

        def rd1(n):
            c, st = divmod(n, 4)
            for x in range(2):
                r, off = aTR.off(cs(c) + st * 4096 + x * 512, cs(c))
                s.ds(f"ds_read_b64_tr_b16 {vr(W + 4 * n + 2 * x, 2)}, {r} offset:{off}")
            for g in range(G):
                r, off = aXA[st].off(cs(c) + 16384 + g * 4096, cs(c))
                t = s.ds(f"ds_read_b128 {vr(XF + 4 * ((n & 1) * G + g), 4)}, {r} offset:{off}")
            return t

        frag = lambda g, k: XF + 4 * (((g - G) * 32 + k + 4) % 8)
        xt = {}

        def rd2(g, k):
            r, off = aXR.off(XSLOT[g] + 32 * k, XSLOT[g])
            xt[g, k] = s.ds(f"ds_read_b128 {vr(frag(g, k), 4)}, {r} offset:{off}")

        PF = o["pf"]
        s.barrier("b0")
        self.stamp(s, "b0")
        tok = rd1(0)
        for n in range(32):
            nxt = None
            if n % 4 == 3:
                if n == 3:
                    self.tag_ready(s)
                s.wait(lg=tok)
                s.barrier(f"b{n // 4 + 1}")
                if n in (15, 31):
                    self.stamp(s, f"b{n // 4 + 1}")
            if n < 31:
                nxt = rd1(n + 1)
            else:
                for k in range(PF):
                    rd2(G, k)
            s.wait(lg=tok)
            for g in range(G):
                a = acc_of[g]
                s.e(f"{MFMA32} {vr(a, 16)}, {vr(W + 4 * n, 4)}, {vr(XF + 4 * ((n & 1) * G + g), 4)}, "
                    f"{vr(a, 16) if n else 0}")
            s.e(f"{MFMA32} {vr(S[2], 16)}, {vr(W + 4 * n, 4)}, {vr(ONE, 4)}, {vr(S[2], 16) if n else 0}")
            tok = nxt

        def accw(a, dst, i):
            return s.ds(f"ds_write_b128 v7, {vr(a + 4 * i, 4)} offset:{dst - ACC0 + 1024 * i}")

        setup = deque(self.a_post_setup(s))
        wd_tok = [None] * 3
        for g in range(G, 8):
            side = {}
            if g == G:
                jobs = [(S[2], ST2, i) for i in range(4)] + [(acc_of[0], ACC0, i) for i in range(4)]
                late = [(acc_of[1], ST1, i) for i in range(4)]
            else:
                jobs, late = [(acc_of[g - 1], ACC0, i) for i in range(4)], []
            k_alpha = 4 + len(jobs) + 1
            wtok = None
            for k in range(32):
                idx = k + PF
                if idx < 32:
                    rd2(g, idx)
                else:
                    if idx == 32:
                        s.wait(lg=wtok)
                        s.barrier(f"beta{g + 1}")
                    if g < 7:
                        rd2(g + 1, idx - 32)
                if 4 <= k < 4 + len(jobs):
                    wtok = accw(*jobs[k - 4])
                if k == k_alpha:
                    s.wait(lg=wtok)
                    s.barrier(f"alpha{g}")
                    self.stamp(s, f"al{g}") if g in (2, 4, 7) else None
                if late and k_alpha < k <= k_alpha + 4:
                    wtok = accw(*late[k - k_alpha - 1])
                if g in (4, 5, 6) and k > k_alpha and k % 6 == 0 and setup:
                    setup.popleft()()
                if g == 7 and k_alpha < k <= k_alpha + 16 and (k - k_alpha) % 2:
                    e = (k - k_alpha) // 2
                    wd_tok[0] = self.wd_dma(s, 4, 0, e, RA[0] + 1024 * e)
                s.wait(lg=xt[g, k])
                a = acc_of[g]
                s.e(f"{MFMA32} {vr(a, 16)}, {vr(W + 4 * k, 4)}, {vr(frag(g, k), 4)}, {vr(a, 16) if k else 0}")
        assert not setup
        self.stamp(s, "g1end")
        self.a_post(s, wd_tok, lambda i: accw(acc_of[7], ACC0, i))
        return s

    def stream_PA(self):
        s = Stream("PA")
        s.e("L_PA:")
        s.e(f"""s_getpc_b64 s[{sE}:{sE + 1}]
            L_pc:
            s_sub_u32 s{sE}, s{sE}, L_pc-{NAME}_kernel
            s_subb_u32 s{sE + 1}, s{sE + 1}, 0
            s_and_b32 s{sA}, s{sSLOT}, 3
            s_lshl_b32 s{sA}, s{sA}, 2
            s_add_u32 s{sA}, s{sA}, s{sW}
            v_lshlrev_b32 v1, 4, v0
            v_add_u32 v1, s{sA}, v1
            v_lshlrev_b32 v1, 7, v1
            v_min_u32 v1, L_code_end-{NAME}_kernel-4, v1""")
        s.vmem(f"global_load_dword v16, v1, s[{sE}:{sE + 1}]")
        self.late_scalars(s)
        self.tag_ready(s)
        for f in self.a_post_setup(s):
            f()
        s.barrier("p1")
        s.barrier("p2")
        wd_tok = [None] * 3
        for e in range(8):
            wd_tok[0] = self.wd_dma(s, 4, 0, e, RA[0] + 1024 * e)
        s.e("s_setprio 2")
        s.barrier("beta8")
        self.stamp(s, "beta8")
        self.a_post(s, wd_tok, None)
        return s

    def a_post(self, s, wd_tok, accw):
        o = self.o
        join1, set1 = s.label("convjoin"), s.label("set1")
        s.e(f"s_bitcmp1_b32 s{sW}, 0\ns_cbranch_scc1 {set1}")
        snap = (s.vm, s.vm_done, s.lg, s.lg_done, s.nbar)
        res = []
        for st, tiles in enumerate(((7, 4, 3, 0), (6, 5, 2, 1))):
            s.vm, s.vm_done, s.lg, s.lg_done, s.nbar = snap
            if st:
                s.e(f"{set1}:\ns_nop 7")
            wt = list(wd_tok)
            ytok, ptok = self.conv(s, st, tiles, wt, accw)
            s.wait_all_lg()
            res.append((s.vm, s.vm_done, s.nbar, tuple(wt), ytok, ptok))
            if not st:
                s.e(f"s_branch {join1}")
        assert res[0] == res[1]
        s.e(f"{join1}:")
        self.stamp(s, "conv")
        wt, ytok, ptok = res[0][3:]
        if o["upto"] == "conv":
            s.wait(vm=ytok)
            self.y_flag(s)
            self.epoch(s)
            self.finish(s)
            return
        WD, ACC = 160, (48, 80)
        slots = [16 + 4 * i for i in range(8)] + [128 + 4 * i for i in range(8)]
        pa = self.partial_addrs(s, 112, 116)
        aR = [Addr(s, 5, RA[0]), Addr(s, 8, RA[0])]
        poll_txt = lambda th: f"buffer_load_dword v12, v9, {srd(sWS)}, 0 offen offset:{16 * th} sc1"
        ht = {}

        def hload(th, n):
            b, ks = divmod(n, 4)
            if ks == 0:
                self.h_soff(s, b, th)
            r = slots[(12 * th + n) % 16]
            ht[th, n] = s.vmem(f"buffer_load_dwordx4 {vr(r, 4)}, v1, {srd(sWS)}, s{sC} offen offset:{1024 * ks} sc1")

        def wdread(n):
            b, ks = divmod(n, 4)
            s.wait(vm=wt[b])
            for dt in range(2):
                for x in range(2):
                    r, off = aR[dt].off(RA[b] + 2048 * ks + 512 * x, RA[b])
                    t = s.ds(f"ds_read_b64_tr_b16 {vr(WD + 8 * n + 4 * dt + 2 * x, 2)}, {r} offset:{off}")
            return t

        def mm(th, n):
            r = slots[(12 * th + n) % 16]
            for dt in range(2):
                a = ACC[th] + 16 * dt
                s.e(f"{MFMA32} {vr(a, 16)}, {vr(WD + 8 * n + 4 * dt, 4)}, {vr(r, 4)}, {vr(a, 16) if n else 0}")

        self.poll(s, ptok, [poll_txt(0)], [12])
        self.stamp(s, "hp0")
        for n in range(6):
            hload(0, n)
        p1 = s.vmem(poll_txt(1))
        for n in range(6, 12):
            hload(0, n)
        wr = {0: wdread(0), 1: wdread(1)}
        issued1 = 0
        for n in range(12):
            if n + 2 < 12:
                wr[n + 2] = wdread(n + 2)
            s.wait(vm=ht[0, n], lg=wr[n])
            if n == 0:
                self.y_flag(s)
            if n == 6:
                self.poll(s, p1, [poll_txt(1)], [12])
            mm(0, n)
            if n >= 6:
                while issued1 < 12 and issued1 < min(n + 5, 3 * (n - 5)):
                    hload(1, issued1)
                    issued1 += 1
        while issued1 < 12:
            hload(1, issued1)
            issued1 += 1
        self.stamp(s, "th0")
        wtok = None
        for n in range(12):
            s.wait(vm=ht[1, n])
            mm(1, n)
            if 1 <= n < 5:
                for z in range(2):
                    q = 2 * (n - 1) + z
                    wtok = self.partial_write(s, pa, ACC[0], RA[0], q >> 2, q & 3)
            if n == 5:
                s.wait(lg=wtok)
                s.barrier("Z1")
        self.stamp(s, "th1")
        s.barrier("Z1b")
        for q in range(8):
            wtok = self.partial_write(s, pa, ACC[1], RA[1], q >> 2, q & 3)
        s.wait(lg=wtok)
        s.barrier("Z2")
        self.epoch(s)
        self.finish(s)

    def y_flag(self, s):
        s.e(f"""s_and_b32 s{sA}, s{sW}, 1
            s_lshl_b32 s{sA}, s{sA}, 11
            s_lshr_b32 s{sB_}, s{sW}, 1
            s_lshl_b32 s{sB_}, s{sB_}, 2
            s_add_u32 s{sA}, s{sA}, s{sB_}
            s_lshl_b32 s{sB_}, s2, 3
            s_add_u32 s{sA}, s{sA}, s{sB_}
            s_add_u32 s{sA}, s{sA}, {FY}""")
        self.flag(s, 10, 11, f"s{sA}")

    def epoch(self, s):
        if s.name != "PA":
            return
        skip = s.label("noepoch")
        s.e(f"""s_cmp_lg_u32 s2, 255
            s_cbranch_scc1 {skip}
            s_cmp_lg_u32 s{sW8}, 0
            s_cbranch_scc1 {skip}
            s_mov_b32 s{sG}, {FY}""")
        txt = [f"buffer_load_dwordx4 v[{16 + 4 * z}:{19 + 4 * z}], v1, {srd(sWS)}, s{sG} offen offset:{1024 * z} sc1"
               for z in range(2)]
        for t in txt:
            tok = s.vmem(t)
        self.poll(s, tok, txt, list(range(16, 24)))
        self.flag(s, 10, 11, "0")
        s.e(f"{skip}:")

    def conv(self, s, st, tiles, wt, accw):
        o = self.o
        CACC, DF = 112, 16
        acc = {n: CACC + 4 * i for i, n in enumerate(tiles)}
        pool = deque([64 + 4 * i for i in range(12)] + [128 + 4 * i for i in range(8)])
        ops = []
        for r in range(8):
            for i in range(8):
                ops += [(n, ("A", r + 8 * i), ("G", r, n - i)) for n in tiles if n >= i]
                if r == 0 and i == 2:
                    ops += [(n, ("D",), ("G", 0, n)) for n in tiles]
        first, last = {}, {}
        for idx, (n, a, g) in enumerate(ops):
            for key in (a, g):
                first.setdefault(key, idx)
                last[key] = idx
        loads = deque(sorted((k for k in first if k[0] != "D"), key=lambda k: first[k]))
        total = sum(2 if k[0] == "A" else 1 for k in loads)
        reg, tok = {("D",): DF}, {("D",): 0}
        issued = 0

        def load(key):
            nonlocal issued
            r = reg[key] = pool.popleft()
            if key[0] == "A":
                s.ds(f"ds_read_b64 {vr(r, 2)}, v2 offset:{64 * key[1]}")
                tok[key] = s.ds(f"ds_read_b64 {vr(r + 2, 2)}, v2 offset:{64 * key[1] + 8}")
                issued += 2
            else:
                tok[key] = s.ds(f"ds_read_b128 {vr(r, 4)}, v3 offset:{512 * (7 - key[2]) + 64 * key[1]}")
                issued += 1

        lead = o["conv_lead"]
        while loads and first[loads[0]] < 4:
            load(loads.popleft())
        s.e(f"""s_lshr_b32 s{sA}, s{sW}, 1
            s_lshl_b32 s{sA}, s{sA}, 4
            s_lshr_b32 s{sA}, s{sD}, s{sA}
            s_and_b32 s{sA}, s{sA}, 0xffff
            v_and_b32 v14, 15, v0
            v_lshrrev_b32 v15, 4, v0
            v_lshl_add_u32 v14, v15, 3, v14
            v_sub_u32 v14, 15, v14
            v_and_b32 v15, 1, v14
            v_lshlrev_b32 v15, 4, v15
            v_lshlrev_b32 v15, v15, s{sA}
            v_ashrrev_i32 v14, 1, v14""")
        for x in range(4):
            s.e(f"v_cmp_eq_u32 vcc, {x}, v14\nv_cndmask_b32 v{DF + x}, 0, v15, vcc")
        wtok = None
        if accw:
            for i in range(4):
                wtok = accw(i)
        started = set()
        dma = deque((b, e) for b in (1, 2) for e in range(8))
        ptok = None
        for idx, (n, a, g) in enumerate(ops):
            while loads and pool and s.lg - s.lg_done <= 12 and (
                    first[loads[0]] <= idx + lead or issued < total * (idx + 2 * lead) / len(ops)):
                load(loads.popleft())
            if idx == 3:
                s.wait(lg=wtok)
                s.barrier("alpha8")
            if idx > 3 and idx % 5 == 0 and dma:
                b, e = dma.popleft()
                wt[b] = self.wd_dma(s, 4, b, e, RA[b] + 1024 * e)
            if idx == len(ops) - 24:
                ptok = s.vmem(f"buffer_load_dword v12, v9, {srd(sWS)}, 0 offen sc1")
            assert a in tok and g in tok, "fragment pool exhausted"
            s.wait(lg=max(tok[a], tok[g]))
            c = vr(acc[n], 4) if n in started else 0
            started.add(n)
            s.e(f"{MFMA16} {vr(acc[n], 4)}, {vr(reg[a], 4)}, {vr(reg[g], 4)}, {c}")
            for key in (a, g):
                if last[key] == idx and key[0] != "D":
                    pool.append(reg[key])
        assert not dma and not loads
        s.e(f"""s_lshl_b32 s{sA}, s{sW}, 2
            s_add_u32 s{sA}, s{sA}, {CFL}
            v_mov_b32 v14, s{sA}
            v_mov_b32 v15, 1""")
        s.ds("ds_write_b32 v14, v15")
        step = 1536 if st == 0 else 512
        s.e(f"""v_bfe_u32 v14, v0, 1, 4
            v_lshrrev_b32 v15, 5, v0
            v_lshl_add_u32 v14, v15, 4, v14
            v_and_b32 v13, 1, v0
            v_lshl_add_u32 v14, v13, 5, v14
            v_lshlrev_b32 v14, 2, v14
            v_mul_u32_u24 v15, {step}, v15
            v_and_b32 v13, 31, v0
            v_lshl_add_u32 v13, v13, 4, v15
            s_lshr_b32 s{sA}, s{sW}, 1
            s_lshl_b32 s{sB_}, s2, 1
            s_add_u32 s{sA}, s{sA}, s{sB_}
            s_lshl_b32 s{sA}, s{sA}, 12
            s_add_u32 s{sA}, s{sA}, {YB}""")
        pairs = ((tiles[3], tiles[2]), (tiles[1], tiles[0]))
        toks = []
        for z, (n1, n2) in enumerate(pairs):
            R = 64 + 8 * z
            for q, n in enumerate((n1, n2)):
                s.e(f"v_cvt_pk_bf16_f32 v{R + 2 * q}, v{acc[n]}, v{acc[n] + 1}")
                s.e(f"v_cvt_pk_bf16_f32 v{R + 2 * q + 1}, v{acc[n] + 2}, v{acc[n] + 3}")
            s.e(f"v_permlane16_swap_b32 v{R}, v{R + 2}\nv_permlane16_swap_b32 v{R + 1}, v{R + 3}")
            for x in range(4):
                t = s.ds(f"ds_bpermute_b32 v{R + 4 + x}, v14, v{R + x}")
            toks.append(t)
        for z, (n1, n2) in enumerate(pairs):
            s.wait(lg=toks[z])
            ytok = s.vmem(f"buffer_store_dwordx4 {vr(68 + 8 * z, 4)}, v13, {srd(sWS)}, s{sA} offen "
                          f"offset:{512 * n1} sc1")
        return ytok, ptok

    B_CS, B_STP, B_CON, B_OUT, B_AI, B_P, B_WD = 24, 40, 48, 52, (64, 80), 96, 128

    def b_common_addrs(self, s):
        s.e(f"""v_lshlrev_b32 v5, 4, v0
            v_lshrrev_b32 v13, 3, v0
            v_and_b32 v14, 7, v0
            v_lshlrev_b32 v6, 4, v14
            v_lshl_add_u32 v6, v13, 10, v6
            v_mov_b32 v12, 0""")

    def b_stats_load(self, s):
        s.e(f"""v_lshrrev_b32 v15, 5, v0
            v_and_b32 v16, 31, v0
            v_lshlrev_b32 v16, 4, v16
            v_lshl_add_u32 v16, v15, 10, v16
            s_lshr_b32 s{sA}, s{sP2}, 2
            s_lshl_b32 s{sA}, s{sA}, 5
            s_add_u32 s{sA}, s{sA}, s{sSLOT}
            s_lshl_b32 s{sA}, s{sA}, 2
            s_add_u32 s{sA}, s{sA}, s{sW}
            s_lshl_b32 s{sB_}, s{sA}, 11
            s_lshl_b32 s{sA}, s{sA}, 4
            s_add_u32 s{sA}, s{sA}, {STATS}
            v_lshlrev_b32 v15, 3, v15
            v_add_u32 v15, s{sA}, v15""")
        s.vmem(f"buffer_load_dwordx4 v[200:203], v16, {srd(sX)}, s{sB_} offen")
        return s.vmem(f"buffer_load_dwordx4 v[204:207], v16, {srd(sX)}, s{sB_} offen offset:512")

    def b_stats(self, s, tok):
        F = 208

        def reduce(r):
            for sh in (8, 4, 2, 1):
                s.e(f"v_add_f32_dpp v{r}, v{r}, v{r} row_ror:{sh} row_mask:0xf bank_mask:0xf")
            s.e(f"v_mov_b32 v{r + 1}, v{r}\nv_permlane16_swap_b32 v{r}, v{r + 1}\nv_add_f32 v{r}, v{r}, v{r + 1}")

        s.wait(vm=tok)
        for k in range(8):
            s.e(f"v_lshlrev_b32 v{F + 2 * k}, 16, v{200 + k}\nv_and_b32 v{F + 2 * k + 1}, 0xffff0000, v{200 + k}")
        for k in range(8):
            s.e(f"v_add_f32 v{200 + k}, v{F + 2 * k}, v{F + 2 * k + 1}")
        for w in (4, 2, 1):
            for k in range(w):
                s.e(f"v_add_f32 v{200 + k}, v{200 + k}, v{200 + k + w}")
        reduce(200)
        s.e(f"v_mul_f32 v200, {fhex(1 / 512)}, v200")
        for k in range(16):
            s.e(f"v_sub_f32 v{F + k}, v{F + k}, v200")
        s.e(f"v_mul_f32 v202, v{F}, v{F}\nv_mul_f32 v203, v{F + 1}, v{F + 1}")
        for k in range(2, 16):
            s.e(f"v_fmac_f32 v{202 + (k & 1)}, v{F + k}, v{F + k}")
        s.e("v_add_f32 v202, v202, v203")
        reduce(202)
        s.e(f"""v_mul_f32 v202, {fhex(1 / 512)}, v202
            v_cvt_pk_bf16_f32 v202, v202, v202
            v_and_b32 v202, 0xffff0000, v202
            v_add_f32 v202, {fhex(1e-5)}, v202
            v_cvt_pk_bf16_f32 v202, v202, v202
            v_and_b32 v202, 0xffff0000, v202
            v_sqrt_f32 v202, v202""")
        self.tag_ready(s)
        s.e(f"""v_cvt_pk_bf16_f32 v205, v200, v202
            v_mov_b32 v204, s{sT}
            v_mov_b32 v11, s{sT}
            s_mov_b32 exec_lo, 1
            s_mov_b32 exec_hi, 1""")
        s.vmem(f"buffer_store_dwordx2 v[204:205], v15, {srd(sWS)}, 0 offen sc1")
        s.e("s_mov_b64 exec, -1")

    def b_kv_dma(self, s):
        s.e(f"""v_mov_b32 v17, 0x40000000
            v_cmp_lt_u32 vcc, 39, v0
            v_cndmask_b32 v17, v17, v6, vcc
            s_lshl_b32 s{sA}, s{sSLOT}, 16
            s_lshl_b32 s{sB_}, s{sXCD}, 7
            s_add_u32 s{sA}, s{sA}, s{sB_}
            s_sub_u32 s{sB_}, s{sA}, 8192
            s_mov_b32 m0, {X2}
            s_mul_i32 s{sC}, s{sW}, 2080""")
        s.vmem(f"buffer_load_dwordx4 v17, {srd(sK)}, s{sB_} offen lds")
        s.e(f"s_lshl_b32 s{sB_}, s{sW}, 14\ns_add_u32 s{sA}, s{sA}, s{sB_}")
        for z in range(2):
            s.e(f"s_add_u32 m0, s{sC}, {X2 + (1 + z) * 1040}")
            s.vmem(f"buffer_load_dwordx4 v6, {srd(sK)}, s{sA} offen lds")
            s.e(f"s_add_u32 m0, s{sC}, {X2 + (9 + z) * 1040}")
            s.vmem(f"buffer_load_dwordx4 v6, {srd(sV)}, s{sA} offen lds")
            if z == 0:
                s.e(f"s_add_u32 s{sA}, s{sA}, 8192")
        s.e(f"""v_lshrrev_b32 v17, 3, v0
            v_lshlrev_b32 v18, 4, v17
            s_lshl_b32 s{sA}, s{sXCD}, 9
            s_lshl_b32 s{sB_}, s{sW}, 7
            s_add_u32 s{sA}, s{sA}, s{sB_}""")
        return s.vmem(f"buffer_load_dwordx4 v[148:151], v18, {srd(sSH)}, s{sA} offen")

    def b_kv_reads(self, s):
        s.e(f"""v_and_b32 v18, 7, v0
            v_sub_u32 v19, 7, v18
            v_mul_u32_u24 v19, 1040, v19
            v_lshl_add_u32 v19, v17, 2, v19
            s_lshl_b32 s{sA}, s{sW}, 5
            s_add_u32 s{sA}, s{sA}, {X2}
            v_add_u32 v19, s{sA}, v19
            v_lshlrev_b32 v18, 4, v18
            v_lshl_add_u32 v18, v17, 13, v18""")
        for z in range(11):
            off = (5 + z) * 128 if z < 3 else 1040 + (z - 3) * 128
            t = s.ds(f"ds_read_b32 v{128 + z}, v19 offset:{off}")
        s.wait(lg=t - 6)
        for z in range(8):
            t = s.ds(f"ds_read_b32 v{139 + z}, v19 offset:{9 * 1040 + z * 128}")
        return t

    def b_kv_items(self, s, rtok, state):
        KF, VF, KS, TP, OUT = 160, 172, 180, 152, 188
        items = []

        def unpack(dst, src, e):
            s.e(f"v_and_b32 v{dst}, 0xffff0000, v{src}" if e else f"v_lshlrev_b32 v{dst}, 16, v{src}")

        def taps():
            s.wait(lg=rtok)
            for z in range(8):
                unpack(TP + z, 148 + (z >> 1), z & 1)

        items.append(taps)
        for e in range(2):
            items.append(lambda e=e: [unpack(KF + z, 128 + z, e) for z in range(11)])
            items.append(lambda e=e: [unpack(VF + z, 139 + z, e) for z in range(8)])
            items.append(lambda e=e: [s.e(f"v_mul_f32 v{KS + t}, v{KF + t}, v{TP + 4 * e + 3}") for t in range(8)])
            for i in (2, 1, 0):
                items.append(lambda e=e, i=i: [s.e(f"v_fmac_f32 v{KS + t}, v{KF + t + 3 - i}, v{TP + 4 * e + i}")
                                               for t in range(8)])
            items.append(lambda: [s.e(f"v_mul_f32 v{KS + t}, v{KS + t}, v{VF + t}") for t in range(8)])

            def out(e=e):
                for x in range(4):
                    s.e(f"v_cvt_pk_bf16_f32 v{OUT + 4 * e + x}, v{KS + 7 - 2 * x}, v{KS + 6 - 2 * x}")
                s.e(f"""s_lshl_b32 s{sA}, s{sXCD}, 18
                    s_lshl_b32 s{sB_}, s{sW}, 16
                    s_add_u32 s{sA}, s{sA}, s{sB_}
                    s_lshl_b32 s{sB_}, s{sSLOT}, 7
                    s_sub_u32 s{sA}, s{sA}, s{sB_}
                    s_add_u32 s{sA}, s{sA}, {KVT + 3968 + 4096 * e}""")
                state["kv"] = s.vmem(f"buffer_store_dwordx4 {vr(OUT + 4 * e, 4)}, v18, {srd(sWS)}, s{sA} offen sc1")

            items.append(out)
        return items

    def b_kv_flag(self, s, state):
        s.wait(vm=state["kv"])
        s.e(f"""s_lshl_b32 s{sA}, s{sXCD}, 2
            s_add_u32 s{sA}, s{sA}, s{sW}
            s_lshl_b32 s{sA}, s{sA}, 5
            s_add_u32 s{sA}, s{sA}, s{sSLOT}
            s_lshl_b32 s{sA}, s{sA}, 2
            s_add_u32 s{sA}, s{sA}, {FKV}""")
        self.flag(s, 11, 12, f"s{sA}")

    def b_late_setup(self, s):
        self.block_ids(s, 0, 4)
        self.wd_lane_addrs(s, 8, 9, 10, 13, ST1)
        self.hflag_addr(s, 20, 13)
        s.e(f"s_lshl_b32 s{sG}, s{sDB}, 7")

    def b_hb_issue(self, s, hb):
        for e in range(4):
            t = self.wd_dma(s, 8, hb >> 1, 4 * (hb & 1) + e, ST1 + 4096 * (hb & 1) + 1024 * e)
        return t

    def b_hb_consume(self, s, hb, tok):
        s.wait(vm=tok)
        for k2 in range(2):
            n = 2 * hb + k2
            for dt in range(2):
                for x in range(2):
                    t = s.ds(f"ds_read_b64_tr_b16 {vr(self.B_WD + 8 * n + 4 * dt + 2 * x, 2)}, v{9 + dt} "
                             f"offset:{4096 * (hb & 1) + 2048 * k2 + 512 * x}")
        return t

    def b_ssm_load(self, s):
        s.e(f"""s_and_b32 s{sA}, s{sW}, 1
            s_lshl_b32 s{sA}, s{sA}, 11
            v_add_u32 v13, s{sA}, v5
            v_subrev_u32 v14, 8, v13
            v_add_u32 v15, 1016, v13
            s_lshr_b32 s{sA}, s{sW}, 1
            s_lshl_b32 s{sB_}, s2, 1
            s_add_u32 s{sA}, s{sA}, s{sB_}
            s_lshl_b32 s{sA}, s{sA}, 12""")
        s.vmem(f"buffer_load_dwordx4 v[106:109], v13, {srd(sSK)}, s{sA} offen")
        s.vmem(f"buffer_load_dwordx2 v[104:105], v14, {srd(sSK)}, s{sA} offen")
        s.vmem(f"buffer_load_dwordx4 v[112:115], v13, {srd(sSK)}, s{sA} offen offset:1024")
        return s.vmem(f"buffer_load_dwordx2 v[110:111], v15, {srd(sSK)}, s{sA} offen")

    def b_copy_items(self, s, tok, state):
        items = []

        def pads():
            s.e(f"""s_lshr_b32 s{sA}, s{sW}, 1
                s_mul_i32 s{sA}, s{sA}, 16640
                s_add_u32 s{sA}, s{sA}, {X1 + 32}
                v_add_u32 v13, s{sA}, v13
                v_mov_b32 v116, 0
                v_mov_b32 v117, 0
                v_mov_b32 v118, 0
                v_mov_b32 v119, 0
                v_bfe_u32 v14, v0, 1, 3
                v_mul_u32_u24 v14, 4160, v14
                v_and_b32 v15, 1, v0
                v_lshl_add_u32 v14, v15, 4, v14
                v_lshrrev_b32 v15, 5, v0
                v_mul_u32_u24 v15, 4096, v15
                v_add_u32 v15, v15, v5
                v_add_u32 v15, {KVB + 4096}, v15
                v_mov_b32 v16, {CFL}
                s_mov_b64 exec, 0xffff""")
            s.ds(f"ds_write_b128 v14, v[116:119] offset:{X1}")
            s.e("s_mov_b64 exec, 1")
            s.ds("ds_write_b128 v16, v[116:119]")
            s.e("s_mov_b64 exec, -1")
            state["cp"] = s.ds("ds_write_b128 v15, v[116:119]")

        items.append(pads)
        for z in range(2):
            d = 106 + 6 * z

            def even(z=z, d=d):
                s.wait(vm=tok, lg=state["cp"])
                s.ds(f"ds_write_b128 v13, {vr(d, 4)} offset:{1024 * z}")
                for x in range(4):
                    s.e(f"v_mov_b32 v{116 + x}, v{d - 1 + x}")
                s.ds(f"ds_write_b128 v13, v[116:119] offset:{2 * 4160 + 1024 * z}")

            def odd(z=z, d=d):
                for x in range(4):
                    s.e(f"v_alignbyte_b32 v{120 + x}, v{d + x}, v{d + x - 1}, 2")
                s.ds(f"ds_write_b128 v13, v[120:123] offset:{4160 + 1024 * z}")
                for x in range(4):
                    s.e(f"v_alignbyte_b32 v{124 + x}, v{d + x - 1}, v{d + x - 2}, 2")
                state["cp"] = s.ds(f"ds_write_b128 v13, v[124:127] offset:{3 * 4160 + 1024 * z}")

            items += [even, odd]
        return items

    def b_kvpoll_txt(self):
        return f"buffer_load_dword v22, v21, {srd(sWS)}, 0 offen sc1"

    def b_kvpoll_issue(self, s):
        s.e(f"""s_lshl_b32 s{sA}, s{sSLOT}, 7
            s_add_u32 s{sA}, s{sA}, {FKV}
            v_and_b32 v21, 31, v0
            v_lshlrev_b32 v21, 2, v21
            v_add_u32 v21, s{sA}, v21""")
        return s.vmem(self.b_kvpoll_txt())

    def b_kvt_dma(self, s, ptok):
        self.poll(s, ptok, [self.b_kvpoll_txt()], [22])
        s.e(f"""s_lshl_b32 s{sA}, s2, 13
            s_lshl_b32 s{sB_}, s{sW}, 11
            s_add_u32 s{sA}, s{sA}, s{sB_}
            s_add_u32 s{sA}, s{sA}, {KVT}
            s_lshr_b32 s{sC}, s{sW}, 1
            s_lshl_b32 s{sC}, s{sC}, 9
            s_add_u32 s{sB_}, s{sB_}, s{sC}
            s_add_u32 m0, s{sB_}, {KVB}""")
        for z in range(2):
            t = s.vmem(f"buffer_load_dwordx4 v5, {srd(sWS)}, s{sA} offen offset:{1024 * z} sc1 lds")
        return t

    def b_epi_items(self, s, g, rtok, state):
        CS, P = self.B_CS, self.B_P
        AG = self.B_AI[g & 1]
        AU = AG + 8
        M, CA, CB, SD2 = (self.B_CON + k for k in range(4))
        OUT = self.B_OUT + 4 * (g & 1)
        stp = self.B_STP + g
        c0 = -2.0 * LOG2E * 0.7978845608028654
        R = range(8)
        each = lambda f: (lambda: [s.e(f(k)) for k in R])

        def consts():
            s.e(f"""v_and_b32 v{SD2}, 0xffff0000, v{stp}
                v_rcp_f32 v{CA}, v{SD2}
                v_lshlrev_b32 v{M}, 16, v{stp}
                v_mul_f32 v{SD2}, v{SD2}, v{SD2}
                v_mul_f32 v{CB}, v{CA}, v{CA}
                v_mul_f32 v{CA}, {fhex(c0)}, v{CA}
                v_mul_f32 v{CB}, {fhex(0.044715)}, v{CB}
                v_mul_f32 v{CB}, v{CB}, v{CA}""")
            s.wait(lg=rtok)

        def out():
            for x in range(4):
                s.e(f"v_cvt_pk_bf16_f32 v{OUT + x}, v{AU + 2 * x}, v{AU + 2 * x + 1}")
            self.row_of_group(s, sA, g)
            s.e(f"""s_mul_i32 s{sA}, s{sA}, 3584
                s_lshl_b32 s{sB_}, s{sJ}, 12
                s_add_u32 s{sA}, s{sA}, s{sB_}
                s_add_u32 s{sA}, s{sA}, s{sW1K}
                s_add_u32 s{sA}, s{sA}, {HB}""")
            state["h", g] = s.vmem(f"buffer_store_dwordx4 {vr(OUT, 4)}, v5, {srd(sWS)}, s{sA} offen sc1")

        return [
            consts,
            each(lambda k: f"v_fma_f32 v{AG + k}, -v{M}, v{CS + k}, v{AG + k}"),
            each(lambda k: f"v_mul_f32 v{P + k}, v{AG + k}, v{AG + k}"),
            each(lambda k: f"v_fma_f32 v{P + k}, v{P + k}, v{CB}, v{CA}"),
            each(lambda k: f"v_mul_f32 v{P + k}, v{P + k}, v{AG + k}"),
            each(lambda k: f"v_exp_f32 v{P + k}, v{P + k}"),
            each(lambda k: f"v_fma_f32 v{AU + k}, -v{M}, v{CS + 8 + k}, v{AU + k}"),
            each(lambda k: f"v_fma_f32 v{P + k}, v{P + k}, v{SD2}, v{SD2}"),
            each(lambda k: f"v_rcp_f32 v{P + k}, v{P + k}"),
            each(lambda k: f"v_mul_f32 v{AU + k}, v{AU + k}, v{AG + k}"),
            each(lambda k: f"v_mul_f32 v{AU + k}, v{AU + k}, v{P + k}"),
            out,
        ]

    def b_h_flag(self, s, g, state):
        s.wait(vm=state["h", g])
        self.row_of_group(s, sA, g & ~1)
        s.e(f"""s_mul_i32 s{sA}, s{sA}, 56
            s_lshl_b32 s{sB_}, s{sJ}, 7
            s_add_u32 s{sA}, s{sA}, s{sB_}
            s_lshl_b32 s{sB_}, s{sW}, 2
            s_add_u32 s{sA}, s{sA}, s{sB_}
            s_add_u32 s{sA}, s{sA}, {FH + 16 * (g & 1)}""")
        self.flag(s, 11, 12, f"s{sA}")

    def stream_GB(self):
        s = Stream("GB")
        o = self.o
        s.e("L_GB:")
        self.b_common_addrs(s)
        s.e(f"""v_bfe_u32 v15, v0, 4, 1
            v_lshlrev_b32 v15, 1, v15
            v_xor_b32 v15, v15, v14
            v_mul_u32_u24 v1, 3584, v13
            v_lshl_add_u32 v1, v15, 4, v1
            v_xor_b32 v2, 64, v1
            s_lshl_b32 s{sA}, s{sW}, 2
            v_lshrrev_b32 v15, 1, v13
            v_add_u32 v15, s{sA}, v15
            v_and_b32 v15, 7, v15
            v_xor_b32 v15, v15, v14
            v_lshlrev_b32 v3, 10, v13
            v_lshl_add_u32 v3, v15, 4, v3
            s_lshl_b32 s{sA}, s{sROT}, 3
            v_add_u32 v4, s{sA}, v0
            v_and_b32 v4, 63, v4
            v_lshlrev_b32 v4, 4, v4
            v_add_u32 v7, s{sW4K}, v5
            v_add_u32 v7, {ACC0}, v7
            s_mul_i32 s{sG}, s{sW}, 57344
            s_lshl_b32 s{sA}, s{sJ}, 7
            s_add_u32 s{sG}, s{sG}, s{sA}""")
        self.row_of_group(s, sF, 0)
        s.e(f"s_lshl_b32 s{sF}, s{sF}, 10\ns_add_u32 s{sF}, s{sF}, s{sW8K}")
        self.late_scalars(s)
        cs = lambda c: X0 + (c % 3) * CH

        def chunk(c):
            s.e(f"""s_add_u32 s{sA}, s{sROT}, {c}
                s_and_b32 s{sA}, s{sA}, 7
                s_mul_i32 s{sB_}, s{sA}, 229376
                s_add_u32 s{sB_}, s{sB_}, s{sG}
                s_lshl_b32 s{sA}, s{sA}, 7
                s_add_u32 s{sA}, s{sA}, s{sF}""")
            for e in range(2):
                for mat in range(2):
                    s.e(f"s_add_u32 m0, s{sW4K}, {cs(c) + mat * 2048 + e * 1024}")
                    s.vmem(f"buffer_load_dwordx4 v{1 + mat}, {srd(sWU if mat else sWG)}, s{sB_} offen lds")
                if e == 0:
                    s.e(f"s_add_u32 s{sB_}, s{sB_}, 28672")
            for g in range(G):
                s.e(f"s_add_u32 m0, s{sW1K}, {cs(c) + 16384 + g * 4096}")
                t = s.vmem(f"buffer_load_dwordx4 v3, {srd(sX)}, s{sA} offen lds")
                if g + 1 < G:
                    s.e(f"s_add_u32 s{sA}, s{sA}, 32768")
            return t

        def xrows(g):
            self.row_of_group(s, sA, g)
            s.e(f"s_lshl_b32 s{sA}, s{sA}, 10\ns_add_u32 s{sA}, s{sA}, s{sW8K}")
            for r in range(8):
                if r == 4:
                    s.e(f"s_add_u32 s{sA}, s{sA}, 4096")
                s.e(f"s_add_u32 m0, s{sW8320}, {XSLOT[g] + r * 1040 - (r & 3) * 1024}")
                t = s.vmem(f"buffer_load_dwordx4 v4, {srd(sX)}, s{sA} offen offset:{(r & 3) * 1024} lds")
            return t

        def accr(dst, src):
            for i in range(4):
                t = s.ds(f"ds_read_b128 {vr(dst + 4 * i, 4)}, v7 offset:{src - ACC0 + 1024 * i}")
            return t

        state = {}
        Q = deque()

        def run(budget):
            c0 = s.cost
            while Q and s.cost - c0 < budget:
                Q.popleft()()

        def drain_until(key):
            while key not in state:
                Q.popleft()()

        ct = {0: chunk(0)}
        stok = self.b_stats_load(s)
        ct[1] = chunk(1)
        ct[2] = chunk(2)
        kva = o["kv_after"]
        kvt = self.b_kv_dma(s) if kva == 2 else None
        s.wait(vm=ct[0])
        s.barrier("b0")
        self.stamp(s, "b0")
        self.b_stats(s, stok)
        xt = {}
        gran_txt = []
        for c in range(1, 8):
            s.wait(vm=ct[c])
            if c == kva + 2:
                s.wait(lg=kvr)
            s.barrier(f"b{c}")
            if c + 2 < 8:
                ct[c + 2] = chunk(c + 2)
                if c + 2 == kva:
                    kvt = self.b_kv_dma(s)
            if c == kva + 1:
                kvr = self.b_kv_reads(s)
                Q.extend(self.b_kv_items(s, kvr, state))
            if c == 5:
                xt[2] = xrows(2)
            if c == 6:
                s.e("v_lshlrev_b32 v21, 3, v0")
                for q in range(4):
                    self.row_of_group(s, sBLK + q, 2 * q)
                    s.e(f"s_lshl_b32 s{sBLK + q}, s{sBLK + q}, 3\ns_add_u32 s{sBLK + q}, s{sBLK + q}, {STATS}")
                    gran_txt.append(f"buffer_load_dwordx2 v[{104 + 2 * q}:{105 + 2 * q}], v21, {srd(sWS)}, "
                                    f"s{sBLK + q} offen sc1")
                    gtok = s.vmem(gran_txt[-1])
            if c == max(6, kva + 2):
                xt[3] = xrows(3)
            run(260)
        s.wait(vm=xt[2])
        s.barrier("b8")
        self.stamp(s, "b8")
        run(10000)
        self.poll(s, gtok, gran_txt, [104, 106, 108, 110])
        for q in range(4):
            a = self.B_STP + 2 * q
            s.e(f"v_mov_b32 v{a}, v{105 + 2 * q}\nv_mov_b32 v{a + 1}, v{105 + 2 * q}")
        for q in range(4):
            a = self.B_STP + 2 * q
            s.e(f"v_permlane32_swap_b32 v{a}, v{a + 1}")
        self.stamp(s, "stats")
        self.b_kv_flag(s, state)

        hb_tok, hb_rd = {}, {}
        plan = {("a", 3): ([], [0, 1]), ("a", 4): ([0], [2]), ("b", 5): ([1], [3]), ("a", 5): ([2], [4]),
                ("b", 6): ([3], [5]), ("a", 6): ([4], [6]), ("b", 7): ([5], [7]), ("a", 7): ([6], []),
                ("b", 8): ([7], [])}
        flagged = set()

        def flags(upto):
            for g in range(upto + 1):
                if ("h", g) in state and g not in flagged:
                    self.b_h_flag(s, g, state)
                    flagged.add(g)

        def staging(key, budget):
            cons, iss = plan.get(key, ([], []))
            c0 = s.cost
            rd = None
            for hb in cons:
                rd = self.b_hb_consume(s, hb, hb_tok[hb])
            if rd and iss:
                run(60)
            s.wait(lg=rd)
            for hb in iss:
                hb_tok[hb] = self.b_hb_issue(s, hb)
            run(budget - (s.cost - c0))

        for g in range(G, 9):
            s.barrier(f"alpha{g}")
            if g in (2, 8):
                self.stamp(s, f"al{g}")
            c0 = s.cost
            if g > G:
                drain_until(("h", g - 3))
            if g == G:
                accr(self.B_CS, ST2)
                rt = accr(self.B_AI[0], ACC0)
                Q.extend(self.b_epi_items(s, 0, rt, state))
            else:
                rt = accr(self.B_AI[(g - 1) & 1], ACC0)
                Q.extend(self.b_epi_items(s, g - 1, rt, state))
            if g == 8:
                break
            if g + 2 <= 7:
                xt[g + 2] = xrows(g + 2)
            if g == G:
                self.b_late_setup(s)
            if g == 6:
                Q.extend(self.b_copy_items(s, ssm_tok, state))
                kvp = self.b_kvpoll_issue(s)
            staging(("a", g), o["bud_a"] - (s.cost - c0))
            flags(g - 3)
            if g == 7:
                run(10000)
                s.wait(vm=kvt_tok, lg=state["cp"])
            else:
                s.wait(vm=xt[g + 1])
            s.wait(lg=rt)
            s.barrier(f"beta{g + 1}")
            c0 = s.cost
            if g == G:
                rt = accr(self.B_AI[1], ST1)
                Q.extend(self.b_epi_items(s, 1, rt, state))
            if g == 5:
                ssm_tok = self.b_ssm_load(s)
            if g == 6:
                kvt_tok = self.b_kvt_dma(s, kvp)
            if g == 7:
                hp0 = s.vmem(f"buffer_load_dword v22, v20, {srd(sWS)}, 0 offen sc1")
            staging(("b", g + 1), o["bud_b"] - (s.cost - c0))
            flags(g - 2)
            s.wait(lg=s.lg)
        flags(6)
        run(10000)
        self.stamp(s, "epi7")
        self.b_post(s, hp0, lambda: flags(7))
        return s

    def stream_PB(self):
        s = Stream("PB")
        s.e("L_PB:")
        self.b_common_addrs(s)
        self.late_scalars(s)
        state = {}
        stok = self.b_stats_load(s)
        kvt = self.b_kv_dma(s)
        self.b_stats(s, stok)
        s.wait(vm=kvt)
        s.barrier("p1")
        kvr = self.b_kv_reads(s)
        s.wait(lg=kvr)
        s.barrier("p2")
        for f in self.b_kv_items(s, kvr, state):
            f()
        self.b_late_setup(s)
        ssm_tok = self.b_ssm_load(s)
        hb_tok = {0: self.b_hb_issue(s, 0), 1: self.b_hb_issue(s, 1)}
        self.b_kv_flag(s, state)
        for f in self.b_copy_items(s, ssm_tok, state):
            f()
        for hb in range(8):
            s.wait(lg=self.b_hb_consume(s, hb, hb_tok[hb]))
            if hb + 2 < 8:
                hb_tok[hb + 2] = self.b_hb_issue(s, hb + 2)
        kvt_tok = self.b_kvt_dma(s, self.b_kvpoll_issue(s))
        s.wait(vm=kvt_tok, lg=s.lg)
        s.barrier("beta8")
        self.stamp(s, "beta8")
        hp0 = s.vmem(f"buffer_load_dword v22, v20, {srd(sWS)}, 0 offen sc1")
        s.barrier("alpha8")
        self.b_post(s, hp0, lambda: None)
        return s

    def b_post(self, s, hp0, last_flag):
        o = self.o
        if o["upto"] == "conv":
            last_flag()
            self.finish(s)
            return
        WD, ACC = self.B_WD, (64, 96)
        NS = 10
        slot = lambda n: 24 + 4 * (n % NS)
        poll_txt = lambda th: f"buffer_load_dword v22, v20, {srd(sWS)}, 0 offen offset:{16 * th} sc1"
        s.e(f"s_mul_i32 s{sF}, s{sP2}, {2 * 114688}\ns_add_u32 s{sF}, s{sF}, {HB}")
        ht = {}

        def hload(n):
            th, r = divmod(n, 16)
            b, ks = divmod(r, 4)
            if ks == 0:
                self.h_soff(s, b, th)
            ht[n] = s.vmem(f"buffer_load_dwordx4 {vr(slot(n), 4)}, v5, {srd(sWS)}, s{sC} offen "
                           f"offset:{1024 * ks} sc1")

        self.poll(s, hp0, [poll_txt(0)], [22])
        self.stamp(s, "hp0")
        for n in range(5):
            hload(n)
        p1 = s.vmem(poll_txt(1))
        for n in range(5, NS):
            hload(n)
        pa = self.partial_addrs(s, 1, 13)
        ypoll = f"buffer_load_dword v23, v21, {srd(sWS)}, 0 offen sc1"
        s.e(f"""s_lshr_b32 s{sA}, s{sP2}, 2
            s_lshr_b32 s{sB_}, s{sP2}, 3
            s_xor_b32 s{sA}, s{sA}, s{sB_}
            s_and_b32 s{sA}, s{sA}, 1
            s_lshl_b32 s{sA}, s{sA}, 11
            s_lshl_b32 s{sB_}, s{sDB}, 8
            s_add_u32 s{sA}, s{sA}, s{sB_}
            s_add_u32 s{sA}, s{sA}, {FY}
            v_lshlrev_b32 v21, 2, v0
            v_add_u32 v21, s{sA}, v21""")
        for n in range(32):
            th, r = divmod(n, 16)
            s.wait(vm=ht[n])
            if n == 0:
                last_flag()
            for dt in range(2):
                a = ACC[th] + 16 * dt
                s.e(f"{MFMA32} {vr(a, 16)}, {vr(WD + 8 * r + 4 * dt, 4)}, {vr(slot(n), 4)}, {vr(a, 16) if r else 0}")
            if n + NS == 16:
                self.poll(s, p1, [poll_txt(1)], [22])
            if n + NS < 32:
                hload(n + NS)
        self.stamp(s, "g2b")
        XR, SR, XU, XM, YF, F0, F1, RB = (24, 28), (32, 33), (128, 136), (144, 152), (160, 168), 176, 184, 192
        s.e(f"""s_lshl_b32 s{sG}, s{sP2}, 16
            s_add_u32 s{sG}, s{sG}, s{sW8K}
            s_lshl_b32 s{sA}, s{sDB}, 7
            s_add_u32 s{sG}, s{sG}, s{sA}
            s_add_u32 s{sF}, s{sG}, 32768
            s_lshl_b32 s{sA}, s{sP2}, 9
            s_lshl_b32 s{sB_}, s{sW}, 6
            s_add_u32 s{sA}, s{sA}, s{sB_}
            s_add_u32 s{sA}, s{sA}, {STATS + 4}
            v_lshrrev_b32 v13, 3, v0
            v_lshlrev_b32 v14, 3, v13""")
        s.vmem(f"buffer_load_dwordx4 {vr(XR[0], 4)}, v6, {srd(sX)}, s{sG} offen")
        s.vmem(f"buffer_load_dwordx4 {vr(XR[1], 4)}, v6, {srd(sX)}, s{sF} offen")
        s.vmem(f"buffer_load_dword v{SR[0]}, v14, {srd(sWS)}, s{sA} offen sc1")
        xtok = s.vmem(f"buffer_load_dword v{SR[1]}, v14, {srd(sWS)}, s{sA} offen offset:256 sc1")
        yp = s.vmem(ypoll)
        spin, free = s.label("cfl"), s.label("cflok")
        s.e(f"v_mov_b32 v15, {CFL}\ns_mov_b32 s{sCNT}, 0\n{spin}:\nds_read_b128 v[16:19], v15\ns_waitcnt lgkmcnt(0)")
        s.lg_done = s.lg
        s.e(f"""v_and_b32 v16, v16, v17
            v_and_b32 v18, v18, v19
            v_and_b32 v16, v16, v18
            v_cmp_ne_u32 vcc, 1, v16
            s_add_u32 s{sCNT}, s{sCNT}, 1
            s_cmp_gt_u32 s{sCNT}, {64 * o['poll_limit']}
            s_cbranch_scc1 {free}
            s_cbranch_vccnz {spin}
            {free}:""")
        for q in range(8):
            wtok = self.partial_write(s, pa, ACC[0], X1, q >> 2, q & 3)
        s.e(f"""v_and_b32 v14, 7, v0
            v_lshlrev_b32 v15, 1, v14
            v_xor_b32 v15, v15, v13
            s_lshl_b32 s{sA}, s{sW}, 11
            v_lshlrev_b32 v16, 8, v13
            v_add_u32 v16, s{sA}, v16
            v_lshl_add_u32 v7, v15, 4, v16
            v_xor_b32 v8, 16, v7
            v_lshrrev_b32 v15, 1, v14
            v_lshlrev_b32 v9, 12, v15
            v_and_b32 v15, 1, v14
            v_lshl_add_u32 v9, v15, 10, v9
            v_lshl_add_u32 v9, v14, 4, v9
            v_lshl_add_u32 v9, v13, 1, v9
            s_lshl_b32 s{sA}, s{sW}, 4
            s_add_u32 s{sA}, s{sA}, {ACC0}
            v_add_u32 v9, s{sA}, v9
            v_lshlrev_b32 v10, 4, v14
            v_lshl_add_u32 v10, v13, 12, v10""")
        ra = [Addr(s, 7, 0), Addr(s, 8, 0)]
        s.wait(vm=xtok)
        for th in range(2):
            for k in range(4):
                s.e(f"v_lshlrev_b32 v{XU[th] + 2 * k}, 16, v{XR[th] + k}")
                s.e(f"v_and_b32 v{XU[th] + 2 * k + 1}, 0xffff0000, v{XR[th] + k}")
            s.e(f"v_lshlrev_b32 v15, 16, v{SR[th]}\nv_and_b32 v{SR[th]}, 0xffff0000, v{SR[th]}")
            for k in range(8):
                s.e(f"v_sub_f32 v{XM[th] + k}, v{XU[th] + k}, v15")
            for k in range(8):
                s.e(f"v_mov_b32 v{YF[th] + k}, 0")
        s.wait(lg=wtok)
        s.barrier("Z1")
        self.stamp(s, "Z1")

        def preads(region, dst):
            toks = []
            for w in range(4):
                for e in range(2):
                    r, off = ra[e].off(region + 8192 * w, region)
                    t = s.ds(f"ds_read_b128 {vr(dst + 8 * w + 4 * e, 4)}, {r} offset:{off}")
                toks.append(t)
            return toks

        def psum(F, src, toks, init):
            for w in range(4):
                s.wait(lg=toks[w])
                if init and w == 0:
                    continue
                a = src if init and w == 1 else F
                for k in range(8):
                    s.e(f"v_add_f32 v{F + k}, v{a + k}, v{src + 8 * w + k}")

        def gate(F, th, T):
            for k in range(8):
                s.e(f"v_mul_f32 v{T + k}, {fhex(-LOG2E)}, v{F + k}")
            for k in range(8):
                s.e(f"v_exp_f32 v{T + k}, v{T + k}")
            for k in range(8):
                s.e(f"v_mul_f32 v{F + k}, v{F + k}, v{XM[th] + k}")
            for k in range(8):
                s.e(f"v_fma_f32 v{T + k}, v{T + k}, v{SR[th]}, v{SR[th]}")
            for k in range(8):
                s.e(f"v_rcp_f32 v{T + k}, v{T + k}")

        def store(F, th):
            R = 36 + 4 * th
            for x in range(4):
                s.e(f"v_cvt_pk_bf16_f32 v{R + x}, v{F + 2 * x}, v{F + 2 * x + 1}")
            s.vmem(f"buffer_store_dwordx4 {vr(R, 4)}, v6, {srd(sOUT)}, s{sF if th else sG} offen")

        t1 = preads(X1, RB)
        psum(F0, RB, t1[:2] + [t1[2], t1[3]], True)
        t2 = preads(RA[0], RB + 32)
        self.poll(s, yp, [ypoll], [23])
        self.stamp(s, "yp")
        s.e(f"""s_lshl_b32 s{sA}, s{sDB}, 18
            s_lshl_b32 s{sB_}, s{sW}, 16
            s_add_u32 s{sA}, s{sA}, s{sB_}
            s_lshl_b32 s{sB_}, s{sP2}, 7
            s_add_u32 s{sA}, s{sA}, s{sB_}
            s_add_u32 s{sA}, s{sA}, {YB}
            s_lshl_b32 s{sB_}, s{sW}, 5
            s_add_u32 s{sB_}, s{sB_}, s{sW4K}""")
        for z in range(2):
            s.e(f"s_add_u32 m0, s{sB_}, {ACC0 + 1040 * z}")
            ytok = s.vmem(f"buffer_load_dwordx4 v10, {srd(sWS)}, s{sA} offen sc1 lds")
            if z == 0:
                s.e(f"s_add_u32 s{sA}, s{sA}, 32768")
        psum(F0, RB + 32, t2, False)
        for q in range(8):
            wtok = self.partial_write(s, pa, ACC[1], RA[2], q >> 2, q & 3)
        gate(F0, 0, RB)
        for k in range(8):
            s.e(f"v_mul_f32 v{F0 + k}, v{F0 + k}, v{RB + k}")
        s.wait(vm=ytok, lg=wtok)
        s.barrier("Z1b")
        self.stamp(s, "Z1b")
        yt = []
        for th in range(2):
            for k in range(8):
                t = s.ds(f"ds_read_u16_d16_hi v{YF[th] + k}, v9 offset:{128 * k + 64 * th}")
                if th == 1 and k == 3:
                    s.wait(lg=yt[0])
            yt.append(t)
        t3 = preads(RA[2], RB)
        for k in range(8):
            s.e(f"v_fma_f32 v{F0 + k}, v{F0 + k}, v{YF[0] + k}, v{XU[0] + k}")
        store(F0, 0)
        s.wait(lg=yt[1])
        for k in range(8):
            s.e(f"v_mul_f32 v{XM[1] + k}, v{XM[1] + k}, v{YF[1] + k}")
        psum(F1, RB, t3, True)
        s.barrier("Z2")
        self.stamp(s, "Z2")
        t4 = preads(RA[1], RB + 32)
        psum(F1, RB + 32, t4, False)
        gate(F1, 1, RB)
        for k in range(8):
            s.e(f"v_fma_f32 v{F1 + k}, v{F1 + k}, v{RB + k}, v{XU[1] + k}")
        store(F1, 1)
        self.finish(s)

    def policy(self, line):
        if not line.startswith("buffer_load"):
            return line
        for key, regs in (("x", (sX,)), ("w", (sWG, sWU)), ("d", (sWD,)), ("k", (sK, sV, sSH, sSK))):
            if key in self.o["nt"] and any(srd(r) in line for r in regs):
                return line[:-4] + " nt lds" if line.endswith(" lds") else line + " nt"
        return line

    def build(self):
        streams = [self.entry(), self.stream_GB(), self.stream_GA(), self.stream_PB(), self.stream_PA()]
        by = {s.name: s for s in streams}
        assert by["GA"].nbar == by["GB"].nbar, (by["GA"].nbar, by["GB"].nbar)
        assert by["PA"].nbar == by["PB"].nbar, (by["PA"].nbar, by["PB"].nbar)
        body = []
        self.info = {}
        for s in streams:
            lines, added = fix_hazards([self.policy(l) for l in s.L])
            self.info[s.name] = (len(lines), added, s.nbar)
            body += lines
        ref = open(f"cdna_kernels/{NAME}.s.ref").read().split("\n")
        head = [l for l in ref if l.startswith(";") and "@launch" not in l]
        out = head + [f"; @launch grid=(256,1,1) block=(512,1,1) lds={LDS_BYTES}",
                      '.amdgcn_target "amdgcn-amd-amdhsa--gfx950"', ".text", f".globl {NAME}_kernel", ".p2align 8",
                      f".type {NAME}_kernel,@function", f"{NAME}_kernel:"]
        out += [l if l.endswith(":") else "    " + l for l in body]
        out += ["L_code_end:", '.section .rodata,"a"', ".p2align 6", f".amdhsa_kernel {NAME}_kernel",
                "  .amdhsa_next_free_vgpr 256", "  .amdhsa_next_free_sgpr 102", "  .amdhsa_accum_offset 256",
                "  .amdhsa_group_segment_fixed_size 0", "  .amdhsa_kernarg_size 104", "  .amdhsa_user_sgpr_count 2",
                "  .amdhsa_user_sgpr_kernarg_segment_ptr 1", "  .amdhsa_system_sgpr_workgroup_id_x 1",
                "  .amdhsa_float_denorm_mode_32 3", ".end_amdhsa_kernel", ""]
        return "\n".join(out)


def parse_opts(args):
    kw = {}
    for a in args:
        k, v = a.split("=")
        kw[k] = int(v) if v.lstrip("-").isdigit() else v
    return kw


if __name__ == "__main__":
    path = sys.argv[1]
    g = Gen(**parse_opts(sys.argv[2:]))
    open(path, "w").write(g.build())
    print(g.info)
```

```python
import struct
import sys
from collections import deque

from asmlib import Addr, Stream, fix_hazards, vr

NAME = "recurrent_scan__ssm_conv_h3__glu_gated_geglu__prompt"

DEFAULTS = dict(stamp=0, kv_after=2, pf=4, upto="all", bud_a=500, bud_b=330, conv_lead=7, poll_limit=40000,
                nt="", diag="")

EPOCH, STATS, FKV, FY, FH, STAMPS = 0x0, 0x1000, 0x5000, 0x6000, 0x8000, 0x30000
KVT, YB, HB, WS_END = 0x100000, 0x300000, 0x500000, 0xC00000
TAG_STEP = 0x9E3779B1

X1, X2, X0 = 0, 33280, 66560
ACC0, ST1, ST2, SPARE = 99840, 116224, 132608, 148992
KVB, CFL = SPARE, SPARE + 9216
LDS_BYTES = 163840
G = 2
CH = 16384 + 4096 * G
XSLOT = {2: X1, 3: X2, 4: X0, 5: X1, 6: X2, 7: X0}
RA = (X2, ST1, X0)

sX, sWS, sWD, sOUT, sWG, sWU, sK, sV, sSH, sSK = 4, 8, 12, 16, 20, 24, 28, 32, 36, 40
sDP, sD, sT, sW, sW8 = 44, 46, 47, 48, 49
sXCD, sSLOT, sI, sJ, sROT, sP2, sDB, sBLK = 50, 51, 52, 53, 54, 55, 56, 57
sW1K, sW4K, sW8K, sW8320 = 61, 62, 63, 64
sA, sB_, sC, sE, sF, sCNT, sG = 65, 66, 67, 68, 69, 70, 71
sSTAMP = 72
NSTAMP = 15

srd = lambda n: f"s[{n}:{n + 3}]"
fhex = lambda x: "0x%08x" % struct.unpack("<I", struct.pack("<f", x))[0]
LOG2E = 1.4426950408889634
MFMA32 = "v_mfma_f32_32x32x16_bf16"
MFMA16 = "v_mfma_f32_16x16x32_bf16"


class Gen:
    def __init__(self, **kw):
        self.o = dict(DEFAULTS, **kw)
        self.stamp_names = {}

    def stamp(self, s, name):
        if not self.o["stamp"]:
            return
        names = self.stamp_names.setdefault(s.name, [])
        if len(names) >= NSTAMP - 2:
            return
        names.append(name)
        r = sSTAMP + 2 + 2 * len(names)
        s.e(f"s_memtime s[{r}:{r + 1}]")

    def finish(self, s):
        if self.o["stamp"]:
            s.e("s_waitcnt vmcnt(0)")
            self.stamp(s, "end")
            self.diag(s)
            s.e(f"""s_waitcnt lgkmcnt(0)
                s_lshl_b32 s{sA}, s2, 9
                s_lshl_b32 s{sB_}, s{sW8}, 6
                s_add_u32 s{sA}, s{sA}, s{sB_}
                s_add_u32 s{sA}, s{sA}, {STAMPS}
                v_mov_b32 v1, 0""")
            for k in range(2 + len(self.stamp_names[s.name])):
                s.e(f"v_mov_b32 v2, s{sSTAMP + 2 * k}")
                s.e(f"buffer_store_dword v2, v1, {srd(sWS)}, s{sA} offen offset:{4 * k}")
        s.e("s_endpgm")

    def diag(self, s):
        if not self.o["diag"]:
            return
        stream, name, wg, mult = self.o["diag"].split(":")
        if stream != s.name:
            return
        loop, skip = s.label("diag"), s.label("nodiag")
        names = self.stamp_names[s.name]
        e = sSTAMP + 2 + 2 * len(names)
        s.e(f"s_waitcnt lgkmcnt(0)\ns_cmp_lg_u32 s2, {wg}\ns_cbranch_scc1 {skip}")
        if name == "fixed":
            s.e(f"s_mov_b32 s{sA}, {mult}")
        elif name.startswith("probe"):
            slot, off = (int(x) for x in name.split("_")[1:])
            pre = s.label("pre")
            s.e(f"""s_load_dwordx2 s[{sDP}:{sDP + 1}], s[0:1], {8 * slot}
                {pre}:
                s_memtime s[{sE}:{sE + 1}]
                s_waitcnt lgkmcnt(0)
                s_sub_u32 s{sB_}, s{sE}, s{e}
                s_cmp_lt_u32 s{sB_}, 10000
                s_cbranch_scc1 {pre}
                s_lshl_b32 s{sA}, s{sW}, 18
                s_add_u32 s{sA}, s{sA}, {off}
                v_mov_b32 v1, s{sA}
                global_load_dword v2, v1, s[{sDP}:{sDP + 1}]
                s_waitcnt vmcnt(0)
                s_memtime s[{sBLK + 1}:{sBLK + 2}]""")
            for z in range(16):
                s.e(f"v_add_u32 v1, 8320, v1\nglobal_load_dword v2, v1, s[{sDP}:{sDP + 1}]\ns_waitcnt vmcnt(0)")
            s.e(f"""s_memtime s[{sE}:{sE + 1}]
                s_waitcnt lgkmcnt(0)
                s_mov_b32 s{sA}, 0""")
        else:
            r = sSTAMP + 2 + 2 * (names.index(name) + 1)
            s.e(f"s_sub_u32 s{sA}, s{r}, s{sSTAMP + 2}\ns_mul_i32 s{sA}, s{sA}, {mult}")
        s.e(f"""s_min_u32 s{sA}, s{sA}, 2000000
            {loop}:
            s_memtime s[{sE}:{sE + 1}]
            s_waitcnt lgkmcnt(0)
            s_sub_u32 s{sB_}, s{sE}, s{e}
            s_cmp_lt_u32 s{sB_}, s{sA}
            s_cbranch_scc1 {loop}
            {skip}:""")

    def poll(self, s, tok, issue, regs):
        def check():
            s.e(f"v_cmp_ne_u32 vcc, s{sT}, v{regs[0]}")
            for r in regs[1:]:
                s.e(f"v_cmp_ne_u32 s[{sE}:{sE + 1}], s{sT}, v{r}")
                s.e(f"s_or_b64 vcc, vcc, s[{sE}:{sE + 1}]")
        ok, again = s.label("ok"), s.label("poll")
        s.wait(vm=tok)
        check()
        s.e(f"s_cbranch_vccz {ok}")
        s.e(f"s_mov_b32 s{sCNT}, 0")
        s.e(f"{again}:")
        for t in issue:
            s.e(t)
        s.e("s_waitcnt vmcnt(0)")
        check()
        s.e(f"""s_add_u32 s{sCNT}, s{sCNT}, 1
            s_cmp_gt_u32 s{sCNT}, {self.o['poll_limit']}
            s_cbranch_scc1 {ok}
            s_cbranch_vccnz {again}
            {ok}:""")

    def flag(self, s, vT, vZ, soff):
        s.e("s_mov_b64 exec, 1")
        t = s.vmem(f"buffer_store_dword v{vT}, v{vZ}, {srd(sWS)}, {soff} offen sc1")
        s.e("s_mov_b64 exec, -1")
        return t

    def tag_ready(self, s):
        s.wait_all_lg()
        s.e(f"s_add_u32 s{sT}, s{sT}, {TAG_STEP:#x}")

    def row_of_group(self, s, dst, g):
        s.e(f"""s_add_u32 s{dst}, s{sJ}, {g >> 1}
            s_and_b32 s{dst}, s{dst}, 3
            s_lshl_b32 s{dst}, s{dst}, 6
            s_add_u32 s{dst}, s{dst}, s{sI}""")
        if g & 1:
            s.e(f"s_add_u32 s{dst}, s{dst}, 32")

    def block_ids(self, s, first, count):
        for b in range(count):
            d = sBLK + b
            s.e(f"""s_add_u32 s{sA}, s{sW}, {first + 4 * b}
                s_mul_i32 s{sB_}, s{sA}, 37
                s_lshr_b32 s{sB_}, s{sB_}, 8
                s_mul_i32 s{sC}, s{sB_}, 7
                s_sub_u32 s{sA}, s{sA}, s{sC}
                s_add_u32 s{sA}, s{sA}, s{sDB}
                s_sub_u32 s{sC}, s{sA}, 7
                s_cmp_ge_u32 s{sA}, 7
                s_cselect_b32 s{sA}, s{sC}, s{sA}
                s_sub_u32 s{sB_}, s{sP2}, s{sB_}
                s_and_b32 s{sB_}, s{sB_}, 3
                s_lshl_b32 s{sA}, s{sA}, 2
                s_add_u32 s{d}, s{sA}, s{sB_}""")
        for b in range(count, 4):
            s.e(f"s_mov_b32 s{sBLK + b}, s{sBLK + count - 1}")

    def hflag_addr(self, s, v, t):
        s.e(f"""v_bfe_u32 v{t}, v0, 2, 2
            v_mov_b32 v{v}, s{sBLK}""")
        for b in range(1, 4):
            s.e(f"""v_mov_b32 v{t + 1}, s{sBLK + b}
                v_cmp_eq_u32 vcc, {b}, v{t}
                v_cndmask_b32 v{v}, v{v}, v{t + 1}, vcc""")
        s.e(f"""s_mul_i32 s{sA}, s{sP2}, {28 * 128}
            s_add_u32 s{sA}, s{sA}, {FH}
            v_and_b32 v{t}, 3, v0
            v_lshlrev_b32 v{t}, 2, v{t}
            v_lshl_add_u32 v{v}, v{v}, 7, v{t}
            v_add_u32 v{v}, s{sA}, v{v}""")

    def wd_lane_addrs(self, s, vD, vR0, vR1, t, base):
        s.e(f"""v_lshrrev_b32 v{t}, 3, v0
            v_bfe_u32 v{t + 1}, v0, 4, 1
            v_lshlrev_b32 v{t + 1}, 2, v{t + 1}
            v_and_b32 v{vD}, 7, v0
            v_xor_b32 v{vD}, v{vD}, v{t + 1}
            v_lshlrev_b32 v{vD}, 4, v{vD}
            v_lshl_add_u32 v{vD}, v{t}, 10, v{vD}
            v_lshrrev_b32 v{t}, 5, v0
            v_lshlrev_b32 v{vR0}, 10, v{t}
            v_bfe_u32 v{t}, v0, 2, 2
            v_lshl_add_u32 v{vR0}, v{t}, 7, v{vR0}
            v_bfe_u32 v{t}, v0, 3, 1
            v_lshl_add_u32 v{vR0}, v{t}, 6, v{vR0}
            v_bfe_u32 v{t}, v0, 4, 1
            v_lshl_add_u32 v{vR0}, v{t}, 5, v{vR0}
            v_and_b32 v{t}, 3, v0
            v_lshl_add_u32 v{vR0}, v{t}, 3, v{vR0}
            v_xor_b32 v{vR1}, 64, v{vR0}
            s_add_u32 s{sA}, s{sW8K}, {base}
            v_add_u32 v{vR0}, s{sA}, v{vR0}
            v_add_u32 v{vR1}, s{sA}, v{vR1}""")

    def wd_dma(self, s, vD, b, e, lds):
        s.e(f"""s_lshl_b32 s{sA}, s{sBLK + b}, 16
            s_add_u32 s{sA}, s{sA}, s{sG}
            s_add_u32 m0, s{sW8K}, {lds}""")
        if e:
            s.e(f"s_add_u32 s{sA}, s{sA}, {e * 8192}")
        return s.vmem(f"buffer_load_dwordx4 v{vD}, {srd(sWD)}, s{sA} offen lds")

    def partial_addrs(self, s, v, t):
        s.e(f"""v_and_b32 v{t}, 31, v0
            v_lshlrev_b32 v{t}, 8, v{t}
            v_add_u32 v{t}, s{sW8K}, v{t}
            v_lshrrev_b32 v{t + 1}, 5, v0
            v_and_b32 v{t + 2}, 7, v0
            v_xor_b32 v{t + 1}, v{t + 1}, v{t + 2}""")
        for i in range(4):
            s.e(f"""v_xor_b32 v{t + 2}, {2 * i}, v{t + 1}
                v_lshl_add_u32 v{v + i}, v{t + 2}, 4, v{t}""")
        return [Addr(s, v + i, 0) for i in range(4)]

    def partial_write(self, s, pa, acc, region, dt, i):
        r, o = pa[i].off(region + dt * 128, region)
        return s.ds(f"ds_write_b128 {r}, {vr(acc + 16 * dt + 4 * i, 4)} offset:{o}")

    def h_soff(self, s, b, th):
        s.e(f"""s_lshl_b32 s{sA}, s{sBLK + b}, 12
            s_add_u32 s{sC}, s{sA}, s{sF}""")
        if th:
            s.e(f"s_add_u32 s{sC}, s{sC}, 114688")

    def entry(self):
        s = Stream("entry")
        if self.o["stamp"]:
            s.e(f"s_memrealtime s[{sSTAMP}:{sSTAMP + 1}]")
            s.e(f"s_memtime s[{sSTAMP + 2}:{sSTAMP + 3}]")
        s.e("s_cmp_ge_u32 s2, 256\ns_cbranch_scc1 L_exit")
        for reg, slot in ((sWG, 7), (sWU, 8), (sX, 0), (sWS, 12), (sK, 1), (sV, 2), (sSH, 3), (sSK, 4), (sDP, 5),
                          (sWD, 9), (sOUT, 10)):
            s.e(f"s_load_dwordx2 s[{reg}:{reg + 1}], s[0:1], {slot * 8}")
        s.e(f"""v_lshrrev_b32 v1, 6, v0
            v_and_b32 v0, 63, v0
            v_readfirstlane_b32 s{sW8}, v1""")
        for reg, size in ((sX, 2097152), (sWS, WS_END), (sWD, 1835008), (sOUT, 2097152), (sWG, 1835008),
                          (sWU, 1835008), (sK, 2097152), (sV, 2097152), (sSH, 4096), (sSK, 2097152)):
            s.e(f"s_mov_b32 s{reg + 2}, {size}\ns_mov_b32 s{reg + 3}, 0x00020000")
        s.e(f"""s_and_b32 s{sW}, s{sW8}, 3
            s_and_b32 s{sXCD}, s2, 7
            s_lshr_b32 s{sSLOT}, s2, 3
            s_and_b32 s{sA}, s{sXCD}, 1
            s_lshl_b32 s{sA}, s{sA}, 2
            s_lshr_b32 s{sB_}, s{sXCD}, 1
            s_and_b32 s{sC}, s{sSLOT}, 3
            s_lshr_b32 s{sDB}, s{sSLOT}, 2
            s_add_u32 s{sI}, s{sA}, s{sC}
            s_lshl_b32 s{sI}, s{sI}, 8
            s_mul_i32 s{sJ}, s{sB_}, 7
            s_add_u32 s{sJ}, s{sJ}, s{sDB}
            s_lshr_b32 s{sROT}, s{sDB}, 2
            s_lshl_b32 s{sE}, s{sC}, 1
            s_add_u32 s{sROT}, s{sROT}, s{sE}
            s_add_u32 s{sP2}, s{sA}, s{sB_}
            s_lshl_b32 s{sP2}, s{sP2}, 2
            s_add_u32 s{sP2}, s{sP2}, s{sC}
            s_lshl_b32 s{sW1K}, s{sW}, 10
            s_lshl_b32 s{sW4K}, s{sW}, 12
            s_lshl_b32 s{sW8K}, s{sW}, 13
            s_mul_i32 s{sW8320}, s{sW}, 8320
            s_cmp_ge_u32 s{sSLOT}, 28
            s_cbranch_scc1 L_role_p
            s_cmp_ge_u32 s{sW8}, 4
            s_cbranch_scc1 L_GB
            s_branch L_GA
            L_role_p:
            s_cmp_ge_u32 s{sW8}, 4
            s_cbranch_scc1 L_PB
            s_branch L_PA
            L_exit:
            s_endpgm""")
        return s

    def late_scalars(self, s):
        s.e(f"""s_waitcnt lgkmcnt(0)
            s_lshl_b32 s3, s2, 2
            s_load_dword s{sT}, s[{sWS}:{sWS + 1}], {EPOCH}
            s_load_dword s{sD}, s[{sDP}:{sDP + 1}], s3""")

    A_XF, A_ACC, A_ONE, A_W = 16, (48, 64, 80, 96), 112, 128

    def a_post_setup(self, s):
        items = []

        def conv_addr():
            s.e(f"""v_and_b32 v14, 15, v0
                v_sub_u32 v15, 15, v14
                v_and_b32 v15, 3, v15
                v_add_u32 v2, v14, v15
                v_lshlrev_b32 v2, 1, v2
                v_mul_u32_u24 v15, 4160, v15
                v_add_u32 v2, v2, v15""")

        def conv_addr2():
            s.e(f"""v_lshrrev_b32 v15, 4, v0
                v_lshl_add_u32 v2, v15, 4, v2
                s_lshr_b32 s{sA}, s{sW}, 1
                s_mul_i32 s{sB_}, s{sA}, 16640
                s_add_u32 s{sB_}, s{sB_}, {X1 + 2}
                v_add_u32 v2, s{sB_}, v2""")

        def conv_addr3():
            s.e(f"""v_lshlrev_b32 v3, 4, v15
                v_lshlrev_b32 v14, 5, v14
                v_sub_u32 v3, v3, v14
                s_mul_i32 s{sB_}, s{sA}, 4608
                s_add_u32 s{sB_}, s{sB_}, {KVB + 480}
                v_add_u32 v3, s{sB_}, v3""")

        items += [conv_addr, conv_addr2, conv_addr3]
        items.append(lambda: self.block_ids(s, 16, 3))
        items.append(lambda: self.wd_lane_addrs(s, 4, 5, 8, 14, RA[0]))
        items.append(lambda: self.hflag_addr(s, 9, 14))
        items.append(lambda: s.e(f"""s_lshl_b32 s{sG}, s{sDB}, 7
            s_mul_i32 s{sF}, s{sP2}, {2 * 114688}
            s_add_u32 s{sF}, s{sF}, {HB}
            v_lshlrev_b32 v1, 4, v0
            v_mov_b32 v10, s{sT}
            v_mov_b32 v11, 0"""))
        return items

    def stream_GA(self):
        s = Stream("GA")
        o = self.o
        XF, S, ONE, W = self.A_XF, self.A_ACC, self.A_ONE, self.A_W
        s.e("L_GA:\ns_setprio 2")
        s.e(f"""v_bfe_u32 v8, v0, 4, 1
            v_lshrrev_b32 v9, 5, v0
            v_bfe_u32 v10, v0, 2, 2
            v_lshlrev_b32 v1, 11, v8
            v_lshl_add_u32 v1, v9, 10, v1
            v_lshl_add_u32 v1, v10, 7, v1
            v_bfe_u32 v10, v0, 3, 1
            v_lshl_add_u32 v10, v8, 1, v10
            v_xor_b32 v10, s{sW}, v10
            v_lshl_add_u32 v1, v10, 5, v1
            v_and_b32 v10, 1, v0
            v_lshl_add_u32 v1, v10, 4, v1
            v_bfe_u32 v10, v0, 1, 1
            v_lshl_add_u32 v1, v10, 3, v1
            v_add_u32 v1, {X0}, v1
            v_and_b32 v8, 31, v0
            v_bfe_u32 v10, v0, 1, 3
            v_xor_b32 v10, v10, v9
            v_lshlrev_b32 v11, 7, v8
            v_add_u32 v11, {X0}, v11""")
        for k in range(4):
            s.e(f"v_xor_b32 v12, {2 * k}, v10\nv_lshl_add_u32 v{2 + k}, v12, 4, v11")
        s.e(f"""v_mul_u32_u24 v6, 1040, v8
            v_lshl_add_u32 v6, v9, 4, v6
            v_lshlrev_b32 v7, 4, v0
            v_add_u32 v7, s{sW4K}, v7
            v_add_u32 v7, {ACC0}, v7""")
        for k in range(4):
            s.e(f"v_mov_b32 v{ONE + k}, 0x3f803f80")
        self.late_scalars(s)
        aTR = Addr(s, 1, X0)
        aXA = [Addr(s, 2 + k, X0) for k in range(4)]
        aXR = Addr(s, 6, 0)
        acc_of = {0: S[0], 1: S[1], 2: S[3], 3: S[0], 4: S[3], 5: S[0], 6: S[3], 7: S[0]}
        cs = lambda c: X0 + (c % 3) * CH

        def rd1(n):
            c, st = divmod(n, 4)
            for x in range(2):
                r, off = aTR.off(cs(c) + st * 4096 + x * 512, cs(c))
                s.ds(f"ds_read_b64_tr_b16 {vr(W + 4 * n + 2 * x, 2)}, {r} offset:{off}")
            for g in range(G):
                r, off = aXA[st].off(cs(c) + 16384 + g * 4096, cs(c))
                t = s.ds(f"ds_read_b128 {vr(XF + 4 * ((n & 1) * G + g), 4)}, {r} offset:{off}")
            return t

        frag = lambda g, k: XF + 4 * (((g - G) * 32 + k + 4) % 8)
        xt = {}

        def rd2(g, k):
            r, off = aXR.off(XSLOT[g] + 32 * k, XSLOT[g])
            xt[g, k] = s.ds(f"ds_read_b128 {vr(frag(g, k), 4)}, {r} offset:{off}")

        PF = o["pf"]
        s.barrier("b0")
        self.stamp(s, "b0")
        tok = rd1(0)
        for n in range(32):
            nxt = None
            if n % 4 == 3:
                if n == 3:
                    self.tag_ready(s)
                s.wait(lg=tok)
                s.barrier(f"b{n // 4 + 1}")
                if n in (15, 31):
                    self.stamp(s, f"b{n // 4 + 1}")
            if n < 31:
                nxt = rd1(n + 1)
            else:
                for k in range(PF):
                    rd2(G, k)
            s.wait(lg=tok)
            for g in range(G):
                a = acc_of[g]
                s.e(f"{MFMA32} {vr(a, 16)}, {vr(W + 4 * n, 4)}, {vr(XF + 4 * ((n & 1) * G + g), 4)}, "
                    f"{vr(a, 16) if n else 0}")
            s.e(f"{MFMA32} {vr(S[2], 16)}, {vr(W + 4 * n, 4)}, {vr(ONE, 4)}, {vr(S[2], 16) if n else 0}")
            tok = nxt

        def accw(a, dst, i):
            return s.ds(f"ds_write_b128 v7, {vr(a + 4 * i, 4)} offset:{dst - ACC0 + 1024 * i}")

        setup = deque(self.a_post_setup(s))
        wd_tok = [None] * 3
        for g in range(G, 8):
            side = {}
            if g == G:
                jobs = [(S[2], ST2, i) for i in range(4)] + [(acc_of[0], ACC0, i) for i in range(4)]
                late = [(acc_of[1], ST1, i) for i in range(4)]
            else:
                jobs, late = [(acc_of[g - 1], ACC0, i) for i in range(4)], []
            k_alpha = 4 + len(jobs) + 1
            wtok = None
            for k in range(32):
                idx = k + PF
                if idx < 32:
                    rd2(g, idx)
                else:
                    if idx == 32:
                        s.wait(lg=wtok)
                        s.barrier(f"beta{g + 1}")
                    if g < 7:
                        rd2(g + 1, idx - 32)
                if 4 <= k < 4 + len(jobs):
                    wtok = accw(*jobs[k - 4])
                if k == k_alpha:
                    s.wait(lg=wtok)
                    s.barrier(f"alpha{g}")
                    self.stamp(s, f"al{g}") if g in (2, 4, 7) else None
                if late and k_alpha < k <= k_alpha + 4:
                    wtok = accw(*late[k - k_alpha - 1])
                if g in (4, 5, 6) and k > k_alpha and k % 6 == 0 and setup:
                    setup.popleft()()
                if g == 7 and k_alpha < k <= k_alpha + 16 and (k - k_alpha) % 2:
                    e = (k - k_alpha) // 2
                    wd_tok[0] = self.wd_dma(s, 4, 0, e, RA[0] + 1024 * e)
                s.wait(lg=xt[g, k])
                a = acc_of[g]
                s.e(f"{MFMA32} {vr(a, 16)}, {vr(W + 4 * k, 4)}, {vr(frag(g, k), 4)}, {vr(a, 16) if k else 0}")
        assert not setup
        self.stamp(s, "g1end")
        self.a_post(s, wd_tok, lambda i: accw(acc_of[7], ACC0, i))
        return s

    def stream_PA(self):
        s = Stream("PA")
        s.e("L_PA:")
        s.e(f"""s_getpc_b64 s[{sE}:{sE + 1}]
            L_pc:
            s_sub_u32 s{sE}, s{sE}, L_pc-{NAME}_kernel
            s_subb_u32 s{sE + 1}, s{sE + 1}, 0
            s_and_b32 s{sA}, s{sSLOT}, 3
            s_lshl_b32 s{sA}, s{sA}, 2
            s_add_u32 s{sA}, s{sA}, s{sW}
            v_lshlrev_b32 v1, 4, v0
            v_add_u32 v1, s{sA}, v1
            v_lshlrev_b32 v1, 7, v1
            v_min_u32 v1, L_code_end-{NAME}_kernel-4, v1""")
        s.vmem(f"global_load_dword v16, v1, s[{sE}:{sE + 1}]")
        self.late_scalars(s)
        self.tag_ready(s)
        for f in self.a_post_setup(s):
            f()
        s.barrier("p1")
        s.barrier("p2")
        wd_tok = [None] * 3
        for e in range(8):
            wd_tok[0] = self.wd_dma(s, 4, 0, e, RA[0] + 1024 * e)
        s.e("s_setprio 2")
        s.barrier("beta8")
        self.stamp(s, "beta8")
        self.a_post(s, wd_tok, None)
        return s

    def a_post(self, s, wd_tok, accw):
        o = self.o
        join1, set1 = s.label("convjoin"), s.label("set1")
        s.e(f"s_bitcmp1_b32 s{sW}, 0\ns_cbranch_scc1 {set1}")
        snap = (s.vm, s.vm_done, s.lg, s.lg_done, s.nbar)
        res = []
        for st, tiles in enumerate(((7, 4, 3, 0), (6, 5, 2, 1))):
            s.vm, s.vm_done, s.lg, s.lg_done, s.nbar = snap
            if st:
                s.e(f"{set1}:\ns_nop 7")
            wt = list(wd_tok)
            ytok, ptok = self.conv(s, st, tiles, wt, accw)
            s.wait_all_lg()
            res.append((s.vm, s.vm_done, s.nbar, tuple(wt), ytok, ptok))
            if not st:
                s.e(f"s_branch {join1}")
        assert res[0] == res[1]
        s.e(f"{join1}:")
        self.stamp(s, "conv")
        wt, ytok, ptok = res[0][3:]
        if o["upto"] == "conv":
            s.wait(vm=ytok)
            self.y_flag(s)
            self.epoch(s)
            self.finish(s)
            return
        WD, ACC = 160, (48, 80)
        slots = [16 + 4 * i for i in range(8)] + [128 + 4 * i for i in range(8)]
        pa = self.partial_addrs(s, 112, 116)
        aR = [Addr(s, 5, RA[0]), Addr(s, 8, RA[0])]
        poll_txt = lambda th: f"buffer_load_dword v12, v9, {srd(sWS)}, 0 offen offset:{16 * th} sc1"
        ht = {}

        def hload(th, n):
            b, ks = divmod(n, 4)
            if ks == 0:
                self.h_soff(s, b, th)
            r = slots[(12 * th + n) % 16]
            ht[th, n] = s.vmem(f"buffer_load_dwordx4 {vr(r, 4)}, v1, {srd(sWS)}, s{sC} offen offset:{1024 * ks} sc1")

        def wdread(n):
            b, ks = divmod(n, 4)
            s.wait(vm=wt[b])
            for dt in range(2):
                for x in range(2):
                    r, off = aR[dt].off(RA[b] + 2048 * ks + 512 * x, RA[b])
                    t = s.ds(f"ds_read_b64_tr_b16 {vr(WD + 8 * n + 4 * dt + 2 * x, 2)}, {r} offset:{off}")
            return t

        def mm(th, n):
            r = slots[(12 * th + n) % 16]
            for dt in range(2):
                a = ACC[th] + 16 * dt
                s.e(f"{MFMA32} {vr(a, 16)}, {vr(WD + 8 * n + 4 * dt, 4)}, {vr(r, 4)}, {vr(a, 16) if n else 0}")

        self.poll(s, ptok, [poll_txt(0)], [12])
        self.stamp(s, "hp0")
        for n in range(6):
            hload(0, n)
        p1 = s.vmem(poll_txt(1))
        for n in range(6, 12):
            hload(0, n)
        wr = {0: wdread(0), 1: wdread(1)}
        issued1 = 0
        for n in range(12):
            if n + 2 < 12:
                wr[n + 2] = wdread(n + 2)
            s.wait(vm=ht[0, n], lg=wr[n])
            if n == 0:
                self.y_flag(s)
            if n == 6:
                self.poll(s, p1, [poll_txt(1)], [12])
            mm(0, n)
            if n >= 6:
                while issued1 < 12 and issued1 < min(n + 5, 3 * (n - 5)):
                    hload(1, issued1)
                    issued1 += 1
        while issued1 < 12:
            hload(1, issued1)
            issued1 += 1
        self.stamp(s, "th0")
        wtok = None
        for n in range(12):
            s.wait(vm=ht[1, n])
            mm(1, n)
            if 1 <= n < 5:
                for z in range(2):
                    q = 2 * (n - 1) + z
                    wtok = self.partial_write(s, pa, ACC[0], RA[0], q >> 2, q & 3)
            if n == 5:
                s.wait(lg=wtok)
                s.barrier("Z1")
        self.stamp(s, "th1")
        s.barrier("Z1b")
        for q in range(8):
            wtok = self.partial_write(s, pa, ACC[1], RA[1], q >> 2, q & 3)
        s.wait(lg=wtok)
        s.barrier("Z2")
        self.epoch(s)
        self.finish(s)

    def y_flag(self, s):
        s.e(f"""s_and_b32 s{sA}, s{sW}, 1
            s_lshl_b32 s{sA}, s{sA}, 11
            s_lshr_b32 s{sB_}, s{sW}, 1
            s_lshl_b32 s{sB_}, s{sB_}, 2
            s_add_u32 s{sA}, s{sA}, s{sB_}
            s_lshl_b32 s{sB_}, s2, 3
            s_add_u32 s{sA}, s{sA}, s{sB_}
            s_add_u32 s{sA}, s{sA}, {FY}""")
        self.flag(s, 10, 11, f"s{sA}")

    def epoch(self, s):
        if s.name != "PA":
            return
        skip = s.label("noepoch")
        s.e(f"""s_cmp_lg_u32 s2, 255
            s_cbranch_scc1 {skip}
            s_cmp_lg_u32 s{sW8}, 0
            s_cbranch_scc1 {skip}
            s_mov_b32 s{sG}, {FY}""")
        txt = [f"buffer_load_dwordx4 v[{16 + 4 * z}:{19 + 4 * z}], v1, {srd(sWS)}, s{sG} offen offset:{1024 * z} sc1"
               for z in range(2)]
        for t in txt:
            tok = s.vmem(t)
        self.poll(s, tok, txt, list(range(16, 24)))
        self.flag(s, 10, 11, "0")
        s.e(f"{skip}:")

    def conv(self, s, st, tiles, wt, accw):
        o = self.o
        CACC, DF = 112, 16
        acc = {n: CACC + 4 * i for i, n in enumerate(tiles)}
        pool = deque([64 + 4 * i for i in range(12)] + [128 + 4 * i for i in range(8)])
        ops = []
        for r in range(8):
            for i in range(8):
                ops += [(n, ("A", r + 8 * i), ("G", r, n - i)) for n in tiles if n >= i]
                if r == 0 and i == 2:
                    ops += [(n, ("D",), ("G", 0, n)) for n in tiles]
        first, last = {}, {}
        for idx, (n, a, g) in enumerate(ops):
            for key in (a, g):
                first.setdefault(key, idx)
                last[key] = idx
        loads = deque(sorted((k for k in first if k[0] != "D"), key=lambda k: first[k]))
        total = sum(2 if k[0] == "A" else 1 for k in loads)
        reg, tok = {("D",): DF}, {("D",): 0}
        issued = 0

        def load(key):
            nonlocal issued
            r = reg[key] = pool.popleft()
            if key[0] == "A":
                s.ds(f"ds_read_b64 {vr(r, 2)}, v2 offset:{64 * key[1]}")
                tok[key] = s.ds(f"ds_read_b64 {vr(r + 2, 2)}, v2 offset:{64 * key[1] + 8}")
                issued += 2
            else:
                tok[key] = s.ds(f"ds_read_b128 {vr(r, 4)}, v3 offset:{512 * (7 - key[2]) + 64 * key[1]}")
                issued += 1

        lead = o["conv_lead"]
        while loads and first[loads[0]] < 4:
            load(loads.popleft())
        s.e(f"""s_lshr_b32 s{sA}, s{sW}, 1
            s_lshl_b32 s{sA}, s{sA}, 4
            s_lshr_b32 s{sA}, s{sD}, s{sA}
            s_and_b32 s{sA}, s{sA}, 0xffff
            v_and_b32 v14, 15, v0
            v_lshrrev_b32 v15, 4, v0
            v_lshl_add_u32 v14, v15, 3, v14
            v_sub_u32 v14, 15, v14
            v_and_b32 v15, 1, v14
            v_lshlrev_b32 v15, 4, v15
            v_lshlrev_b32 v15, v15, s{sA}
            v_ashrrev_i32 v14, 1, v14""")
        for x in range(4):
            s.e(f"v_cmp_eq_u32 vcc, {x}, v14\nv_cndmask_b32 v{DF + x}, 0, v15, vcc")
        wtok = None
        if accw:
            for i in range(4):
                wtok = accw(i)
        started = set()
        dma = deque((b, e) for b in (1, 2) for e in range(8))
        ptok = None
        for idx, (n, a, g) in enumerate(ops):
            while loads and pool and s.lg - s.lg_done <= 12 and (
                    first[loads[0]] <= idx + lead or issued < total * (idx + 2 * lead) / len(ops)):
                load(loads.popleft())
            if idx == 3:
                s.wait(lg=wtok)
                s.barrier("alpha8")
            if idx > 3 and idx % 5 == 0 and dma:
                b, e = dma.popleft()
                wt[b] = self.wd_dma(s, 4, b, e, RA[b] + 1024 * e)
            if idx == len(ops) - 24:
                ptok = s.vmem(f"buffer_load_dword v12, v9, {srd(sWS)}, 0 offen sc1")
            assert a in tok and g in tok, "fragment pool exhausted"
            s.wait(lg=max(tok[a], tok[g]))
            c = vr(acc[n], 4) if n in started else 0
            started.add(n)
            s.e(f"{MFMA16} {vr(acc[n], 4)}, {vr(reg[a], 4)}, {vr(reg[g], 4)}, {c}")
            for key in (a, g):
                if last[key] == idx and key[0] != "D":
                    pool.append(reg[key])
        assert not dma and not loads
        s.e(f"""s_lshl_b32 s{sA}, s{sW}, 2
            s_add_u32 s{sA}, s{sA}, {CFL}
            v_mov_b32 v14, s{sA}
            v_mov_b32 v15, 1""")
        s.ds("ds_write_b32 v14, v15")
        step = 1536 if st == 0 else 512
        s.e(f"""v_bfe_u32 v14, v0, 1, 4
            v_lshrrev_b32 v15, 5, v0
            v_lshl_add_u32 v14, v15, 4, v14
            v_and_b32 v13, 1, v0
            v_lshl_add_u32 v14, v13, 5, v14
            v_lshlrev_b32 v14, 2, v14
            v_mul_u32_u24 v15, {step}, v15
            v_and_b32 v13, 31, v0
            v_lshl_add_u32 v13, v13, 4, v15
            s_lshr_b32 s{sA}, s{sW}, 1
            s_lshl_b32 s{sB_}, s2, 1
            s_add_u32 s{sA}, s{sA}, s{sB_}
            s_lshl_b32 s{sA}, s{sA}, 12
            s_add_u32 s{sA}, s{sA}, {YB}""")
        pairs = ((tiles[3], tiles[2]), (tiles[1], tiles[0]))
        toks = []
        for z, (n1, n2) in enumerate(pairs):
            R = 64 + 8 * z
            for q, n in enumerate((n1, n2)):
                s.e(f"v_cvt_pk_bf16_f32 v{R + 2 * q}, v{acc[n]}, v{acc[n] + 1}")
                s.e(f"v_cvt_pk_bf16_f32 v{R + 2 * q + 1}, v{acc[n] + 2}, v{acc[n] + 3}")
            s.e(f"v_permlane16_swap_b32 v{R}, v{R + 2}\nv_permlane16_swap_b32 v{R + 1}, v{R + 3}")
            for x in range(4):
                t = s.ds(f"ds_bpermute_b32 v{R + 4 + x}, v14, v{R + x}")
            toks.append(t)
        for z, (n1, n2) in enumerate(pairs):
            s.wait(lg=toks[z])
            ytok = s.vmem(f"buffer_store_dwordx4 {vr(68 + 8 * z, 4)}, v13, {srd(sWS)}, s{sA} offen "
                          f"offset:{512 * n1} sc1")
        return ytok, ptok

    B_CS, B_STP, B_CON, B_OUT, B_AI, B_P, B_WD = 24, 40, 48, 52, (64, 80), 96, 128

    def b_common_addrs(self, s):
        s.e(f"""v_lshlrev_b32 v5, 4, v0
            v_lshrrev_b32 v13, 3, v0
            v_and_b32 v14, 7, v0
            v_lshlrev_b32 v6, 4, v14
            v_lshl_add_u32 v6, v13, 10, v6
            v_mov_b32 v12, 0""")

    def b_stats_load(self, s):
        s.e(f"""v_lshrrev_b32 v15, 5, v0
            v_and_b32 v16, 31, v0
            v_lshlrev_b32 v16, 4, v16
            v_lshl_add_u32 v16, v15, 10, v16
            s_lshr_b32 s{sA}, s{sP2}, 2
            s_lshl_b32 s{sA}, s{sA}, 5
            s_add_u32 s{sA}, s{sA}, s{sSLOT}
            s_lshl_b32 s{sA}, s{sA}, 2
            s_add_u32 s{sA}, s{sA}, s{sW}
            s_lshl_b32 s{sB_}, s{sA}, 11
            s_lshl_b32 s{sA}, s{sA}, 4
            s_add_u32 s{sA}, s{sA}, {STATS}
            v_lshlrev_b32 v15, 3, v15
            v_add_u32 v15, s{sA}, v15""")
        s.vmem(f"buffer_load_dwordx4 v[200:203], v16, {srd(sX)}, s{sB_} offen")
        return s.vmem(f"buffer_load_dwordx4 v[204:207], v16, {srd(sX)}, s{sB_} offen offset:512")

    def b_stats(self, s, tok):
        F = 208

        def reduce(r):
            for sh in (8, 4, 2, 1):
                s.e(f"v_add_f32_dpp v{r}, v{r}, v{r} row_ror:{sh} row_mask:0xf bank_mask:0xf")
            s.e(f"v_mov_b32 v{r + 1}, v{r}\nv_permlane16_swap_b32 v{r}, v{r + 1}\nv_add_f32 v{r}, v{r}, v{r + 1}")

        s.wait(vm=tok)
        for k in range(8):
            s.e(f"v_lshlrev_b32 v{F + 2 * k}, 16, v{200 + k}\nv_and_b32 v{F + 2 * k + 1}, 0xffff0000, v{200 + k}")
        for k in range(8):
            s.e(f"v_add_f32 v{200 + k}, v{F + 2 * k}, v{F + 2 * k + 1}")
        for w in (4, 2, 1):
            for k in range(w):
                s.e(f"v_add_f32 v{200 + k}, v{200 + k}, v{200 + k + w}")
        reduce(200)
        s.e(f"v_mul_f32 v200, {fhex(1 / 512)}, v200")
        for k in range(16):
            s.e(f"v_sub_f32 v{F + k}, v{F + k}, v200")
        s.e(f"v_mul_f32 v202, v{F}, v{F}\nv_mul_f32 v203, v{F + 1}, v{F + 1}")
        for k in range(2, 16):
            s.e(f"v_fmac_f32 v{202 + (k & 1)}, v{F + k}, v{F + k}")
        s.e("v_add_f32 v202, v202, v203")
        reduce(202)
        s.e(f"""v_mul_f32 v202, {fhex(1 / 512)}, v202
            v_cvt_pk_bf16_f32 v202, v202, v202
            v_and_b32 v202, 0xffff0000, v202
            v_add_f32 v202, {fhex(1e-5)}, v202
            v_cvt_pk_bf16_f32 v202, v202, v202
            v_and_b32 v202, 0xffff0000, v202
            v_sqrt_f32 v202, v202""")
        self.tag_ready(s)
        s.e(f"""v_cvt_pk_bf16_f32 v205, v200, v202
            v_mov_b32 v204, s{sT}
            v_mov_b32 v11, s{sT}
            s_mov_b32 exec_lo, 1
            s_mov_b32 exec_hi, 1""")
        s.vmem(f"buffer_store_dwordx2 v[204:205], v15, {srd(sWS)}, 0 offen sc1")
        s.e("s_mov_b64 exec, -1")

    def b_kv_dma(self, s):
        s.e(f"""v_mov_b32 v17, 0x40000000
            v_cmp_lt_u32 vcc, 39, v0
            v_cndmask_b32 v17, v17, v6, vcc
            s_lshl_b32 s{sA}, s{sSLOT}, 16
            s_lshl_b32 s{sB_}, s{sXCD}, 7
            s_add_u32 s{sA}, s{sA}, s{sB_}
            s_sub_u32 s{sB_}, s{sA}, 8192
            s_mov_b32 m0, {X2}
            s_mul_i32 s{sC}, s{sW}, 2080""")
        s.vmem(f"buffer_load_dwordx4 v17, {srd(sK)}, s{sB_} offen lds")
        s.e(f"s_lshl_b32 s{sB_}, s{sW}, 14\ns_add_u32 s{sA}, s{sA}, s{sB_}")
        for z in range(2):
            s.e(f"s_add_u32 m0, s{sC}, {X2 + (1 + z) * 1040}")
            s.vmem(f"buffer_load_dwordx4 v6, {srd(sK)}, s{sA} offen lds")
            s.e(f"s_add_u32 m0, s{sC}, {X2 + (9 + z) * 1040}")
            s.vmem(f"buffer_load_dwordx4 v6, {srd(sV)}, s{sA} offen lds")
            if z == 0:
                s.e(f"s_add_u32 s{sA}, s{sA}, 8192")
        s.e(f"""v_lshrrev_b32 v17, 3, v0
            v_lshlrev_b32 v18, 4, v17
            s_lshl_b32 s{sA}, s{sXCD}, 9
            s_lshl_b32 s{sB_}, s{sW}, 7
            s_add_u32 s{sA}, s{sA}, s{sB_}""")
        return s.vmem(f"buffer_load_dwordx4 v[148:151], v18, {srd(sSH)}, s{sA} offen")

    def b_kv_reads(self, s):
        s.e(f"""v_and_b32 v18, 7, v0
            v_sub_u32 v19, 7, v18
            v_mul_u32_u24 v19, 1040, v19
            v_lshl_add_u32 v19, v17, 2, v19
            s_lshl_b32 s{sA}, s{sW}, 5
            s_add_u32 s{sA}, s{sA}, {X2}
            v_add_u32 v19, s{sA}, v19
            v_lshlrev_b32 v18, 4, v18
            v_lshl_add_u32 v18, v17, 13, v18""")
        for z in range(11):
            off = (5 + z) * 128 if z < 3 else 1040 + (z - 3) * 128
            t = s.ds(f"ds_read_b32 v{128 + z}, v19 offset:{off}")
        s.wait(lg=t - 6)
        for z in range(8):
            t = s.ds(f"ds_read_b32 v{139 + z}, v19 offset:{9 * 1040 + z * 128}")
        return t

    def b_kv_items(self, s, rtok, state):
        KF, VF, KS, TP, OUT = 160, 172, 180, 152, 188
        items = []

        def unpack(dst, src, e):
            s.e(f"v_and_b32 v{dst}, 0xffff0000, v{src}" if e else f"v_lshlrev_b32 v{dst}, 16, v{src}")

        def taps():
            s.wait(lg=rtok)
            for z in range(8):
                unpack(TP + z, 148 + (z >> 1), z & 1)

        items.append(taps)
        for e in range(2):
            items.append(lambda e=e: [unpack(KF + z, 128 + z, e) for z in range(11)])
            items.append(lambda e=e: [unpack(VF + z, 139 + z, e) for z in range(8)])
            items.append(lambda e=e: [s.e(f"v_mul_f32 v{KS + t}, v{KF + t}, v{TP + 4 * e + 3}") for t in range(8)])
            for i in (2, 1, 0):
                items.append(lambda e=e, i=i: [s.e(f"v_fmac_f32 v{KS + t}, v{KF + t + 3 - i}, v{TP + 4 * e + i}")
                                               for t in range(8)])
            items.append(lambda: [s.e(f"v_mul_f32 v{KS + t}, v{KS + t}, v{VF + t}") for t in range(8)])

            def out(e=e):
                for x in range(4):
                    s.e(f"v_cvt_pk_bf16_f32 v{OUT + 4 * e + x}, v{KS + 7 - 2 * x}, v{KS + 6 - 2 * x}")
                s.e(f"""s_lshl_b32 s{sA}, s{sXCD}, 18
                    s_lshl_b32 s{sB_}, s{sW}, 16
                    s_add_u32 s{sA}, s{sA}, s{sB_}
                    s_lshl_b32 s{sB_}, s{sSLOT}, 7
                    s_sub_u32 s{sA}, s{sA}, s{sB_}
                    s_add_u32 s{sA}, s{sA}, {KVT + 3968 + 4096 * e}""")
                state["kv"] = s.vmem(f"buffer_store_dwordx4 {vr(OUT + 4 * e, 4)}, v18, {srd(sWS)}, s{sA} offen sc1")

            items.append(out)
        return items

    def b_kv_flag(self, s, state):
        s.wait(vm=state["kv"])
        s.e(f"""s_lshl_b32 s{sA}, s{sXCD}, 2
            s_add_u32 s{sA}, s{sA}, s{sW}
            s_lshl_b32 s{sA}, s{sA}, 5
            s_add_u32 s{sA}, s{sA}, s{sSLOT}
            s_lshl_b32 s{sA}, s{sA}, 2
            s_add_u32 s{sA}, s{sA}, {FKV}""")
        self.flag(s, 11, 12, f"s{sA}")

    def b_late_setup(self, s):
        self.block_ids(s, 0, 4)
        self.wd_lane_addrs(s, 8, 9, 10, 13, ST1)
        self.hflag_addr(s, 20, 13)
        s.e(f"s_lshl_b32 s{sG}, s{sDB}, 7")

    def b_hb_issue(self, s, hb):
        for e in range(4):
            t = self.wd_dma(s, 8, hb >> 1, 4 * (hb & 1) + e, ST1 + 4096 * (hb & 1) + 1024 * e)
        return t

    def b_hb_consume(self, s, hb, tok):
        s.wait(vm=tok)
        for k2 in range(2):
            n = 2 * hb + k2
            for dt in range(2):
                for x in range(2):
                    t = s.ds(f"ds_read_b64_tr_b16 {vr(self.B_WD + 8 * n + 4 * dt + 2 * x, 2)}, v{9 + dt} "
                             f"offset:{4096 * (hb & 1) + 2048 * k2 + 512 * x}")
        return t

    def b_ssm_load(self, s):
        s.e(f"""s_and_b32 s{sA}, s{sW}, 1
            s_lshl_b32 s{sA}, s{sA}, 11
            v_add_u32 v13, s{sA}, v5
            v_subrev_u32 v14, 8, v13
            v_add_u32 v15, 1016, v13
            s_lshr_b32 s{sA}, s{sW}, 1
            s_lshl_b32 s{sB_}, s2, 1
            s_add_u32 s{sA}, s{sA}, s{sB_}
            s_lshl_b32 s{sA}, s{sA}, 12""")
        s.vmem(f"buffer_load_dwordx4 v[106:109], v13, {srd(sSK)}, s{sA} offen")
        s.vmem(f"buffer_load_dwordx2 v[104:105], v14, {srd(sSK)}, s{sA} offen")
        s.vmem(f"buffer_load_dwordx4 v[112:115], v13, {srd(sSK)}, s{sA} offen offset:1024")
        return s.vmem(f"buffer_load_dwordx2 v[110:111], v15, {srd(sSK)}, s{sA} offen")

    def b_copy_items(self, s, tok, state):
        items = []

        def pads():
            s.e(f"""s_lshr_b32 s{sA}, s{sW}, 1
                s_mul_i32 s{sA}, s{sA}, 16640
                s_add_u32 s{sA}, s{sA}, {X1 + 32}
                v_add_u32 v13, s{sA}, v13
                v_mov_b32 v116, 0
                v_mov_b32 v117, 0
                v_mov_b32 v118, 0
                v_mov_b32 v119, 0
                v_bfe_u32 v14, v0, 1, 3
                v_mul_u32_u24 v14, 4160, v14
                v_and_b32 v15, 1, v0
                v_lshl_add_u32 v14, v15, 4, v14
                v_lshrrev_b32 v15, 5, v0
                v_mul_u32_u24 v15, 4096, v15
                v_add_u32 v15, v15, v5
                v_add_u32 v15, {KVB + 4096}, v15
                v_mov_b32 v16, {CFL}
                s_mov_b64 exec, 0xffff""")
            s.ds(f"ds_write_b128 v14, v[116:119] offset:{X1}")
            s.e("s_mov_b64 exec, 1")
            s.ds("ds_write_b128 v16, v[116:119]")
            s.e("s_mov_b64 exec, -1")
            state["cp"] = s.ds("ds_write_b128 v15, v[116:119]")

        items.append(pads)
        for z in range(2):
            d = 106 + 6 * z

            def even(z=z, d=d):
                s.wait(vm=tok, lg=state["cp"])
                s.ds(f"ds_write_b128 v13, {vr(d, 4)} offset:{1024 * z}")
                for x in range(4):
                    s.e(f"v_mov_b32 v{116 + x}, v{d - 1 + x}")
                s.ds(f"ds_write_b128 v13, v[116:119] offset:{2 * 4160 + 1024 * z}")

            def odd(z=z, d=d):
                for x in range(4):
                    s.e(f"v_alignbyte_b32 v{120 + x}, v{d + x}, v{d + x - 1}, 2")
                s.ds(f"ds_write_b128 v13, v[120:123] offset:{4160 + 1024 * z}")
                for x in range(4):
                    s.e(f"v_alignbyte_b32 v{124 + x}, v{d + x - 1}, v{d + x - 2}, 2")
                state["cp"] = s.ds(f"ds_write_b128 v13, v[124:127] offset:{3 * 4160 + 1024 * z}")

            items += [even, odd]
        return items

    def b_kvpoll_txt(self):
        return f"buffer_load_dword v22, v21, {srd(sWS)}, 0 offen sc1"

    def b_kvpoll_issue(self, s):
        s.e(f"""s_lshl_b32 s{sA}, s{sSLOT}, 7
            s_add_u32 s{sA}, s{sA}, {FKV}
            v_and_b32 v21, 31, v0
            v_lshlrev_b32 v21, 2, v21
            v_add_u32 v21, s{sA}, v21""")
        return s.vmem(self.b_kvpoll_txt())

    def b_kvt_dma(self, s, ptok):
        self.poll(s, ptok, [self.b_kvpoll_txt()], [22])
        s.e(f"""s_lshl_b32 s{sA}, s2, 13
            s_lshl_b32 s{sB_}, s{sW}, 11
            s_add_u32 s{sA}, s{sA}, s{sB_}
            s_add_u32 s{sA}, s{sA}, {KVT}
            s_lshr_b32 s{sC}, s{sW}, 1
            s_lshl_b32 s{sC}, s{sC}, 9
            s_add_u32 s{sB_}, s{sB_}, s{sC}
            s_add_u32 m0, s{sB_}, {KVB}""")
        for z in range(2):
            t = s.vmem(f"buffer_load_dwordx4 v5, {srd(sWS)}, s{sA} offen offset:{1024 * z} sc1 lds")
        return t

    def b_epi_items(self, s, g, rtok, state):
        CS, P = self.B_CS, self.B_P
        AG = self.B_AI[g & 1]
        AU = AG + 8
        M, CA, CB, SD2 = (self.B_CON + k for k in range(4))
        OUT = self.B_OUT + 4 * (g & 1)
        stp = self.B_STP + g
        c0 = -2.0 * LOG2E * 0.7978845608028654
        R = range(8)
        each = lambda f: (lambda: [s.e(f(k)) for k in R])

        def consts():
            s.e(f"""v_and_b32 v{SD2}, 0xffff0000, v{stp}
                v_rcp_f32 v{CA}, v{SD2}
                v_lshlrev_b32 v{M}, 16, v{stp}
                v_mul_f32 v{SD2}, v{SD2}, v{SD2}
                v_mul_f32 v{CB}, v{CA}, v{CA}
                v_mul_f32 v{CA}, {fhex(c0)}, v{CA}
                v_mul_f32 v{CB}, {fhex(0.044715)}, v{CB}
                v_mul_f32 v{CB}, v{CB}, v{CA}""")
            s.wait(lg=rtok)

        def out():
            for x in range(4):
                s.e(f"v_cvt_pk_bf16_f32 v{OUT + x}, v{AU + 2 * x}, v{AU + 2 * x + 1}")
            self.row_of_group(s, sA, g)
            s.e(f"""s_mul_i32 s{sA}, s{sA}, 3584
                s_lshl_b32 s{sB_}, s{sJ}, 12
                s_add_u32 s{sA}, s{sA}, s{sB_}
                s_add_u32 s{sA}, s{sA}, s{sW1K}
                s_add_u32 s{sA}, s{sA}, {HB}""")
            state["h", g] = s.vmem(f"buffer_store_dwordx4 {vr(OUT, 4)}, v5, {srd(sWS)}, s{sA} offen sc1")

        return [
            consts,
            each(lambda k: f"v_fma_f32 v{AG + k}, -v{M}, v{CS + k}, v{AG + k}"),
            each(lambda k: f"v_mul_f32 v{P + k}, v{AG + k}, v{AG + k}"),
            each(lambda k: f"v_fma_f32 v{P + k}, v{P + k}, v{CB}, v{CA}"),
            each(lambda k: f"v_mul_f32 v{P + k}, v{P + k}, v{AG + k}"),
            each(lambda k: f"v_exp_f32 v{P + k}, v{P + k}"),
            each(lambda k: f"v_fma_f32 v{AU + k}, -v{M}, v{CS + 8 + k}, v{AU + k}"),
            each(lambda k: f"v_fma_f32 v{P + k}, v{P + k}, v{SD2}, v{SD2}"),
            each(lambda k: f"v_rcp_f32 v{P + k}, v{P + k}"),
            each(lambda k: f"v_mul_f32 v{AU + k}, v{AU + k}, v{AG + k}"),
            each(lambda k: f"v_mul_f32 v{AU + k}, v{AU + k}, v{P + k}"),
            out,
        ]

    def b_h_flag(self, s, g, state):
        s.wait(vm=state["h", g])
        self.row_of_group(s, sA, g & ~1)
        s.e(f"""s_mul_i32 s{sA}, s{sA}, 56
            s_lshl_b32 s{sB_}, s{sJ}, 7
            s_add_u32 s{sA}, s{sA}, s{sB_}
            s_lshl_b32 s{sB_}, s{sW}, 2
            s_add_u32 s{sA}, s{sA}, s{sB_}
            s_add_u32 s{sA}, s{sA}, {FH + 16 * (g & 1)}""")
        self.flag(s, 11, 12, f"s{sA}")

    def stream_GB(self):
        s = Stream("GB")
        o = self.o
        s.e("L_GB:")
        self.b_common_addrs(s)
        s.e(f"""v_bfe_u32 v15, v0, 4, 1
            v_lshlrev_b32 v15, 1, v15
            v_xor_b32 v15, v15, v14
            v_mul_u32_u24 v1, 3584, v13
            v_lshl_add_u32 v1, v15, 4, v1
            v_xor_b32 v2, 64, v1
            s_lshl_b32 s{sA}, s{sW}, 2
            v_lshrrev_b32 v15, 1, v13
            v_add_u32 v15, s{sA}, v15
            v_and_b32 v15, 7, v15
            v_xor_b32 v15, v15, v14
            v_lshlrev_b32 v3, 10, v13
            v_lshl_add_u32 v3, v15, 4, v3
            s_lshl_b32 s{sA}, s{sROT}, 3
            v_add_u32 v4, s{sA}, v0
            v_and_b32 v4, 63, v4
            v_lshlrev_b32 v4, 4, v4
            v_add_u32 v7, s{sW4K}, v5
            v_add_u32 v7, {ACC0}, v7
            s_mul_i32 s{sG}, s{sW}, 57344
            s_lshl_b32 s{sA}, s{sJ}, 7
            s_add_u32 s{sG}, s{sG}, s{sA}""")
        self.row_of_group(s, sF, 0)
        s.e(f"s_lshl_b32 s{sF}, s{sF}, 10\ns_add_u32 s{sF}, s{sF}, s{sW8K}")
        self.late_scalars(s)
        cs = lambda c: X0 + (c % 3) * CH

        def chunk(c):
            s.e(f"""s_add_u32 s{sA}, s{sROT}, {c}
                s_and_b32 s{sA}, s{sA}, 7
                s_mul_i32 s{sB_}, s{sA}, 229376
                s_add_u32 s{sB_}, s{sB_}, s{sG}
                s_lshl_b32 s{sA}, s{sA}, 7
                s_add_u32 s{sA}, s{sA}, s{sF}""")
            for e in range(2):
                for mat in range(2):
                    s.e(f"s_add_u32 m0, s{sW4K}, {cs(c) + mat * 2048 + e * 1024}")
                    s.vmem(f"buffer_load_dwordx4 v{1 + mat}, {srd(sWU if mat else sWG)}, s{sB_} offen lds")
                if e == 0:
                    s.e(f"s_add_u32 s{sB_}, s{sB_}, 28672")
            for g in range(G):
                s.e(f"s_add_u32 m0, s{sW1K}, {cs(c) + 16384 + g * 4096}")
                t = s.vmem(f"buffer_load_dwordx4 v3, {srd(sX)}, s{sA} offen lds")
                if g + 1 < G:
                    s.e(f"s_add_u32 s{sA}, s{sA}, 32768")
            return t

        def xrows(g):
            self.row_of_group(s, sA, g)
            s.e(f"s_lshl_b32 s{sA}, s{sA}, 10\ns_add_u32 s{sA}, s{sA}, s{sW8K}")
            for r in range(8):
                if r == 4:
                    s.e(f"s_add_u32 s{sA}, s{sA}, 4096")
                s.e(f"s_add_u32 m0, s{sW8320}, {XSLOT[g] + r * 1040 - (r & 3) * 1024}")
                t = s.vmem(f"buffer_load_dwordx4 v4, {srd(sX)}, s{sA} offen offset:{(r & 3) * 1024} lds")
            return t

        def accr(dst, src):
            for i in range(4):
                t = s.ds(f"ds_read_b128 {vr(dst + 4 * i, 4)}, v7 offset:{src - ACC0 + 1024 * i}")
            return t

        state = {}
        Q = deque()

        def run(budget):
            c0 = s.cost
            while Q and s.cost - c0 < budget:
                Q.popleft()()

        def drain_until(key):
            while key not in state:
                Q.popleft()()

        ct = {0: chunk(0)}
        stok = self.b_stats_load(s)
        ct[1] = chunk(1)
        ct[2] = chunk(2)
        kva = o["kv_after"]
        kvt = self.b_kv_dma(s) if kva == 2 else None
        s.wait(vm=ct[0])
        s.barrier("b0")
        self.stamp(s, "b0")
        self.b_stats(s, stok)
        xt = {}
        gran_txt = []
        for c in range(1, 8):
            s.wait(vm=ct[c])
            if c == kva + 2:
                s.wait(lg=kvr)
            s.barrier(f"b{c}")
            if c + 2 < 8:
                ct[c + 2] = chunk(c + 2)
                if c + 2 == kva:
                    kvt = self.b_kv_dma(s)
            if c == kva + 1:
                kvr = self.b_kv_reads(s)
                Q.extend(self.b_kv_items(s, kvr, state))
            if c == 5:
                xt[2] = xrows(2)
            if c == 6:
                s.e("v_lshlrev_b32 v21, 3, v0")
                for q in range(4):
                    self.row_of_group(s, sBLK + q, 2 * q)
                    s.e(f"s_lshl_b32 s{sBLK + q}, s{sBLK + q}, 3\ns_add_u32 s{sBLK + q}, s{sBLK + q}, {STATS}")
                    gran_txt.append(f"buffer_load_dwordx2 v[{104 + 2 * q}:{105 + 2 * q}], v21, {srd(sWS)}, "
                                    f"s{sBLK + q} offen sc1")
                    gtok = s.vmem(gran_txt[-1])
            if c == max(6, kva + 2):
                xt[3] = xrows(3)
            run(260)
        s.wait(vm=xt[2])
        s.barrier("b8")
        self.stamp(s, "b8")
        run(10000)
        self.poll(s, gtok, gran_txt, [104, 106, 108, 110])
        for q in range(4):
            a = self.B_STP + 2 * q
            s.e(f"v_mov_b32 v{a}, v{105 + 2 * q}\nv_mov_b32 v{a + 1}, v{105 + 2 * q}")
        for q in range(4):
            a = self.B_STP + 2 * q
            s.e(f"v_permlane32_swap_b32 v{a}, v{a + 1}")
        self.stamp(s, "stats")
        self.b_kv_flag(s, state)

        hb_tok, hb_rd = {}, {}
        plan = {("a", 3): ([], [0, 1]), ("a", 4): ([0], [2]), ("b", 5): ([1], [3]), ("a", 5): ([2], [4]),
                ("b", 6): ([3], [5]), ("a", 6): ([4], [6]), ("b", 7): ([5], [7]), ("a", 7): ([6], []),
                ("b", 8): ([7], [])}
        flagged = set()

        def flags(upto):
            for g in range(upto + 1):
                if ("h", g) in state and g not in flagged:
                    self.b_h_flag(s, g, state)
                    flagged.add(g)

        def staging(key, budget):
            cons, iss = plan.get(key, ([], []))
            c0 = s.cost
            rd = None
            for hb in cons:
                rd = self.b_hb_consume(s, hb, hb_tok[hb])
            if rd and iss:
                run(60)
            s.wait(lg=rd)
            for hb in iss:
                hb_tok[hb] = self.b_hb_issue(s, hb)
            run(budget - (s.cost - c0))

        for g in range(G, 9):
            s.barrier(f"alpha{g}")
            if g in (2, 8):
                self.stamp(s, f"al{g}")
            c0 = s.cost
            if g > G:
                drain_until(("h", g - 3))
            if g == G:
                accr(self.B_CS, ST2)
                rt = accr(self.B_AI[0], ACC0)
                Q.extend(self.b_epi_items(s, 0, rt, state))
            else:
                rt = accr(self.B_AI[(g - 1) & 1], ACC0)
                Q.extend(self.b_epi_items(s, g - 1, rt, state))
            if g == 8:
                break
            if g + 2 <= 7:
                xt[g + 2] = xrows(g + 2)
            if g == G:
                self.b_late_setup(s)
            if g == 6:
                Q.extend(self.b_copy_items(s, ssm_tok, state))
                kvp = self.b_kvpoll_issue(s)
            staging(("a", g), o["bud_a"] - (s.cost - c0))
            flags(g - 3)
            if g == 7:
                run(10000)
                s.wait(vm=kvt_tok, lg=state["cp"])
            else:
                s.wait(vm=xt[g + 1])
            s.wait(lg=rt)
            s.barrier(f"beta{g + 1}")
            c0 = s.cost
            if g == G:
                rt = accr(self.B_AI[1], ST1)
                Q.extend(self.b_epi_items(s, 1, rt, state))
            if g == 5:
                ssm_tok = self.b_ssm_load(s)
            if g == 6:
                kvt_tok = self.b_kvt_dma(s, kvp)
            if g == 7:
                hp0 = s.vmem(f"buffer_load_dword v22, v20, {srd(sWS)}, 0 offen sc1")
            staging(("b", g + 1), o["bud_b"] - (s.cost - c0))
            flags(g - 2)
            s.wait(lg=s.lg)
        flags(6)
        run(10000)
        self.stamp(s, "epi7")
        self.b_post(s, hp0, lambda: flags(7))
        return s

    def stream_PB(self):
        s = Stream("PB")
        s.e("L_PB:")
        self.b_common_addrs(s)
        self.late_scalars(s)
        state = {}
        stok = self.b_stats_load(s)
        kvt = self.b_kv_dma(s)
        self.b_stats(s, stok)
        s.wait(vm=kvt)
        s.barrier("p1")
        kvr = self.b_kv_reads(s)
        s.wait(lg=kvr)
        s.barrier("p2")
        for f in self.b_kv_items(s, kvr, state):
            f()
        self.b_late_setup(s)
        ssm_tok = self.b_ssm_load(s)
        hb_tok = {0: self.b_hb_issue(s, 0), 1: self.b_hb_issue(s, 1)}
        self.b_kv_flag(s, state)
        for f in self.b_copy_items(s, ssm_tok, state):
            f()
        for hb in range(8):
            s.wait(lg=self.b_hb_consume(s, hb, hb_tok[hb]))
            if hb + 2 < 8:
                hb_tok[hb + 2] = self.b_hb_issue(s, hb + 2)
        kvt_tok = self.b_kvt_dma(s, self.b_kvpoll_issue(s))
        s.wait(vm=kvt_tok, lg=s.lg)
        s.barrier("beta8")
        self.stamp(s, "beta8")
        hp0 = s.vmem(f"buffer_load_dword v22, v20, {srd(sWS)}, 0 offen sc1")
        s.barrier("alpha8")
        self.b_post(s, hp0, lambda: None)
        return s

    def b_post(self, s, hp0, last_flag):
        o = self.o
        if o["upto"] == "conv":
            last_flag()
            self.finish(s)
            return
        WD, ACC = self.B_WD, (64, 96)
        NS = 10
        slot = lambda n: 24 + 4 * (n % NS)
        poll_txt = lambda th: f"buffer_load_dword v22, v20, {srd(sWS)}, 0 offen offset:{16 * th} sc1"
        s.e(f"s_mul_i32 s{sF}, s{sP2}, {2 * 114688}\ns_add_u32 s{sF}, s{sF}, {HB}")
        ht = {}

        def hload(n):
            th, r = divmod(n, 16)
            b, ks = divmod(r, 4)
            if ks == 0:
                self.h_soff(s, b, th)
            ht[n] = s.vmem(f"buffer_load_dwordx4 {vr(slot(n), 4)}, v5, {srd(sWS)}, s{sC} offen "
                           f"offset:{1024 * ks} sc1")

        self.poll(s, hp0, [poll_txt(0)], [22])
        self.stamp(s, "hp0")
        for n in range(5):
            hload(n)
        p1 = s.vmem(poll_txt(1))
        for n in range(5, NS):
            hload(n)
        pa = self.partial_addrs(s, 1, 13)
        ypoll = f"buffer_load_dword v23, v21, {srd(sWS)}, 0 offen sc1"
        s.e(f"""s_lshr_b32 s{sA}, s{sP2}, 2
            s_lshr_b32 s{sB_}, s{sP2}, 3
            s_xor_b32 s{sA}, s{sA}, s{sB_}
            s_and_b32 s{sA}, s{sA}, 1
            s_lshl_b32 s{sA}, s{sA}, 11
            s_lshl_b32 s{sB_}, s{sDB}, 8
            s_add_u32 s{sA}, s{sA}, s{sB_}
            s_add_u32 s{sA}, s{sA}, {FY}
            v_lshlrev_b32 v21, 2, v0
            v_add_u32 v21, s{sA}, v21""")
        for n in range(32):
            th, r = divmod(n, 16)
            s.wait(vm=ht[n])
            if n == 0:
                last_flag()
            for dt in range(2):
                a = ACC[th] + 16 * dt
                s.e(f"{MFMA32} {vr(a, 16)}, {vr(WD + 8 * r + 4 * dt, 4)}, {vr(slot(n), 4)}, {vr(a, 16) if r else 0}")
            if n + NS == 16:
                self.poll(s, p1, [poll_txt(1)], [22])
            if n + NS < 32:
                hload(n + NS)
        self.stamp(s, "g2b")
        XR, SR, XU, XM, YF, F0, F1, RB = (24, 28), (32, 33), (128, 136), (144, 152), (160, 168), 176, 184, 192
        s.e(f"""s_lshl_b32 s{sG}, s{sP2}, 16
            s_add_u32 s{sG}, s{sG}, s{sW8K}
            s_lshl_b32 s{sA}, s{sDB}, 7
            s_add_u32 s{sG}, s{sG}, s{sA}
            s_add_u32 s{sF}, s{sG}, 32768
            s_lshl_b32 s{sA}, s{sP2}, 9
            s_lshl_b32 s{sB_}, s{sW}, 6
            s_add_u32 s{sA}, s{sA}, s{sB_}
            s_add_u32 s{sA}, s{sA}, {STATS + 4}
            v_lshrrev_b32 v13, 3, v0
            v_lshlrev_b32 v14, 3, v13""")
        s.vmem(f"buffer_load_dwordx4 {vr(XR[0], 4)}, v6, {srd(sX)}, s{sG} offen")
        s.vmem(f"buffer_load_dwordx4 {vr(XR[1], 4)}, v6, {srd(sX)}, s{sF} offen")
        s.vmem(f"buffer_load_dword v{SR[0]}, v14, {srd(sWS)}, s{sA} offen sc1")
        xtok = s.vmem(f"buffer_load_dword v{SR[1]}, v14, {srd(sWS)}, s{sA} offen offset:256 sc1")
        yp = s.vmem(ypoll)
        spin, free = s.label("cfl"), s.label("cflok")
        s.e(f"v_mov_b32 v15, {CFL}\ns_mov_b32 s{sCNT}, 0\n{spin}:\nds_read_b128 v[16:19], v15\ns_waitcnt lgkmcnt(0)")
        s.lg_done = s.lg
        s.e(f"""v_and_b32 v16, v16, v17
            v_and_b32 v18, v18, v19
            v_and_b32 v16, v16, v18
            v_cmp_ne_u32 vcc, 1, v16
            s_add_u32 s{sCNT}, s{sCNT}, 1
            s_cmp_gt_u32 s{sCNT}, {64 * o['poll_limit']}
            s_cbranch_scc1 {free}
            s_cbranch_vccnz {spin}
            {free}:""")
        for q in range(8):
            wtok = self.partial_write(s, pa, ACC[0], X1, q >> 2, q & 3)
        s.e(f"""v_and_b32 v14, 7, v0
            v_lshlrev_b32 v15, 1, v14
            v_xor_b32 v15, v15, v13
            s_lshl_b32 s{sA}, s{sW}, 11
            v_lshlrev_b32 v16, 8, v13
            v_add_u32 v16, s{sA}, v16
            v_lshl_add_u32 v7, v15, 4, v16
            v_xor_b32 v8, 16, v7
            v_lshrrev_b32 v15, 1, v14
            v_lshlrev_b32 v9, 12, v15
            v_and_b32 v15, 1, v14
            v_lshl_add_u32 v9, v15, 10, v9
            v_lshl_add_u32 v9, v14, 4, v9
            v_lshl_add_u32 v9, v13, 1, v9
            s_lshl_b32 s{sA}, s{sW}, 4
            s_add_u32 s{sA}, s{sA}, {ACC0}
            v_add_u32 v9, s{sA}, v9
            v_lshlrev_b32 v10, 4, v14
            v_lshl_add_u32 v10, v13, 12, v10""")
        ra = [Addr(s, 7, 0), Addr(s, 8, 0)]
        s.wait(vm=xtok)
        for th in range(2):
            for k in range(4):
                s.e(f"v_lshlrev_b32 v{XU[th] + 2 * k}, 16, v{XR[th] + k}")
                s.e(f"v_and_b32 v{XU[th] + 2 * k + 1}, 0xffff0000, v{XR[th] + k}")
            s.e(f"v_lshlrev_b32 v15, 16, v{SR[th]}\nv_and_b32 v{SR[th]}, 0xffff0000, v{SR[th]}")
            for k in range(8):
                s.e(f"v_sub_f32 v{XM[th] + k}, v{XU[th] + k}, v15")
            for k in range(8):
                s.e(f"v_mov_b32 v{YF[th] + k}, 0")
        s.wait(lg=wtok)
        s.barrier("Z1")
        self.stamp(s, "Z1")

        def preads(region, dst):
            toks = []
            for w in range(4):
                for e in range(2):
                    r, off = ra[e].off(region + 8192 * w, region)
                    t = s.ds(f"ds_read_b128 {vr(dst + 8 * w + 4 * e, 4)}, {r} offset:{off}")
                toks.append(t)
            return toks

        def psum(F, src, toks, init):
            for w in range(4):
                s.wait(lg=toks[w])
                if init and w == 0:
                    continue
                a = src if init and w == 1 else F
                for k in range(8):
                    s.e(f"v_add_f32 v{F + k}, v{a + k}, v{src + 8 * w + k}")

        def gate(F, th, T):
            for k in range(8):
                s.e(f"v_mul_f32 v{T + k}, {fhex(-LOG2E)}, v{F + k}")
            for k in range(8):
                s.e(f"v_exp_f32 v{T + k}, v{T + k}")
            for k in range(8):
                s.e(f"v_mul_f32 v{F + k}, v{F + k}, v{XM[th] + k}")
            for k in range(8):
                s.e(f"v_fma_f32 v{T + k}, v{T + k}, v{SR[th]}, v{SR[th]}")
            for k in range(8):
                s.e(f"v_rcp_f32 v{T + k}, v{T + k}")

        def store(F, th):
            R = 36 + 4 * th
            for x in range(4):
                s.e(f"v_cvt_pk_bf16_f32 v{R + x}, v{F + 2 * x}, v{F + 2 * x + 1}")
            s.vmem(f"buffer_store_dwordx4 {vr(R, 4)}, v6, {srd(sOUT)}, s{sF if th else sG} offen")

        t1 = preads(X1, RB)
        psum(F0, RB, t1[:2] + [t1[2], t1[3]], True)
        t2 = preads(RA[0], RB + 32)
        self.poll(s, yp, [ypoll], [23])
        self.stamp(s, "yp")
        s.e(f"""s_lshl_b32 s{sA}, s{sDB}, 18
            s_lshl_b32 s{sB_}, s{sW}, 16
            s_add_u32 s{sA}, s{sA}, s{sB_}
            s_lshl_b32 s{sB_}, s{sP2}, 7
            s_add_u32 s{sA}, s{sA}, s{sB_}
            s_add_u32 s{sA}, s{sA}, {YB}
            s_lshl_b32 s{sB_}, s{sW}, 5
            s_add_u32 s{sB_}, s{sB_}, s{sW4K}""")
        for z in range(2):
            s.e(f"s_add_u32 m0, s{sB_}, {ACC0 + 1040 * z}")
            ytok = s.vmem(f"buffer_load_dwordx4 v10, {srd(sWS)}, s{sA} offen sc1 lds")
            if z == 0:
                s.e(f"s_add_u32 s{sA}, s{sA}, 32768")
        psum(F0, RB + 32, t2, False)
        for q in range(8):
            wtok = self.partial_write(s, pa, ACC[1], RA[2], q >> 2, q & 3)
        gate(F0, 0, RB)
        for k in range(8):
            s.e(f"v_mul_f32 v{F0 + k}, v{F0 + k}, v{RB + k}")
        s.wait(vm=ytok, lg=wtok)
        s.barrier("Z1b")
        self.stamp(s, "Z1b")
        yt = []
        for th in range(2):
            for k in range(8):
                t = s.ds(f"ds_read_u16_d16_hi v{YF[th] + k}, v9 offset:{128 * k + 64 * th}")
                if th == 1 and k == 3:
                    s.wait(lg=yt[0])
            yt.append(t)
        t3 = preads(RA[2], RB)
        for k in range(8):
            s.e(f"v_fma_f32 v{F0 + k}, v{F0 + k}, v{YF[0] + k}, v{XU[0] + k}")
        store(F0, 0)
        s.wait(lg=yt[1])
        for k in range(8):
            s.e(f"v_mul_f32 v{XM[1] + k}, v{XM[1] + k}, v{YF[1] + k}")
        psum(F1, RB, t3, True)
        s.barrier("Z2")
        self.stamp(s, "Z2")
        t4 = preads(RA[1], RB + 32)
        psum(F1, RB + 32, t4, False)
        gate(F1, 1, RB)
        for k in range(8):
            s.e(f"v_fma_f32 v{F1 + k}, v{F1 + k}, v{RB + k}, v{XU[1] + k}")
        store(F1, 1)
        self.finish(s)

    def policy(self, line):
        if not line.startswith("buffer_load"):
            return line
        for key, regs in (("x", (sX,)), ("w", (sWG, sWU)), ("d", (sWD,)), ("k", (sK, sV, sSH, sSK))):
            if key in self.o["nt"] and any(srd(r) in line for r in regs):
                return line[:-4] + " nt lds" if line.endswith(" lds") else line + " nt"
        return line

    def build(self):
        streams = [self.entry(), self.stream_GB(), self.stream_GA(), self.stream_PB(), self.stream_PA()]
        by = {s.name: s for s in streams}
        assert by["GA"].nbar == by["GB"].nbar, (by["GA"].nbar, by["GB"].nbar)
        assert by["PA"].nbar == by["PB"].nbar, (by["PA"].nbar, by["PB"].nbar)
        body = []
        self.info = {}
        for s in streams:
            lines, added = fix_hazards([self.policy(l) for l in s.L])
            self.info[s.name] = (len(lines), added, s.nbar)
            body += lines
        ref = open(f"cdna_kernels/{NAME}.s.ref").read().split("\n")
        head = [l for l in ref if l.startswith(";") and "@launch" not in l]
        out = head + [f"; @launch grid=(256,1,1) block=(512,1,1) lds={LDS_BYTES}",
                      '.amdgcn_target "amdgcn-amd-amdhsa--gfx950"', ".text", f".globl {NAME}_kernel", ".p2align 8",
                      f".type {NAME}_kernel,@function", f"{NAME}_kernel:"]
        out += [l if l.endswith(":") else "    " + l for l in body]
        out += ["L_code_end:", '.section .rodata,"a"', ".p2align 6", f".amdhsa_kernel {NAME}_kernel",
                "  .amdhsa_next_free_vgpr 256", "  .amdhsa_next_free_sgpr 102", "  .amdhsa_accum_offset 256",
                "  .amdhsa_group_segment_fixed_size 0", "  .amdhsa_kernarg_size 104", "  .amdhsa_user_sgpr_count 2",
                "  .amdhsa_user_sgpr_kernarg_segment_ptr 1", "  .amdhsa_system_sgpr_workgroup_id_x 1",
                "  .amdhsa_float_denorm_mode_32 3", ".end_amdhsa_kernel", ""]
        return "\n".join(out)


def parse_opts(args):
    kw = {}
    for a in args:
        k, v = a.split("=")
        kw[k] = int(v) if v.lstrip("-").isdigit() else v
    return kw


if __name__ == "__main__":
    path = sys.argv[1]
    g = Gen(**parse_opts(sys.argv[2:]))
    open(path, "w").write(g.build())
    print(g.info)
```

```python
import re

TRANS = ("v_exp_f32", "v_log_f32", "v_rcp_f32", "v_rsq_f32", "v_sqrt_f32", "v_sin_f32", "v_cos_f32")
NO_DST_S = ("s_cmp", "s_waitcnt", "s_cbranch", "s_branch", "s_barrier", "s_nop", "s_setprio", "s_endpgm", "s_sleep",
            "s_bitcmp")


def vr(a, n=1):
    return f"v{a}" if n == 1 else f"v[{a}:{a + n - 1}]"


def sr(a, n=1):
    return f"s{a}" if n == 1 else f"s[{a}:{a + n - 1}]"


_REG = re.compile(r"\b([vs])(\d+)\b|\b([vs])\[(\d+):(\d+)\]|\b(vcc|exec|m0|vcc_lo|vcc_hi)\b")


def regs_of(text):
    out = set()
    for m in _REG.finditer(text):
        if m.group(1):
            out.add((m.group(1), int(m.group(2))))
        elif m.group(3):
            out.update((m.group(3), i) for i in range(int(m.group(4)), int(m.group(5)) + 1))
        else:
            name = m.group(6)
            out.add(("x", "vcc" if name.startswith("vcc") else name))
    return out


class Ins:
    def __init__(self, text):
        self.text = text
        t = text.split(";")[0].strip()
        self.label = t.endswith(":") or not t or t.startswith(".")
        self.op = ""
        self.rd, self.wr = set(), set()
        self.srcc = set()
        self.data = set()
        if self.label:
            return
        parts = t.split(None, 1)
        self.op = op = parts[0]
        rest = parts[1] if len(parts) > 1 else ""
        ops = [x.strip() for x in rest.split(",")] if rest else []
        R = [regs_of(x) for x in ops]
        allr = lambda k: set().union(*R[k:]) if len(R) > k else set()
        self.mfma = op.startswith("v_mfma")
        self.valu = op.startswith("v_") and not self.mfma
        self.trans = op.startswith(TRANS)
        self.dpp = "_dpp" in op or "row_" in rest or "quad_perm" in rest
        self.ds = op.startswith("ds_")
        self.vmem = op.startswith(("buffer_", "global_"))
        self.salu = op.startswith("s_")
        self.dma = self.vmem and re.search(r"\blds\b", rest) is not None
        self.store = self.vmem and "store" in op
        if self.mfma:
            self.wr, self.rd, self.srcc = R[0], allr(1), R[3]
            self.ab = R[1] | R[2]
            self.passes = 8 if "32x32x16" in op else 4
        elif op.startswith("v_permlane"):
            self.wr = self.rd = R[0] | R[1]
        elif self.valu:
            self.wr, self.rd = R[0], allr(1)
            if op.startswith(("v_fmac", "v_dot2c")) or self.dpp:
                self.rd = self.rd | R[0]
        elif self.ds:
            if op.startswith(("ds_read", "ds_bpermute")):
                self.wr, self.rd = R[0], allr(1)
            else:
                self.rd = allr(0)
            if "addtid" in op:
                self.rd = self.rd | {("x", "m0")}
        elif self.vmem:
            if self.store:
                self.rd = allr(0)
                if op.endswith(("x3", "x4")):
                    self.data = R[0] if op.startswith("buffer") else R[1]
            elif self.dma:
                self.rd = allr(0) | {("x", "m0")}
            else:
                self.wr, self.rd = R[0], allr(1)
        elif self.salu:
            if op.startswith(NO_DST_S):
                self.rd = allr(0)
            else:
                self.wr, self.rd = R[0], allr(1)

    skippable = False

    def states(self):
        if self.label or self.skippable:
            return 0
        if self.op == "s_nop":
            return int(self.text.split()[1]) + 1
        return 1


def _need(p, c):
    n = 0
    isv = lambda s: {r for r in s if r[0] == "v"}
    iss = lambda s: {r for r in s if r[0] == "s" or r == ("x", "vcc")}
    if p.mfma:
        big = p.passes == 8
        if c.mfma:
            if p.wr & c.ab:
                n = max(n, 12 if big else 8)
            if p.wr & c.srcc and not (p.wr == c.srcc and p.passes == c.passes):
                n = max(n, 10 if big else 6)
            if p.wr & c.wr and not p.wr & c.srcc:
                n = max(n, 12 if big else 8)
        elif c.valu or c.ds or c.vmem:
            if p.wr & (c.rd | c.wr):
                n = max(n, 12 if big else 8)
            if c.valu and p.srcc & c.wr:
                n = max(n, 7 if big else 3)
    elif p.valu:
        wv, ws = isv(p.wr), iss(p.wr)
        if c.mfma and wv & c.rd:
            n = max(n, 2)
        if c.valu:
            if p.trans and not c.trans and wv & c.rd:
                n = max(n, 1)
            if c.op.startswith(("v_readfirstlane", "v_readlane")) and wv & c.rd:
                n = max(n, 1)
            if (c.dpp or c.op.startswith("v_permlane")) and wv & c.rd:
                n = max(n, 2)
            if ws & c.rd:
                n = max(n, 4 if c.op.startswith(("v_readlane", "v_writelane")) else 2)
            if ("op_sel" in p.text or "sdwa" in p.op) and wv & (c.rd | c.wr):
                n = max(n, 1)
        if c.vmem and ws & c.rd:
            n = max(n, 5)
        if p.trans and (c.vmem or c.ds) and wv & c.rd:
            n = max(n, 1)
    elif p.salu:
        if ("x", "m0") in p.wr and ("x", "m0") in c.rd and (c.dma or c.ds):
            n = max(n, 1)
    elif p.store and p.data:
        if p.data & c.wr:
            n = max(n, 2 if (c.valu or c.mfma) else 1)
    return n


def fix_hazards(lines):
    out = []
    hist = []
    added = 0
    for text in lines:
        ins = Ins(text)
        if ins.label and text.endswith(":"):
            hits = [i for i, p in enumerate(hist) if "branch" in p.op and p.text.split()[-1] == text[:-1]]
            if hits:
                for p in hist[hits[0] + 1:]:
                    p.skippable = True
        if not ins.label:
            dist, pad = 0, 0
            for p in reversed(hist):
                if dist >= 12:
                    break
                if not p.label:
                    pad = max(pad, _need(p, ins) - dist)
                dist += p.states()
            if pad > 0:
                nop = f"s_nop {pad - 1}"
                out.append(nop)
                hist.append(Ins(nop))
                added += pad
        out.append(text)
        hist.append(ins)
        if len(hist) > 120:
            hist = hist[-80:]
    return out, added


class Stream:
    uid = 0

    def __init__(self, name):
        self.name = name
        self.L = []
        self.vm = self.vm_done = 0
        self.lg = self.lg_done = 0
        self.cost = 0
        self.nbar = 0

    def e(self, text):
        for t in text.split("\n"):
            t = t.strip()
            if not t:
                continue
            self.L.append(t)
            op = t.split()[0]
            if op.startswith(TRANS):
                self.cost += 10
            elif op.startswith("v_mfma"):
                self.cost += 32 if "32x32" in op else 16
            elif op.startswith(("buffer_", "global_")):
                self.cost += 10
            elif op.startswith("ds_write_b128"):
                self.cost += 16
            elif not op.endswith(":"):
                self.cost += 5

    def vmem(self, text):
        assert self.vm - self.vm_done < 63
        self.e(text)
        self.vm += 1
        return self.vm

    def ds(self, text):
        if self.lg - self.lg_done >= 15:
            self.wait(lg=self.lg - 11)
        self.e(text)
        self.lg += 1
        return self.lg

    def wait(self, vm=None, lg=None):
        parts = []
        if vm is not None and vm > self.vm_done:
            parts.append(f"vmcnt({min(self.vm - vm, 63)})")
            self.vm_done = max(vm, self.vm - 63)
        if lg is not None and lg > self.lg_done:
            parts.append(f"lgkmcnt({min(self.lg - lg, 15)})")
            self.lg_done = max(lg, self.lg - 15)
        if parts:
            self.e("s_waitcnt " + " ".join(parts))

    def wait_all_lg(self):
        self.e("s_waitcnt lgkmcnt(0)")
        self.lg_done = self.lg

    def barrier(self, name=""):
        self.nbar += 1
        self.e("s_barrier" + (f" ; {name}" if name else ""))

    def label(self, base):
        Stream.uid += 1
        return f"L_{base}_{Stream.uid}"


class Addr:
    def __init__(self, s, reg, base):
        self.s, self.reg, self.base = s, reg, base

    def off(self, target, rebase_to=None):
        d = target - self.base
        if not 0 <= d <= 65535:
            nb = target if rebase_to is None else rebase_to
            self.s.e(f"v_add_u32 v{self.reg}, {(nb - self.base) & 0xffffffff:#x}, v{self.reg}")
            self.base = nb
            d = target - nb
            assert 0 <= d <= 65535
        return f"v{self.reg}", d
```

```python
import re
import struct
import sys
from collections import deque

from asmlib import Addr, Stream, fix_hazards, vr

NAME = "recurrent_scan__ssm_conv_h3__glu_gated_geglu__prompt"

DEFAULTS = dict(stamp=0, st="", pf=6, upto="all", conv_lead=10, conv_grp=3, poll_limit=40000, nt="", diag="",
                fill_from=2, fill_n=3, gap=5, kflip=1, abl="", prio_b=0, qgap=30, p0_at=16, drain=22,
                b0_at=72, conv_valu=2, remap=0, skew=1, hold=0, ygo=34)

EPOCH, STATS, FKV, FY, FH, STAMPS = 0x0, 0x8000, 0x10000, 0x20000, 0x40000, 0xA0000
KVT, YB, HB, WS_END = 0x100000, 0x300000, 0x500000, 0xC00000
TAG_STEP = 0x9E3779B1

X1, X2, X0 = 0, 33280, 66560
ACC0, ST1, ST2, SPARE = 99840, 116224, 132608, 148992
KVB, KVS = SPARE, 5120
PFL = KVB + 4608
LDS_BYTES = 163840
G = 2
CH = 16384 + 4096 * G
XSLOT = {2: X1, 3: X2, 4: X0, 5: X1, 6: X2, 7: X0}
RA = (X2, ST1, X0)

sX, sWS, sWD, sOUT, sWG, sWU, sK, sV, sSH, sSK = 4, 8, 12, 16, 20, 24, 28, 32, 36, 40
sDP, sD, sT, sW, sW8 = 44, 46, 47, 48, 49
sXCD, sSLOT, sI, sJ, sROT, sP2, sDB, sBLK = 50, 51, 52, 53, 54, 55, 56, 57
sW1K, sW4K, sW8K, sW8320 = 61, 62, 63, 64
sA, sB_, sC, sE, sF, sCNT, sG = 65, 66, 67, 68, 1, 70, 71
sCQ, sCH = 3, 0
sBLA = 28
BLK = [sBLK, sBLK + 1, sBLK + 2, sBLK + 3, 37, 38, 39]
sSTAMP = 72
NSTAMP = 15

srd = lambda n: f"s[{n}:{n + 3}]"
fhex = lambda x: "0x%08x" % struct.unpack("<I", struct.pack("<f", x))[0]
LOG2E = 1.4426950408889634
MFMA32 = "v_mfma_f32_32x32x16_bf16"
MFMA16 = "v_mfma_f32_16x16x32_bf16"


class Gen:
    def __init__(self, **kw):
        self.o = dict(DEFAULTS, **kw)
        self.stamp_names = {}

    def stamp(self, s, name, group=""):
        if not self.o["stamp"]:
            return
        names = self.stamp_names.setdefault(s.name, [])
        if name != "end" and self.o["st"] not in group.split("|"):
            return
        if name not in names:
            assert len(names) < NSTAMP - 2, names
            names.append(name)
        r = sSTAMP + 4 + 2 * names.index(name)
        s.e(f"s_memtime s[{r}:{r + 1}]")

    def finish(self, s):
        if self.o["stamp"]:
            s.e("s_waitcnt vmcnt(0)")
            self.stamp(s, "end")
            self.diag(s)
            s.e(f"""s_waitcnt lgkmcnt(0)
                s_lshl_b32 s{sA}, s2, 9
                s_lshl_b32 s{sB_}, s{sW8}, 6
                s_add_u32 s{sA}, s{sA}, s{sB_}
                s_add_u32 s{sA}, s{sA}, {STAMPS}
                v_mov_b32 v1, 0""")
            for k in range(2 + len(self.stamp_names[s.name])):
                s.e(f"v_mov_b32 v2, s{sSTAMP + 2 * k}")
                s.e(f"buffer_store_dword v2, v1, {srd(sWS)}, s{sA} offen offset:{4 * k}")
        s.e("s_endpgm")

    def diag(self, s):
        if not self.o["diag"]:
            return
        stream, name, wg, mult = self.o["diag"].split(":")
        if stream != s.name:
            return
        loop, skip = s.label("diag"), s.label("nodiag")
        names = self.stamp_names[s.name]
        e = sSTAMP + 4 + 2 * names.index("end")
        s.e(f"s_waitcnt lgkmcnt(0)\ns_cmp_lg_u32 s2, {wg}\ns_cbranch_scc1 {skip}")
        if name == "fixed":
            s.e(f"s_mov_b32 s{sA}, {mult}")
        else:
            r = sSTAMP + 2 + 2 * (names.index(name) + 1)
            s.e(f"s_sub_u32 s{sA}, s{r}, s{sSTAMP + 2}\ns_mul_i32 s{sA}, s{sA}, {mult}")
        s.e(f"""s_min_u32 s{sA}, s{sA}, 2000000
            {loop}:
            s_memtime s[{sE}:{sE + 1}]
            s_waitcnt lgkmcnt(0)
            s_sub_u32 s{sB_}, s{sE}, s{e}
            s_cmp_lt_u32 s{sB_}, s{sA}
            s_cbranch_scc1 {loop}
            {skip}:""")

    @staticmethod
    def capture(fn):
        tmp = Stream("tmp")
        fn(tmp)
        assert tmp.vm == 0 and tmp.lg == 0
        out = []
        for line in tmp.L:
            if out and out[-1].split("\n")[-1].startswith("s_cmp"):
                out[-1] += "\n" + line
            else:
                out.append(line)
        return out

    def poll(self, s, tok, issue, regs, mask=None):
        def check():
            s.e(f"v_cmp_ne_u32 vcc, s{sT}, v{regs[0]}")
            for r in regs[1:]:
                s.e(f"v_cmp_ne_u32 s[{sE}:{sE + 1}], s{sT}, v{r}")
                s.e(f"s_or_b64 vcc, vcc, s[{sE}:{sE + 1}]")
            if mask:
                s.e(f"s_and_b64 vcc, vcc, {mask:#x}")
        ok, again = s.label("ok"), s.label("poll")
        s.wait(vm=tok)
        check()
        s.e(f"s_cbranch_vccz {ok}")
        s.e(f"s_mov_b32 s{sCNT}, 0")
        s.e(f"{again}:")
        for t in issue:
            s.e(t)
        s.e("s_waitcnt vmcnt(0)")
        check()
        s.e(f"""s_add_u32 s{sCNT}, s{sCNT}, 1
            s_cmp_gt_u32 s{sCNT}, {self.o['poll_limit']}
            s_cbranch_scc1 {ok}
            s_cbranch_vccnz {again}
            {ok}:""")

    def flag(self, s, vT, vZ, soff):
        return s.vmem(f"buffer_store_dword v{vT}, v{vZ}, {srd(sWS)}, {soff} offen sc1")

    def lane0_offset(self, s, v):
        s.e(f"v_min_u32 v{v}, 1, v0\nv_lshlrev_b32 v{v}, 30, v{v}")

    def tag_ready(self, s):
        s.wait_all_lg()
        s.e(f"s_add_u32 s{sT}, s{sT}, {TAG_STEP:#x}")

    def row_of_group(self, s, dst, g):
        s.e(f"""s_add_u32 s{dst}, s{sCQ}, {g >> 1}
            s_and_b32 s{dst}, s{dst}, 3
            s_lshl_b32 s{dst}, s{dst}, 6
            s_add_u32 s{dst}, s{dst}, s{sI}""")
        if g & 1:
            s.e(f"s_add_u32 s{dst}, s{dst}, 32")

    def block_ids(self, s):
        s.e(f"""s_add_u32 s{sE}, s{sDB}, s{sXCD}
            s_mul_i32 s{sA}, s{sE}, 37
            s_lshr_b32 s{sA}, s{sA}, 8
            s_mul_i32 s{sA}, s{sA}, 7
            s_sub_u32 s{sE}, s{sE}, s{sA}""")
        for b in range(7):
            s.e(f"""s_add_u32 s{sA}, s{sW}, {4 * b}
                s_mul_i32 s{sB_}, s{sA}, 37
                s_lshr_b32 s{sB_}, s{sB_}, 8
                s_mul_i32 s{sC}, s{sB_}, 7
                s_sub_u32 s{sA}, s{sA}, s{sC}
                s_add_u32 s{sA}, s{sA}, s{sE}
                s_sub_u32 s{sC}, s{sA}, 7
                s_cmp_ge_u32 s{sA}, 7
                s_cselect_b32 s{sA}, s{sC}, s{sA}
                s_sub_u32 s{sB_}, s{sP2}, s{sB_}
                s_and_b32 s{sB_}, s{sB_}, 3
                s_mul_i32 s{sB_}, s{sB_}, 7
                s_add_u32 s{BLK[b]}, s{sA}, s{sB_}""")

    def hflag_addr(self, s, v, t, blks):
        s.e(f"""v_bfe_u32 v{t}, v0, 2, 2
            v_mov_b32 v{v}, s{blks[0]}""")
        for b in range(1, len(blks)):
            s.e(f"""v_mov_b32 v{t + 1}, s{blks[b]}
                v_cmp_eq_u32 vcc, {b}, v{t}
                v_cndmask_b32 v{v}, v{v}, v{t + 1}, vcc""")
        s.e(f"""s_mul_i32 s{sA}, s{sP2}, {2 * 3584}
            s_add_u32 s{sA}, s{sA}, {FH}
            v_and_b32 v{t}, 3, v0
            v_lshlrev_b32 v{t}, 2, v{t}
            v_lshl_add_u32 v{v}, v{v}, 7, v{t}
            v_add_u32 v{v}, s{sA}, v{v}""")

    def wd_src_addr(self, s, vD, t):
        s.e(f"""v_lshrrev_b32 v{t}, 3, v0
            v_bfe_u32 v{t + 1}, v0, 4, 1
            v_lshlrev_b32 v{t + 1}, 2, v{t + 1}
            v_and_b32 v{vD}, 7, v0
            v_xor_b32 v{vD}, v{vD}, v{t + 1}
            v_lshlrev_b32 v{vD}, 4, v{vD}
            v_lshl_add_u32 v{vD}, v{t}, 10, v{vD}""")

    def wd_read_addrs(self, s, vR0, vR1, t, base):
        s.e(f"""v_lshrrev_b32 v{t}, 5, v0
            v_lshlrev_b32 v{vR0}, 10, v{t}
            v_bfe_u32 v{t}, v0, 2, 2
            v_lshl_add_u32 v{vR0}, v{t}, 7, v{vR0}
            v_bfe_u32 v{t}, v0, 3, 1
            v_lshl_add_u32 v{vR0}, v{t}, 6, v{vR0}
            v_bfe_u32 v{t}, v0, 4, 1
            v_lshl_add_u32 v{vR0}, v{t}, 5, v{vR0}
            v_and_b32 v{t}, 3, v0
            v_lshl_add_u32 v{vR0}, v{t}, 3, v{vR0}
            v_xor_b32 v{vR1}, 64, v{vR0}
            s_add_u32 s{sA}, s{sW8K}, {base}
            v_add_u32 v{vR0}, s{sA}, v{vR0}
            v_add_u32 v{vR1}, s{sA}, v{vR1}""")

    def wd_dma(self, s, b, wpart, lds):
        s.e(f"s_add_u32 m0, s{wpart}, {lds}\ns_add_u32 s{sBLA + b}, s{sBLA + b}, 8192")
        return s.vmem(f"buffer_load_dwordx4 v8, {srd(sWD)}, s{sBLA + b} offen lds")

    def lds_spin(self, s, addr_reg, dst, quad, want=1, payload=None):
        spin, free = s.label("spin"), s.label("spinok")
        s.e(f"s_mov_b32 s{sCNT}, 0\n{spin}:")
        s.e(f"ds_read_b128 {vr(dst, 4)}, v{addr_reg}" if quad else f"ds_read_b32 v{dst}, v{addr_reg}")
        if payload:
            s.e(payload)
        s.e("s_waitcnt lgkmcnt(0)")
        s.lg_done = s.lg
        if quad:
            s.e(f"""v_and_b32 v{dst}, v{dst}, v{dst + 1}
                v_and_b32 v{dst + 2}, v{dst + 2}, v{dst + 3}
                v_and_b32 v{dst}, v{dst}, v{dst + 2}""")
        s.e(f"""v_cmp_ne_u32 vcc, {want}, v{dst}
            s_cbranch_vccz {free}
            s_add_u32 s{sCNT}, s{sCNT}, 1
            s_cmp_le_u32 s{sCNT}, {64 * self.o['poll_limit']}
            s_cbranch_scc1 {spin}
            {free}:""")

    def epi_instrs(self, AG, CS, P, CON, stp):
        AU = AG + 8
        M, CA, CB, SD2 = (CON + k for k in range(4))
        c0 = -2.0 * LOG2E * 0.7978845608028654
        head = [f"v_and_b32 v{SD2}, 0xffff0000, v{stp}", f"v_rcp_f32 v{CA}, v{SD2}", f"v_lshlrev_b32 v{M}, 16, v{stp}",
                f"v_mul_f32 v{SD2}, v{SD2}, v{SD2}", f"v_mul_f32 v{CB}, v{CA}, v{CA}",
                f"v_mul_f32 v{CA}, {fhex(c0)}, v{CA}", f"v_mul_f32 v{CB}, {fhex(0.044715)}, v{CB}",
                f"v_mul_f32 v{CB}, v{CB}, v{CA}"]
        R = range(8)
        mix = lambda a, b: [x for pair in zip(a, b) for x in pair]
        body = [f"v_fma_f32 v{AG + k}, -v{M}, v{CS + k}, v{AG + k}" for k in R]
        body += [f"v_mul_f32 v{P[k]}, v{AG + k}, v{AG + k}" for k in R]
        body += [f"v_fma_f32 v{P[k]}, v{P[k]}, v{CB}, v{CA}" for k in R]
        body += [f"v_mul_f32 v{P[k]}, v{P[k]}, v{AG + k}" for k in R]
        body += mix([f"v_exp_f32 v{P[k]}, v{P[k]}" for k in R],
                    [f"v_fma_f32 v{AU + k}, -v{M}, v{CS + 8 + k}, v{AU + k}" for k in R])
        body += [f"v_fma_f32 v{P[k]}, v{P[k]}, v{SD2}, v{SD2}" for k in R]
        body += mix([f"v_rcp_f32 v{P[k]}, v{P[k]}" for k in R],
                    [f"v_mul_f32 v{AU + k}, v{AU + k}, v{AG + k}" for k in R])
        body += [f"v_mul_f32 v{AU + k}, v{AU + k}, v{P[k]}" for k in R]
        body += [f"v_cvt_pk_bf16_f32 v{AG + x}, v{AU + 2 * x}, v{AU + 2 * x + 1}" for x in range(4)]
        return head, body

    def partial_addrs(self, s, v, t):
        s.e(f"""v_and_b32 v{t}, 31, v0
            v_lshlrev_b32 v{t}, 8, v{t}
            v_add_u32 v{t}, s{sW8K}, v{t}
            v_lshrrev_b32 v{t + 1}, 5, v0
            v_and_b32 v{t + 2}, 7, v0
            v_xor_b32 v{t + 1}, v{t + 1}, v{t + 2}""")
        for i in range(4):
            s.e(f"""v_xor_b32 v{t + 2}, {2 * i}, v{t + 1}
                v_lshl_add_u32 v{v + i}, v{t + 2}, 4, v{t}""")
        return [Addr(s, v + i, 0) for i in range(4)]

    def partial_write(self, s, pa, acc, region, dt, i):
        r, o = pa[i].off(region + dt * 128, region)
        return s.ds(f"ds_write_b128 {r}, {vr(acc + 16 * dt + 4 * i, 4)} offset:{o}")

    def h_soff(self, s, b, th):
        s.e(f"""s_lshl_b32 s{sA}, s{BLK[b]}, 12
            s_add_u32 s{sC}, s{sA}, s{sF}""")
        if th:
            s.e(f"s_add_u32 s{sC}, s{sC}, 114688")

    def entry(self):
        s = Stream("entry")
        if self.o["stamp"]:
            s.e(f"s_memrealtime s[{sSTAMP}:{sSTAMP + 1}]")
            s.e(f"s_memtime s[{sSTAMP + 2}:{sSTAMP + 3}]")
        s.e("s_cmp_ge_u32 s2, 256\ns_cbranch_scc1 L_exit")
        if self.o["remap"] == 1:
            s.e(f"""s_lshr_b32 s{sA}, s2, 4
                s_xor_b32 s{sB_}, s2, {(14 ^ 28) << 3}
                s_cmp_eq_u32 s{sA}, 7
                s_cselect_b32 s2, s{sB_}, s2
                s_cmp_eq_u32 s{sA}, 14
                s_cselect_b32 s2, s{sB_}, s2""")
        if self.o["remap"] == 2:
            s.e(f"""s_lshr_b32 s{sA}, s2, 5
                s_xor_b32 s{sB_}, s2, {(3 ^ 5) << 5}
                s_cmp_eq_u32 s{sA}, 3
                s_cselect_b32 s2, s{sB_}, s2
                s_cmp_eq_u32 s{sA}, 5
                s_cselect_b32 s2, s{sB_}, s2""")
        for reg, slot in ((sWG, 7), (sWU, 8), (sX, 0), (sWS, 12), (sK, 1), (sV, 2), (sSH, 3), (sSK, 4), (sDP, 5),
                          (sWD, 9), (sOUT, 10)):
            s.e(f"s_load_dwordx2 s[{reg}:{reg + 1}], s[0:1], {slot * 8}")
        s.e(f"""v_lshrrev_b32 v1, 6, v0
            s_lshr_b32 s{sSLOT}, s2, 3
            v_readfirstlane_b32 s{sW8}, v1
            v_and_b32 v0, 63, v0
            s_cmp_lg_u32 s{sW8}, 0
            s_cbranch_scc1 L_nopf
            s_getpc_b64 s[{sE}:{sE + 1}]
            L_pc:
            s_sub_u32 s{sE}, s{sE}, L_pc-{NAME}_kernel
            s_subb_u32 s{sE + 1}, s{sE + 1}, 0
            v_and_b32 v1, 15, v0
            v_lshlrev_b32 v1, 5, v1
            v_add_u32 v1, s{sSLOT}, v1
            v_lshlrev_b32 v1, 7, v1
            v_min_u32 v1, L_code_end-{NAME}_kernel-4, v1
            global_load_dword v255, v1, s[{sE}:{sE + 1}]
            L_nopf:""")
        self.srd_consts(s, (sX, sWG, sWU))
        s.e(f"""s_and_b32 s{sW}, s{sW8}, 3
            s_and_b32 s{sXCD}, s2, 7
            s_and_b32 s{sB_}, s{sXCD}, 1
            s_lshl_b32 s{sA}, s{sB_}, 2
            s_lshr_b32 s{sCQ}, s{sXCD}, 1
            s_and_b32 s{sC}, s{sSLOT}, 3
            s_lshr_b32 s{sDB}, s{sSLOT}, 2
            s_add_u32 s{sI}, s{sA}, s{sC}
            s_lshl_b32 s{sI}, s{sI}, 8
            s_mul_i32 s{sJ}, s{sCQ}, 7
            s_add_u32 s{sJ}, s{sJ}, s{sDB}
            s_lshl_b32 s{sROT}, s{sC}, 1
            s_add_u32 s{sROT}, s{sROT}, s{sDB}""")
        if self.o["kflip"]:
            s.e(f"s_add_u32 s{sROT}, s{sROT}, s{sB_}")
        s.e(f"""s_lshl_b32 s{sW1K}, s{sW}, 10
            s_lshl_b32 s{sW4K}, s{sW}, 12
            s_lshl_b32 s{sW8K}, s{sW}, 13
            s_cmp_ge_u32 s{sSLOT}, 28
            s_cbranch_scc1 L_role_p
            s_cmp_lt_u32 s{sW8}, 4
            s_cbranch_scc1 L_GA""")
        return s

    SIZES = {sX: 2097152, sWS: WS_END, sWD: 1835008, sOUT: 2097152, sWG: 1835008, sWU: 1835008, sK: 2097152,
             sV: 2097152, sSH: 4096, sSK: 2097152}

    def srd_consts(self, s, regs):
        for reg in regs:
            s.e(f"s_mov_b32 s{reg + 2}, {self.SIZES[reg]}\ns_mov_b32 s{reg + 3}, 0x00020000")

    def pair_index(self, s):
        s.e(f"""s_and_b32 s{sA}, s{sXCD}, 1
            s_lshl_b32 s{sA}, s{sA}, 2
            s_add_u32 s{sP2}, s{sA}, s{sCQ}
            s_lshl_b32 s{sP2}, s{sP2}, 2
            s_and_b32 s{sA}, s{sSLOT}, 3
            s_add_u32 s{sP2}, s{sP2}, s{sA}
            s_mul_i32 s{sA}, s{sA}, {self.o['skew']}
            s_add_u32 s{sDB}, s{sDB}, s{sA}
            s_and_b32 s{sDB}, s{sDB}, 7""")

    def late_scalars(self, s):
        s.e(f"""s_waitcnt lgkmcnt(0)
            s_add_u32 s{sCH}, s2, 32
            s_and_b32 s{sCH}, s{sCH}, 255
            s_lshl_b32 s{sA}, s{sCH}, 2
            s_load_dword s{sT}, s[{sWS}:{sWS + 1}], {EPOCH}
            s_load_dword s{sD}, s[{sDP}:{sDP + 1}], s{sA}""")

    def stats_load(self, s):
        s.e(f"""v_lshrrev_b32 v22, 5, v0
            v_and_b32 v23, 31, v0
            v_lshlrev_b32 v23, 4, v23
            v_lshl_add_u32 v23, v22, 10, v23
            s_lshl_b32 s{sA}, s{sCQ}, 3
            s_add_u32 s{sA}, s{sA}, s{sDB}
            s_lshl_b32 s{sA}, s{sA}, 2
            s_add_u32 s{sA}, s{sA}, s{sW}
            s_lshl_b32 s{sA}, s{sA}, 1
            s_add_u32 s{sA}, s{sA}, s{sI}
            s_lshl_b32 s{sB_}, s{sA}, 10
            s_lshl_b32 s{sA}, s{sA}, 4
            s_lshl_b32 s{sC}, s{sW}, 4
            s_sub_u32 s{sA}, s{sA}, s{sC}
            s_add_u32 s{sA}, s{sA}, {STATS}
            v_lshlrev_b32 v22, 3, v22
            v_add_u32 v22, s{sA}, v22""")
        self.late_scalars(s)
        s.vmem(f"buffer_load_dwordx4 v[224:227], v23, {srd(sX)}, s{sB_} offen")
        return s.vmem(f"buffer_load_dwordx4 v[228:231], v23, {srd(sX)}, s{sB_} offen offset:512")

    def stats(self, s, tok):
        R, F = 224, 232

        def reduce(r):
            for sh in (8, 4, 2, 1):
                s.e(f"v_add_f32_dpp v{r}, v{r}, v{r} row_ror:{sh} row_mask:0xf bank_mask:0xf")
            s.e(f"v_mov_b32 v{r + 1}, v{r}\nv_permlane16_swap_b32 v{r}, v{r + 1}\nv_add_f32 v{r}, v{r}, v{r + 1}")

        s.wait(vm=tok)
        for k in range(8):
            s.e(f"v_lshlrev_b32 v{F + 2 * k}, 16, v{R + k}\nv_and_b32 v{F + 2 * k + 1}, 0xffff0000, v{R + k}")
        for k in range(8):
            s.e(f"v_add_f32 v{R + k}, v{F + 2 * k}, v{F + 2 * k + 1}")
        for w in (4, 2, 1):
            for k in range(w):
                s.e(f"v_add_f32 v{R + k}, v{R + k}, v{R + k + w}")
        reduce(R)
        s.e(f"v_mul_f32 v{R}, {fhex(1 / 512)}, v{R}")
        for k in range(16):
            s.e(f"v_sub_f32 v{F + k}, v{F + k}, v{R}")
        s.e(f"v_mul_f32 v{R + 2}, v{F}, v{F}\nv_mul_f32 v{R + 3}, v{F + 1}, v{F + 1}")
        for k in range(2, 16):
            s.e(f"v_fmac_f32 v{R + 2 + (k & 1)}, v{F + k}, v{F + k}")
        V = R + 2
        s.e(f"v_add_f32 v{V}, v{V}, v{V + 1}")
        reduce(V)
        s.e(f"""v_mul_f32 v{V}, {fhex(1 / 512)}, v{V}
            v_cvt_pk_bf16_f32 v{V}, v{V}, v{V}
            v_and_b32 v{V}, 0xffff0000, v{V}
            v_add_f32 v{V}, {fhex(1e-5)}, v{V}
            v_cvt_pk_bf16_f32 v{V}, v{V}, v{V}
            v_and_b32 v{V}, 0xffff0000, v{V}
            v_sqrt_f32 v{V}, v{V}""")
        self.tag_ready(s)
        s.e(f"""v_cvt_pk_bf16_f32 v{R + 5}, v{R}, v{V}
            v_mov_b32 v{R + 4}, s{sT}
            s_mov_b32 exec_lo, 1
            s_mov_b32 exec_hi, 1""")
        s.vmem(f"buffer_store_dwordx2 {vr(R + 4, 2)}, v22, {srd(sWS)}, 0 offen sc1")
        s.e("s_mov_b64 exec, -1")

    KV_K, KV_V, KV_T = 128, 172, 204

    def kv_load(self, s, mid=None):
        K, V, T = self.KV_K, self.KV_V, self.KV_T
        s.e(f"""v_lshrrev_b32 v16, 3, v0
            v_and_b32 v17, 7, v0
            v_lshlrev_b32 v18, 4, v17
            v_lshl_add_u32 v18, v16, 13, v18
            s_sub_u32 s{sA}, s2, 224
            s_lshl_b32 s{sA}, s{sA}, 16
            s_lshl_b32 s{sB_}, s{sW8}, 7
            s_add_u32 s{sA}, s{sA}, s{sB_}
            s_add_u32 s{sB_}, s{sA}, 4096
            s_sub_u32 s{sC}, s{sA}, 3072
            v_add_u32 v19, s{sC}, v18
            v_lshlrev_b32 v20, 6, v17
            s_lshl_b32 s{sC}, s{sW8}, 9""")
        row = lambda dst, buf, i: s.vmem(f"buffer_load_dwordx4 {vr(dst, 4)}, v18, {srd(buf)}, "
                                         f"s{sB_ if i >= 4 else sA} offen offset:{(i & 3) * 1024}")
        for z in range(4):
            s.vmem(f"buffer_load_dwordx4 {vr(T + 4 * z, 4)}, v20, {srd(sSH)}, s{sC} offen offset:{16 * z}")
        for i in (5, 6, 7):
            row(K + 4 * (3 + i), sK, i)
            s.vmem(f"buffer_load_dwordx4 {vr(K + 4 * (i - 5), 4)}, v19, {srd(sK)}, 0 offen offset:{(i - 5) * 1024}")
        for i in range(5):
            kt = row(K + 4 * (3 + i), sK, i)
        if mid:
            mid()
        s.barrier("p1")
        for i in range(8):
            vt = row(V + 4 * i, sV, i)
        return kt, vt

    def kv_compute(self, s, kt, vt):
        K, V, T = self.KV_K, self.KV_V, self.KV_T
        KS, KF, TP, PK = 24, 88, 100, 104

        def unpack(dst, src, e):
            s.e(f"v_and_b32 v{dst}, 0xffff0000, v{src}" if e else f"v_lshlrev_b32 v{dst}, 16, v{src}")

        s.e(f"""v_sub_u32 v19, 7, v17
            v_lshl_add_u32 v19, v19, 3, v16
            v_lshlrev_b32 v19, 2, v19
            v_lshlrev_b32 v20, 4, v17
            v_lshl_add_u32 v20, v16, 15, v20
            s_sub_u32 s{sB_}, s2, 224
            s_lshl_b32 s{sB_}, s{sB_}, 7
            s_lshl_b32 s{sC}, s{sW8}, 18
            s_sub_u32 s{sC}, s{sC}, s{sB_}
            s_add_u32 s{sC}, s{sC}, {KVT + 3968}""")
        s.wait(vm=kt)
        for c in range(8):
            for i in range(4):
                unpack(TP + i, T + 2 * c + (i >> 1), i & 1)
            for z in range(11):
                unpack(KF + z, K + 4 * z + (c >> 1), c & 1)
            for t in range(8):
                s.e(f"v_mul_f32 v{KS + 8 * c + t}, v{KF + t}, v{TP + 3}")
            for i in (2, 1, 0):
                for t in range(8):
                    s.e(f"v_fmac_f32 v{KS + 8 * c + t}, v{KF + t + 3 - i}, v{TP + i}")
        s.wait(vm=vt)
        pend = []

        def store(c, tok):
            s.wait(lg=tok)
            t = s.vmem(f"buffer_store_dwordx4 {vr(K + 4 * c, 4)}, v20, {srd(sWS)}, s{sC} offen sc1")
            s.e(f"s_add_u32 s{sC}, s{sC}, 4096")
            return t

        for c in range(8):
            for z in range(8):
                unpack(KF + z, V + 4 * z + (c >> 1), c & 1)
            for t in range(8):
                s.e(f"v_mul_f32 v{KS + 8 * c + t}, v{KS + 8 * c + t}, v{KF + t}")
            p = PK + 4 * (c & 1)
            for x in range(4):
                s.e(f"v_cvt_pk_bf16_f32 v{p + x}, v{KS + 8 * c + 7 - 2 * x}, v{KS + 8 * c + 6 - 2 * x}")
            if pend:
                store(*pend.pop())
            for x in range(4):
                tok = s.ds(f"ds_bpermute_b32 v{K + 4 * c + x}, v19, v{p + x}")
            pend.append((c, tok))
        return store(*pend.pop())

    def kv_flag(self, s, tok, vT, vZ):
        s.e(f"""s_sub_u32 s{sA}, s2, 224
            s_lshl_b32 s{sA}, s{sA}, 7
            s_lshl_b32 s{sB_}, s{sW8}, 12
            s_add_u32 s{sA}, s{sA}, s{sB_}
            s_add_u32 s{sA}, s{sA}, {FKV}""")
        s.wait(vm=tok)
        self.flag(s, vT, vZ, f"s{sA}")

    A_XF, A_ACC, A_ONE, A_W = 16, (48, 64, 80, 96), 112, 128
    sHS, sHF, sGR, sYO = 20, 28, 30, 34
    SIDE = 96

    def a_post_setup(self, s):
        self.pair_index(s)
        s.e(f"""v_and_b32 v16, 15, v0
            v_sub_u32 v17, 15, v16
            v_and_b32 v17, 3, v17
            v_add_u32 v8, v16, v17
            v_lshlrev_b32 v8, 1, v8
            v_mul_u32_u24 v17, 4160, v17
            v_add_u32 v8, v8, v17
            v_lshrrev_b32 v17, 4, v0
            v_lshl_add_u32 v8, v17, 4, v8
            s_lshr_b32 s{sA}, s{sW}, 1
            s_mul_i32 s{sB_}, s{sA}, 16640
            s_add_u32 s{sB_}, s{sB_}, {X1 + 2}
            v_add_u32 v8, s{sB_}, v8
            v_lshlrev_b32 v9, 4, v17
            v_lshlrev_b32 v16, 5, v16
            v_sub_u32 v9, v9, v16
            s_mul_i32 s{sB_}, s{sA}, {KVS}
            s_add_u32 s{sB_}, s{sB_}, {KVB + 480}
            v_add_u32 v9, s{sB_}, v9
            v_lshlrev_b32 v15, 4, v0""")
        self.lane0_offset(s, 11)
        self.srd_consts(s, (sOUT,))
        s.e(f"""s_and_b32 s{sA}, s{sW}, 1
            s_lshl_b32 s{sA}, s{sA}, 15
            s_lshr_b32 s{sB_}, s{sW}, 1
            s_lshl_b32 s{sB_}, s{sB_}, 2
            s_add_u32 s{sA}, s{sA}, s{sB_}
            s_lshl_b32 s{sB_}, s{sCH}, 7
            s_add_u32 s{sA}, s{sA}, s{sB_}
            s_add_u32 s{sG}, s{sA}, {FY}""")

    @staticmethod
    def fill(s, q, room):
        while q:
            it = q[0]
            cost = it[0] if isinstance(it, tuple) else 2 if it.startswith(("v_exp", "v_rcp")) else 1
            if cost > room and not (isinstance(it, tuple) and room > 0):
                break
            q.popleft()
            it[1]() if isinstance(it, tuple) else s.e(it)
            room -= cost
        return room

    def side_work(self, q):
        v = self.SIDE
        a, b = v + 14, v + 15
        q.e(f"""s_lshr_b32 s{sB_}, s{sW}, 1
            s_lshl_b32 s{sB_}, s{sB_}, 4
            s_lshr_b32 s{sB_}, s{sD}, s{sB_}
            s_and_b32 s{sB_}, s{sB_}, 0xffff
            v_and_b32 v{a}, 15, v0
            v_lshrrev_b32 v{b}, 4, v0
            v_lshl_add_u32 v{a}, v{b}, 3, v{a}
            v_sub_u32 v{a}, 15, v{a}""")
        for x in range(4):
            m = v + 4 + x
            q.e(f"""v_subrev_u32 v{b}, {2 * x}, v{a}
                v_med3_i32 v{b}, v{b}, 0, 2
                v_lshlrev_b32 v{b}, 3, v{b}
                v_lshlrev_b32 v{m}, v{b}, -1
                v_lshlrev_b32 v{m}, v{b}, v{m}""")
        q.e(f"""v_and_b32 v{b}, 1, v{a}
            v_lshlrev_b32 v{b}, 4, v{b}
            v_lshlrev_b32 v{b}, v{b}, s{sB_}
            v_ashrrev_i32 v{a}, 1, v{a}""")
        for x in range(4):
            q.e(f"v_cmp_eq_u32 s[{sE}:{sE + 1}], {x}, v{a}\nv_cndmask_b32 v{v + x}, 0, v{b}, s[{sE}:{sE + 1}]")
        q.e(f"""v_bfe_u32 v{v + 9}, v0, 1, 4
            v_lshrrev_b32 v{a}, 5, v0
            v_lshl_add_u32 v{v + 9}, v{a}, 4, v{v + 9}
            v_and_b32 v{b}, 1, v0
            v_lshl_add_u32 v{v + 9}, v{b}, 5, v{v + 9}
            v_lshlrev_b32 v{v + 9}, 2, v{v + 9}
            s_andn2_b32 s{sB_}, 1, s{sW}
            s_lshl_b32 s{sB_}, s{sB_}, 10
            s_add_u32 s{sB_}, s{sB_}, 512
            v_mul_u32_u24 v{a}, s{sB_}, v{a}
            v_and_b32 v{v + 10}, 31, v0
            v_lshl_add_u32 v{v + 10}, v{v + 10}, 4, v{a}
            s_lshr_b32 s{self.sYO}, s{sW}, 1
            s_lshl_b32 s{sB_}, s{sCH}, 1
            s_add_u32 s{self.sYO}, s{self.sYO}, s{sB_}
            s_lshl_b32 s{self.sYO}, s{self.sYO}, 12
            s_add_u32 s{self.sYO}, s{self.sYO}, {YB}""")

    def stream_GA(self):
        s = Stream("GA")
        o = self.o
        XF, S, ONE, W = self.A_XF, self.A_ACC, self.A_ONE, self.A_W
        s.e("L_GA:")
        stok = self.stats_load(s)
        s.e(f"""v_bfe_u32 v8, v0, 4, 1
            v_lshrrev_b32 v9, 5, v0
            v_bfe_u32 v10, v0, 2, 2
            v_lshlrev_b32 v1, 11, v8
            v_lshl_add_u32 v1, v9, 10, v1
            v_lshl_add_u32 v1, v10, 7, v1
            v_bfe_u32 v10, v0, 3, 1
            v_lshl_add_u32 v10, v8, 1, v10
            v_xor_b32 v10, s{sW}, v10
            v_lshl_add_u32 v1, v10, 5, v1
            v_and_b32 v10, 1, v0
            v_lshl_add_u32 v1, v10, 4, v1
            v_bfe_u32 v10, v0, 1, 1
            v_lshl_add_u32 v1, v10, 3, v1
            v_add_u32 v1, {X0}, v1
            v_and_b32 v8, 31, v0
            v_bfe_u32 v10, v0, 1, 3
            v_xor_b32 v10, v10, v9
            v_lshlrev_b32 v11, 7, v8
            v_add_u32 v11, {X0}, v11""")
        for k in range(4):
            s.e(f"v_xor_b32 v12, {2 * k}, v10\nv_lshl_add_u32 v{2 + k}, v12, 4, v11")
        s.e(f"""v_mul_u32_u24 v6, 1040, v8
            v_lshl_add_u32 v6, v9, 4, v6""")
        for k in range(4):
            s.e(f"v_mov_b32 v{ONE + k}, 0x3f803f80")
        self.srd_consts(s, (sWS,))
        self.stats(s, stok)
        self.stamp(s, "stats", "p1")
        s.e(f"v_mov_b32 v10, s{sT}\ns_setprio 2")

        def deferred(q):
            q.e("v_lshrrev_b32 v120, 3, v0\nv_lshlrev_b32 v120, 6, v120\nv_lshl_add_u32 v120, v0, 3, v120")
            q.e(f"""s_lshl_b32 s{sB_}, s{sJ}, 12
                s_add_u32 s{sB_}, s{sB_}, s{sW1K}
                s_add_u32 s{sB_}, s{sB_}, {HB}""")
            for z in range(4):
                self.row_of_group(q, sA, 2 * z)
                hs = self.sHS + 2 * z
                q.e(f"""s_lshl_b32 s{self.sGR + z}, s{sA}, 4
                    s_add_u32 s{self.sGR + z}, s{self.sGR + z}, {STATS}
                    s_mul_i32 s{hs}, s{sA}, 3584
                    s_add_u32 s{hs}, s{hs}, s{sB_}
                    s_add_u32 s{hs + 1}, s{hs}, 114688""")
            q.e(f"""s_mul_i32 s{self.sHF}, s{sA}, 112
                s_lshl_b32 s{sB_}, s{sJ}, 7
                s_add_u32 s{self.sHF}, s{self.sHF}, s{sB_}
                s_lshl_b32 s{sB_}, s{sW}, 2
                s_add_u32 s{self.sHF}, s{self.sHF}, s{sB_}
                s_add_u32 s{self.sHF}, s{self.sHF}, {FH}
                s_add_u32 s{self.sHF + 1}, s{self.sHF}, 3584""")
            self.a_post_setup(q)

        setup = deque(l.replace("v16", "v121").replace("v17", "v122") for l in self.capture(deferred))
        gran_txt = lambda q: f"buffer_load_dwordx2 v[116:117], v120, {srd(sWS)}, s{self.sGR + q} offen sc1"
        gtok = {}
        aTR = Addr(s, 1, X0)
        aXA = [Addr(s, 2 + k, X0) for k in range(4)]
        aXR = Addr(s, 6, 0)
        acc_of = {g: (S[0], S[1], S[3])[g % 3] for g in range(8)}
        cs = lambda c: X0 + (c % 3) * CH

        def rd1(n):
            c, st = divmod(n, 4)
            for x in range(2):
                r, off = aTR.off(cs(c) + st * 4096 + x * 512, cs(c))
                s.ds(f"ds_read_b64_tr_b16 {vr(W + 4 * n + 2 * x, 2)}, {r} offset:{off}")
            for g in range(G):
                r, off = aXA[st].off(cs(c) + 16384 + g * 4096, cs(c))
                t = s.ds(f"ds_read_b128 {vr(XF + 4 * ((n & 1) * G + g), 4)}, {r} offset:{off}")
            return t

        frag = lambda g, k: XF + 4 * (((g - G) * 32 + k + 4) % 8)
        xt = {}

        def rd2(g, k):
            r, off = aXR.off(XSLOT[g] + 32 * k, XSLOT[g])
            xt[g, k] = s.ds(f"ds_read_b128 {vr(frag(g, k), 4)}, {r} offset:{off}")

        PF = 6
        s.barrier("b0")
        self.stamp(s, "b0", "|p1")
        tok = rd1(0)
        for n in range(32):
            nxt = None
            if n % 4 == 3:
                s.wait(lg=tok)
                s.barrier(f"b{n // 4 + 1}")
                self.stamp(s, f"b{n // 4 + 1}", "|p1|p2" if n == 31 else "p1")
            if n == 18:
                gtok[0] = s.vmem(gran_txt(0))
            if n < 31:
                nxt = rd1(n + 1)
            else:
                assert not setup
                for k in range(PF):
                    rd2(G, k)
            s.wait(lg=tok)
            for g in range(G):
                a = acc_of[g]
                s.e(f"{MFMA32} {vr(a, 16)}, {vr(W + 4 * n, 4)}, {vr(XF + 4 * ((n & 1) * G + g), 4)}, "
                    f"{vr(a, 16) if n else 0}")
                for z in range(4):
                    if setup:
                        s.e(setup.popleft())
            s.e(f"{MFMA32} {vr(S[2], 16)}, {vr(W + 4 * n, 4)}, {vr(ONE, 4)}, {vr(S[2], 16) if n else 0}")
            tok = nxt

        P = [112, 113, 114, 115, 124, 125, 126, 127]
        htok, done_at = {}, {}
        now = [0]

        def stats_check(q):
            self.poll(s, gtok[q], [gran_txt(q)], [116])
            s.e("v_mov_b32 v118, v117\nv_mov_b32 v119, v117")
            if q < 3:
                gtok[q + 1] = s.vmem(gran_txt(q + 1))

        def store(e):
            htok[e] = s.vmem(f"buffer_store_dwordx4 {vr(acc_of[e], 4)}, v15, {srd(sWS)}, s{self.sHS + e} offen sc1")
            done_at[e] = now[0]

        def epi_items(e):
            head, body = self.epi_instrs(acc_of[e], S[2], P, 1, 118 + (e & 1))
            pre = [] if e & 1 else [(5, lambda: stats_check(e >> 1)), "v_permlane32_swap_b32 v118, v119"]
            return pre + head + body + [(1, lambda: store(e))]

        epi = deque(epi_items(0))
        side = deque(self.capture(self.side_work))
        self.published = {}
        for g in range(G, 8):
            epi.extend(epi_items(g - 1))
            assert g < 3 or g - 3 in htok
            for k in range(32):
                now[0] = 32 * g + k
                room = o["gap"]
                if k + PF < 32:
                    rd2(g, k + PF)
                elif k == 28:
                    old = [e for e in done_at if done_at[e] <= now[0] - o["drain"] and e < 6]
                    new = [e for e in old if not any(e in v for v in self.published.values())]
                    self.published[g + 1] = new
                    s.wait(vm=htok[new[-1]] if new else None, lg=s.lg)
                    self.stamp(s, f"ar{g + 1}", "arr")
                    s.barrier(f"beta{g + 1}")
                    self.stamp(s, f"be{g + 1}", "p2|arr")
                    room -= 3
                    if g < 7:
                        for q in range(3):
                            rd2(g + 1, q)
                elif k > 28 and g < 7:
                    rd2(g + 1, k - 26)
                if k % 4 == 0 and k < 28:
                    s.wait(lg=xt[g, k + 3])
                    room -= 1
                if g == 7 and k == 31:
                    room = 1000 if epi else room
                room = self.fill(s, epi, room)
                if g == 7 and not epi:
                    self.fill(s, side, min(room, o["gap"]))
                a = acc_of[g]
                s.e(f"{MFMA32} {vr(a, 16)}, {vr(W + 4 * k, 4)}, {vr(frag(g, k), 4)}, {vr(a, 16) if k else 0}")
        assert not epi and sorted(sum(self.published.values(), [])) == list(range(6)), self.published
        self.stamp(s, "g1end", "|p2|post")

        def late_flag(e):
            s.wait(vm=htok[e])
            self.flag(s, 10, 11, f"s{self.sHF + e - 6}")

        self.a_post(s, list(side), lambda: epi_items(7), late_flag)
        return s

    def stream_PA(self):
        s = Stream("PA")
        s.e("L_PA:")
        self.srd_consts(s, (sK, sV, sSH))
        stok = self.stats_load(s)
        self.srd_consts(s, (sWS,))
        kt, vt = self.kv_load(s, lambda: self.stats(s, stok))
        s.e(f"v_mov_b32 v10, s{sT}")
        tok = self.kv_compute(s, kt, vt)
        self.stamp(s, "kv")
        self.a_post_setup(s)
        self.kv_flag(s, tok, 10, 11)
        self.stamp(s, "kvflag")
        self.side_work(s)
        s.e("s_setprio 2")
        s.barrier("beta8")
        self.stamp(s, "beta8")
        self.a_post(s, [], lambda: [], None)
        return s

    def a_post(self, s, side, epi7, late_flag):
        join1, set1 = s.label("convjoin"), s.label("set1")
        s.e(f"s_bitcmp1_b32 s{sW}, 0\ns_cbranch_scc1 {set1}")
        snap = (s.vm, s.vm_done, s.lg, s.lg_done, s.nbar)
        res = []
        for st, tiles in enumerate(((7, 4, 3, 0), (6, 5, 2, 1))):
            s.vm, s.vm_done, s.lg, s.lg_done, s.nbar = snap
            if st:
                s.e(f"{set1}:\ns_nop 7")
            ytok = self.conv(s, st, tiles, side, epi7, late_flag)
            s.wait_all_lg()
            res.append((s.vm, s.vm_done, s.nbar, ytok))
            if not st:
                s.e(f"s_branch {join1}")
        assert res[0] == res[1]
        s.e(f"{join1}:\ns_setprio 0")
        self.stamp(s, "conv", "|post")
        sXO, sST, sYS = 20, 22, 23
        XR, SR, YR, XU, XM, YF = (16, 20), (24, 25), 28, (128, 136), (144, 152), (160, 168)
        F, RB, NL, SD, T = (176, 184), 192, 36, (38, 40), 224
        s.e(f"""s_lshl_b32 s{sXO}, s{sP2}, 16
            s_add_u32 s{sXO}, s{sXO}, s{sW8K}
            s_lshl_b32 s{sA}, s{sDB}, 7
            s_add_u32 s{sXO}, s{sXO}, s{sA}
            s_add_u32 s{sXO + 1}, s{sXO}, 32768
            s_lshl_b32 s{sST}, s{sP2}, 10
            s_lshl_b32 s{sB_}, s{sW}, 7
            s_add_u32 s{sST}, s{sST}, s{sB_}
            s_add_u32 s{sST}, s{sST}, {STATS}
            v_lshrrev_b32 v13, 3, v0
            v_and_b32 v14, 7, v0
            v_lshlrev_b32 v2, 4, v14
            v_lshl_add_u32 v6, v13, 12, v2
            v_lshl_add_u32 v2, v13, 10, v2
            v_lshlrev_b32 v9, 3, v13""")
        s.vmem(f"buffer_load_dwordx4 {vr(XR[0], 4)}, v2, {srd(sX)}, s{sXO} offen")
        s.vmem(f"buffer_load_dwordx4 {vr(XR[1], 4)}, v2, {srd(sX)}, s{sXO + 1} offen")
        st_txt = [f"buffer_load_dwordx2 {vr(44 + 2 * th, 2)}, v9, {srd(sWS)}, s{sST} offen offset:{512 * th} sc1"
                  for th in range(2)]
        for t in st_txt:
            xtok = s.vmem(t)
        s.e(f"""s_lshr_b32 s{sA}, s{sP2}, 2
            s_lshr_b32 s{sB_}, s{sP2}, 3
            s_xor_b32 s{sA}, s{sA}, s{sB_}
            s_and_b32 s{sA}, s{sA}, 1
            s_lshl_b32 s{sA}, s{sA}, 15
            s_lshl_b32 s{sB_}, s{sDB}, 12
            s_add_u32 s{sA}, s{sA}, s{sB_}
            s_add_u32 s{sA}, s{sA}, s{sW1K}
            s_add_u32 s{sA}, s{sA}, {FY}
            v_bfe_u32 v8, v0, 1, 3
            v_and_b32 v1, 1, v0
            v_lshlrev_b32 v1, 2, v1
            v_lshl_add_u32 v8, v8, 7, v1
            v_add_u32 v8, s{sA}, v8
            s_lshl_b32 s{sYS}, s{sDB}, 18
            s_lshl_b32 s{sB_}, s{sW}, 16
            s_add_u32 s{sYS}, s{sYS}, s{sB_}
            s_lshl_b32 s{sB_}, s{sP2}, 7
            s_add_u32 s{sYS}, s{sYS}, s{sB_}
            s_add_u32 s{sYS}, s{sYS}, {YB}
            s_add_u32 s{sYS + 1}, s{sYS}, 32768
            s_lshl_b32 s{sB_}, s{sW}, 5
            s_add_u32 s{sB_}, s{sB_}, s{sW4K}
            s_add_u32 s{sB_}, s{sB_}, {ACC0}
            v_add_u32 v12, s{sB_}, v15
            v_lshlrev_b32 v1, 1, v14
            v_xor_b32 v1, v1, v13
            s_lshl_b32 s{sA}, s{sW}, 11
            s_add_u32 s{sA}, s{sA}, {RA[0]}
            v_lshlrev_b32 v3, 8, v13
            v_lshl_add_u32 v3, v1, 4, v3
            v_xor_b32 v4, 16, v3
            v_add_u32 v3, s{sA}, v3
            v_add_u32 v4, s{sA}, v4
            v_lshrrev_b32 v1, 1, v14
            v_lshlrev_b32 v5, 12, v1
            v_and_b32 v1, 1, v14
            v_lshl_add_u32 v5, v1, 10, v5
            v_lshl_add_u32 v5, v14, 4, v5
            v_lshl_add_u32 v5, v13, 1, v5
            s_lshl_b32 s{sA}, s{sW}, 4
            s_add_u32 s{sA}, s{sA}, {ACC0}
            v_add_u32 v5, s{sA}, v5
            v_mov_b32 v13, {PFL}""")
        s.wait(vm=ytok)
        self.flag(s, 10, 11, f"s{sG}")
        self.stamp(s, "yflag", "post")
        for k in range(16):
            s.e(f"v_mov_b32 v{YF[0] + k}, 0")
        self.poll(s, xtok, st_txt, [44, 46])
        for th in range(2):
            for k in range(4):
                s.e(f"v_lshlrev_b32 v{XU[th] + 2 * k}, 16, v{XR[th] + k}")
                s.e(f"v_and_b32 v{XU[th] + 2 * k + 1}, 0xffff0000, v{XR[th] + k}")
            s.e(f"""v_lshlrev_b32 v1, 16, v{45 + 2 * th}
                v_and_b32 v{SD[th]}, 0xffff0000, v{45 + 2 * th}
                v_and_b32 v{SD[th] + 1}, 0xffff0000, v{45 + 2 * th}
                v_mov_b32 v{NL + th}, {fhex(-LOG2E)}""")
            for k in range(8):
                s.e(f"v_sub_f32 v{XM[th] + k}, v{XU[th] + k}, v1")
        ypoll = f"buffer_load_dword v7, v8, {srd(sWS)}, 0 offen sc1"
        s.e(f"s_lshl_b32 s{sA}, s{sW}, 2\ns_add_u32 s{sA}, s{sA}, {PFL + 16}\nv_mov_b32 v14, s{sA}")
        self.lds_spin(s, 14, 56, False)
        self.stamp(s, "go", "post")
        self.poll(s, s.vmem(ypoll), [ypoll], [7])
        self.stamp(s, "yp", "|post")
        for z in range(2):
            ytok = s.vmem(f"buffer_load_dwordx4 {vr(YR + 4 * z, 4)}, v6, {srd(sWS)}, s{sYS + z} offen sc1")
        ra = [Addr(s, 3, RA[0]), Addr(s, 4, RA[0])]

        def vop(op, pk, d, *src):
            if pk:
                for k in range(0, 8, 2):
                    s.e(f"v_pk_{op}_f32 {vr(d + k, 2)}, " + ", ".join(vr(r + k * st, 2) for r, st in src))
            else:
                for k in range(8):
                    s.e(f"v_{op}_f32 v{d + k}, " + ", ".join(f"v{r + k * st}" for r, st in src))

        def preads(region):
            out = []
            for w in range(4):
                for e in range(2):
                    r, off = ra[e].off(region + 8192 * w, region)
                    t = s.ds(f"ds_read_b128 {vr(RB + 8 * w + 4 * e, 4)}, {r} offset:{off}")
                out.append(t)
            return out

        def gate(th, rd, pk):
            for w in range(1, 4):
                s.wait(lg=rd[w])
                vop("add", pk, F[th], (RB if w == 1 else F[th], 1), (RB + 8 * w, 1))
            vop("mul", pk, T, (F[th], 1), (NL, 0))
            for k in range(8):
                s.e(f"v_exp_f32 v{T + k}, v{T + k}")
            vop("mul", pk, F[th], (F[th], 1), (XM[th], 1))
            vop("fma", pk, T, (T, 1), (SD[th], 0), (SD[th], 0))
            for k in range(8):
                s.e(f"v_rcp_f32 v{T + k}, v{T + k}")

        def store(th):
            R = 48 + 4 * th
            for x in range(4):
                s.e(f"v_cvt_pk_bf16_f32 v{R + x}, v{F[th] + 2 * x}, v{F[th] + 2 * x + 1}")
            s.vmem(f"buffer_store_dwordx4 {vr(R, 4)}, v2, {srd(sOUT)}, s{sXO + th} offen")

        self.lds_spin(s, 13, 56, True)
        self.stamp(s, "Z1", "|post")
        gate(0, preads(RA[0]), False)
        vop("mul", False, F[0], (F[0], 1), (T, 1))
        for e in range(2):
            ra[e].off(RA[1], RA[1])
        s.wait(vm=ytok)
        for z in range(2):
            wtok = s.ds(f"ds_write_b128 v12, {vr(YR + 4 * z, 4)} offset:{1040 * z}")
        s.wait(lg=wtok)
        self.stamp(s, "f0", "|post")
        s.barrier("Z2")
        self.stamp(s, "Z2", "|post")
        yread = lambda th: [s.ds(f"ds_read_u16_d16_hi v{YF[th] + k}, v5 offset:{128 * k + 64 * th}")
                            for k in range(8)][-1]
        y0 = yread(0)
        rd = preads(RA[1])
        s.wait(lg=y0)
        vop("fma", True, F[0], (F[0], 1), (YF[0], 1), (XU[0], 1))
        y1 = yread(1)
        store(0)
        gate(1, rd, True)
        s.wait(lg=y1)
        vop("mul", True, F[1], (F[1], 1), (YF[1], 1))
        vop("fma", True, F[1], (F[1], 1), (T, 1), (XU[1], 1))
        store(1)
        self.epoch(s)
        self.finish(s)

    def epoch(self, s):
        if s.name != "PA":
            return
        skip = s.label("noepoch")
        s.e(f"""s_cmp_lg_u32 s2, 255
            s_cbranch_scc1 {skip}
            s_cmp_lg_u32 s{sW8}, 0
            s_cbranch_scc1 {skip}
            v_lshlrev_b32 v20, 7, v0""")
        txt = []
        for z in range(4):
            s.e(f"s_mov_b32 s{sBLK + z}, {FY + 8192 * z}")
            txt.append(f"buffer_load_dword v{16 + z}, v20, {srd(sWS)}, s{sBLK + z} offen sc1")
        for t in txt:
            tok = s.vmem(t)
        self.poll(s, tok, txt, list(range(16, 20)))
        self.flag(s, 10, 11, "0")
        s.e(f"{skip}:")

    def conv(self, s, st, tiles, side, epi7, late_flag):
        o = self.o
        CACC, DF = 48, self.SIDE
        acc = {n: CACC + 4 * i for i, n in enumerate(tiles)}
        pool = deque(128 + 4 * i for i in range(28))
        ops = []
        for r in (1, 2, 3, 4, 5, 6, 7, 0):
            for i in range(8):
                ops += [(n, ("A", r + 8 * i), ("G", r, n - i)) for n in tiles if n >= i]
                if r == 0 and i == 0:
                    ops += [(n, ("D",), ("G", 0, n)) for n in tiles]
        first, last = {}, {}
        for idx, (n, a, g) in enumerate(ops):
            for key in (a, g):
                first.setdefault(key, idx)
                last[key] = idx
        loads = deque(sorted((k for k in first if k[0] != "D"), key=lambda k: first[k]))
        total = sum(2 if k[0] == "A" else 1 for k in loads)
        reg, tok = {("D",): DF}, {("D",): 0}
        issued = 0

        def load(key):
            nonlocal issued
            r = reg[key] = pool.popleft()
            if key[0] == "A":
                s.ds(f"ds_read_b64 {vr(r, 2)}, v8 offset:{64 * key[1]}")
                tok[key] = s.ds(f"ds_read_b64 {vr(r + 2, 2)}, v8 offset:{64 * key[1] + 8}")
                issued += 2
            else:
                tok[key] = s.ds(f"ds_read_b128 {vr(r, 4)}, v9 offset:{512 * (7 - key[2]) + 64 * key[1]}")
                issued += 1

        lead, grp = o["conv_lead"], o["conv_grp"]
        while loads and first[loads[0]] < 7:
            load(loads.popleft())
        epi = deque(epi7())
        side = deque(side)
        started = set()
        f7 = None
        for idx, (n, a, g) in enumerate(ops):
            while loads and pool and s.lg - s.lg_done <= 13 and (
                    first[loads[0]] <= idx + lead or issued < total * (idx + lead) / len(ops)):
                load(loads.popleft())
            if idx in (0, 50, 110):
                self.stamp(s, f"c{idx}", "post")
            if epi:
                self.fill(s, epi, o["conv_valu"])
                f7 = idx + 45
            else:
                self.fill(s, side, 1 if len(side) < 124 - idx else 2)
            if late_flag and idx == 35:
                late_flag(6)
            if late_flag and idx == f7:
                late_flag(7)
            if o["hold"] and idx == o["hold"]:
                s.barrier("hold")
            assert a in tok and g in tok, "fragment pool exhausted"
            if max(tok[a], tok[g]) > s.lg_done:
                ahead = [tok[k] for op in ops[idx:idx + grp] for k in op[1:] if k in tok]
                s.wait(lg=max(ahead))
            if a == ("A", 0) and first[a] == idx:
                assert not side and not epi
                for x in range(4):
                    s.e(f"v_and_b32 v{reg[a] + x}, v{reg[a] + x}, v{DF + 4 + x}")
            c = vr(acc[n], 4) if n in started else 0
            started.add(n)
            s.e(f"{MFMA16} {vr(acc[n], 4)}, {vr(reg[a], 4)}, {vr(reg[g], 4)}, {c}")
            for key in (a, g):
                if last[key] == idx and key[0] != "D":
                    pool.append(reg[key])
        assert not loads
        pairs = ((tiles[3], tiles[2]), (tiles[1], tiles[0]))
        toks = []
        for z, (n1, n2) in enumerate(pairs):
            R = 80 + 8 * z
            for q, n in enumerate((n1, n2)):
                s.e(f"v_cvt_pk_bf16_f32 v{R + 2 * q}, v{acc[n]}, v{acc[n] + 1}")
                s.e(f"v_cvt_pk_bf16_f32 v{R + 2 * q + 1}, v{acc[n] + 2}, v{acc[n] + 3}")
            s.e(f"v_permlane16_swap_b32 v{R}, v{R + 2}\nv_permlane16_swap_b32 v{R + 1}, v{R + 3}")
            for x in range(4):
                t = s.ds(f"ds_bpermute_b32 v{R + 4 + x}, v{DF + 9}, v{R + x}")
            toks.append(t)
        for z, (n1, n2) in enumerate(pairs):
            s.wait(lg=toks[z])
            ytok = s.vmem(f"buffer_store_dwordx4 {vr(84 + 8 * z, 4)}, v{DF + 10}, {srd(sWS)}, s{self.sYO} offen "
                          f"offset:{512 * n1} sc1")
        return ytok

    B_CS, B_WD = 64, 128

    def b_late_setup(self, s):
        self.srd_consts(s, (sWD, sSK))
        s.e(f"s_add_u32 s{sCH}, s2, 32\ns_and_b32 s{sCH}, s{sCH}, 255")
        self.pair_index(s)
        self.lane0_offset(s, 12)
        self.block_ids(s)
        s.e(f"s_lshl_b32 s{sA}, s{sDB}, 7\ns_sub_u32 s{sA}, s{sA}, 8192")
        for b in range(7):
            s.e(f"s_lshl_b32 s{sBLA + b}, s{BLK[b]}, 16\ns_add_u32 s{sBLA + b}, s{sBLA + b}, s{sA}")
        self.wd_src_addr(s, 8, 13)
        self.wd_read_addrs(s, 9, 10, 13, ST1)
        s.e(f"""s_add_u32 s{sA}, s{sW4K}, {ST1 - ACC0}
            v_subrev_u32 v17, s{sA}, v9
            v_subrev_u32 v18, s{sA}, v10""")
        self.hflag_addr(s, 20, 13, BLK[:4])
        self.hflag_addr(s, 19, 13, BLK[4:])

    HB_BUF = staticmethod(lambda hb: (2 - hb) % 3)

    def b_hb_jobs(self, s, hb, toks):
        buf = self.HB_BUF(hb)

        def job(e):
            wpart, lds = (sW4K, ACC0) if buf == 2 else (sW8K, ST1 + 4096 * buf)
            toks[hb] = self.wd_dma(s, hb >> 1, wpart, lds + 1024 * e)

        return [lambda e=e: job(e) for e in range(4)]

    def b_hb_consume(self, s, hb, toks):
        buf = self.HB_BUF(hb)
        s.wait(vm=toks[hb])
        for k2 in range(2):
            n = 2 * hb + k2
            for dt in range(2):
                for x in range(2):
                    a, off = (17 + dt, 0) if buf == 2 else (9 + dt, 4096 * buf)
                    t = s.ds(f"ds_read_b64_tr_b16 {vr(self.B_WD + 8 * n + 4 * dt + 2 * x, 2)}, v{a} "
                             f"offset:{off + 2048 * k2 + 512 * x}")
        return t

    def b_ra_jobs(self, s, b, toks):
        def job(e):
            toks["ra"] = self.wd_dma(s, 4 + b, sW8K, RA[b] + 1024 * e)

        return [lambda e=e: job(e) for e in range(8)]

    def b_ssm_load(self, s):
        s.e(f"""s_and_b32 s{sA}, s{sW}, 1
            s_lshl_b32 s{sA}, s{sA}, 11
            v_add_u32 v13, s{sA}, v5
            v_subrev_u32 v14, 8, v13
            v_add_u32 v15, 1016, v13
            s_lshr_b32 s{sA}, s{sW}, 1
            s_lshl_b32 s{sB_}, s{sCH}, 1
            s_add_u32 s{sA}, s{sA}, s{sB_}
            s_lshl_b32 s{sA}, s{sA}, 12""")
        s.vmem(f"buffer_load_dwordx4 v[106:109], v13, {srd(sSK)}, s{sA} offen")
        s.vmem(f"buffer_load_dwordx2 v[104:105], v14, {srd(sSK)}, s{sA} offen")
        s.vmem(f"buffer_load_dwordx4 v[112:115], v13, {srd(sSK)}, s{sA} offen offset:1024")
        return s.vmem(f"buffer_load_dwordx2 v[110:111], v15, {srd(sSK)}, s{sA} offen")

    def b_copy_items(self, s, tok, state):
        items = []

        def base():
            s.e(f"""s_lshr_b32 s{sA}, s{sW}, 1
                s_mul_i32 s{sA}, s{sA}, 16640
                s_add_u32 s{sA}, s{sA}, {X1 + 32}
                v_add_u32 v13, s{sA}, v13""")
            state["cp"] = None

        items.append(base)
        for z in range(2):
            d = 106 + 6 * z

            def even(z=z, d=d):
                s.wait(vm=tok, lg=state["cp"])
                s.ds(f"ds_write_b128 v13, {vr(d, 4)} offset:{1024 * z}")
                for x in range(4):
                    s.e(f"v_mov_b32 v{116 + x}, v{d - 1 + x}")
                s.ds(f"ds_write_b128 v13, v[116:119] offset:{2 * 4160 + 1024 * z}")

            def odd(z=z, d=d):
                for x in range(4):
                    s.e(f"v_alignbyte_b32 v{120 + x}, v{d + x}, v{d + x - 1}, 2")
                s.ds(f"ds_write_b128 v13, v[120:123] offset:{4160 + 1024 * z}")
                for x in range(4):
                    s.e(f"v_alignbyte_b32 v{124 + x}, v{d + x - 1}, v{d + x - 2}, 2")
                state["cp"] = s.ds(f"ds_write_b128 v13, v[124:127] offset:{3 * 4160 + 1024 * z}")

            items += [even, odd]
        return items

    def b_kvpoll_txt(self):
        return f"buffer_load_dword v22, v21, {srd(sWS)}, 0 offen sc1"

    def b_kvpoll_issue(self, s):
        s.e(f"""s_lshr_b32 s{sA}, s{sCH}, 5
            s_lshl_b32 s{sA}, s{sA}, 12
            s_andn2_b32 s{sB_}, 1, s{sW}
            s_lshl_b32 s{sB_}, s{sB_}, 11
            s_add_u32 s{sA}, s{sA}, s{sB_}
            s_add_u32 s{sA}, s{sA}, {FKV}
            v_and_b32 v21, 15, v0
            v_lshlrev_b32 v21, 7, v21
            v_add_u32 v21, s{sA}, v21""")
        return s.vmem(self.b_kvpoll_txt())

    def b_kvt_dma(self, s, ptok):
        self.poll(s, ptok, [self.b_kvpoll_txt()], [22])
        s.e(f"""s_lshl_b32 s{sA}, s{sCH}, 13
            s_lshl_b32 s{sB_}, s{sW}, 11
            s_add_u32 s{sA}, s{sA}, s{sB_}
            s_add_u32 s{sA}, s{sA}, {KVT}
            s_lshr_b32 s{sC}, s{sW}, 1
            s_lshl_b32 s{sC}, s{sC}, 10
            s_add_u32 s{sB_}, s{sB_}, s{sC}
            s_add_u32 m0, s{sB_}, {KVB}""")
        for z in range(2):
            t = s.vmem(f"buffer_load_dwordx4 v5, {srd(sWS)}, s{sA} offen offset:{1024 * z} sc1 lds")
        return t

    def b_pad_dma(self, s):
        s.e(f"""s_lshr_b32 s{sA}, s{sW}, 1
            s_mul_i32 s{sA}, s{sA}, {KVS}
            s_add_u32 m0, s{sA}, {KVB + 4096}
            v_mov_b32 v16, 0x40000000""")
        return s.vmem(f"buffer_load_dwordx4 v16, {srd(sSK)}, 0 offen lds")

    def b_copy_jobs(self, s, toks):
        sS, sL = 35, 36

        def job(p, z):
            if (p, z) == (0, 0):
                s.e(f"""s_lshl_b32 s{sS}, s{sCH}, 13
                    s_lshl_b32 s{sL}, s{sW}, 11
                    s_add_u32 s{sS}, s{sS}, s{sL}
                    s_lshr_b32 s{sA}, s{sW}, 1
                    s_mul_i32 s{sA}, s{sA}, {16640 - 4096}
                    s_add_u32 s{sL}, s{sL}, s{sA}""")
            s.e(f"s_add_u32 m0, s{sL}, {X1 + 32 + 4160 * p}\ns_sub_u32 s{sA}, s{sS}, {2 * p}")
            toks["cp"] = s.vmem(f"buffer_load_dwordx4 v5, {srd(sSK)}, s{sA} offen offset:{1024 * z} lds")

        return [lambda p=p, z=z: job(p, z) for z in range(2) for p in range(4)]

    def b_publish(self, s, groups):
        if not groups:
            return
        skip = s.label("nopub")
        s.e(f"s_cmp_lg_u32 s{sW}, 0\ns_cbranch_scc1 {skip}")
        for g in groups:
            self.row_of_group(s, sA, g)
            s.e(f"""s_mul_i32 s{sA}, s{sA}, 112
                s_add_u32 s{sA}, s{sA}, s44
                buffer_store_dword v11, v7, {srd(sWS)}, s{sA} offen sc1""")
        s.e(f"{skip}:")

    B_NS = 10
    G2 = ([(0, b, k) for b in range(4) for k in range(4)] + [(1, b, k) for b in range(3) for k in range(4)]
          + [(0, b, k) for b in range(4, 7) for k in range(4)] + [(1, b, k) for b in range(3, 7) for k in range(4)])

    def b_hload(self, s, ht, n):
        th, b, ks = self.G2[n]
        if ks == 0:
            self.h_soff(s, b, th)
        ht[n] = s.vmem(f"buffer_load_dwordx4 {vr(24 + 4 * (n % self.B_NS), 4)}, v5, {srd(sWS)}, s{sC} offen "
                       f"offset:{1024 * ks} sc1")

    def b_hpoll_txt(self, th, dst=22, src=20):
        return f"buffer_load_dword v{dst}, v{src}, {srd(sWS)}, 0 offen offset:{3584 * th} sc1"

    def b_hstart(self, s, hp0, ht):
        s.e(f"s_mul_i32 s{sF}, s{sP2}, {2 * 114688}\ns_add_u32 s{sF}, s{sF}, {HB}")
        self.poll(s, hp0, [self.b_hpoll_txt(0)], [22], mask=0xfff)
        self.stamp(s, "hp0", "|post")
        return [lambda n=n: self.b_hload(s, ht, n) for n in range(self.B_NS)]

    def stream_GB(self):
        s = Stream("GB")
        o = self.o
        s.e(f"""L_GB:
            v_lshrrev_b32 v13, 3, v0
            v_and_b32 v14, 7, v0
            v_bfe_u32 v15, v0, 4, 1
            v_lshlrev_b32 v15, 1, v15
            v_xor_b32 v15, v15, v14
            v_mul_u32_u24 v1, 3584, v13
            v_lshl_add_u32 v1, v15, 4, v1
            v_xor_b32 v2, 64, v1
            s_lshl_b32 s{sA}, s{sW}, 2
            v_lshrrev_b32 v15, 1, v13
            v_add_u32 v15, s{sA}, v15
            v_and_b32 v15, 7, v15
            v_xor_b32 v15, v15, v14
            v_lshlrev_b32 v3, 10, v13
            v_lshl_add_u32 v3, v15, 4, v3
            s_mul_i32 s{sG}, s{sW}, 57344
            s_lshl_b32 s{sA}, s{sJ}, 7
            s_add_u32 s{sG}, s{sG}, s{sA}""")
        sXB, sU, sV_ = sE + 1, sCNT, sD
        self.row_of_group(s, sXB, 0)
        s.e(f"""s_lshl_b32 s{sXB}, s{sXB}, 10
            s_add_u32 s{sXB}, s{sXB}, s{sW8K}
            s_setprio {o['prio_b']}
            s_waitcnt lgkmcnt(0)
            s_mov_b32 s{sF}, s{sXB}""")
        cs = lambda c: X0 + (c % 3) * CH
        ct = {}

        def chunk(c):
            steps = [
                (f"""s_add_u32 s{sU}, s{sROT}, {c}
                    s_and_b32 s{sU}, s{sU}, 7
                    s_mul_i32 s{sV_}, s{sU}, 229376
                    s_add_u32 m0, s{sW4K}, {cs(c)}
                    s_add_u32 s{sV_}, s{sV_}, s{sG}""", 1, sWG, sV_),
                (f"s_add_u32 m0, s{sW4K}, {cs(c) + 2048}\ns_lshl_b32 s{sU}, s{sU}, 7", 2, sWU, sV_),
                (f"s_add_u32 m0, s{sW4K}, {cs(c) + 1024}\ns_add_u32 s{sV_}, s{sV_}, 28672", 1, sWG, sV_),
                (f"s_add_u32 m0, s{sW4K}, {cs(c) + 3072}\ns_add_u32 s{sU}, s{sU}, s{sF}", 2, sWU, sV_),
                (f"s_add_u32 m0, s{sW1K}, {cs(c) + 16384}\ns_add_u32 s{sV_}, s{sU}, 32768", 3, sX, sU),
                (f"s_add_u32 m0, s{sW1K}, {cs(c) + 20480}", 3, sX, sV_),
            ]

            def job(pre, v, buf, so):
                s.e(pre)
                ct[c] = s.vmem(f"buffer_load_dwordx4 v{v}, {srd(buf)}, s{so} offen lds")

            return [lambda a=a: job(*a) for a in steps]

        xt = {}
        sXR = 45

        def xjobs(g):
            def job(r):
                if r == 0:
                    self.row_of_group(s, sXR, g)
                    s.e(f"s_lshl_b32 s{sXR}, s{sXR}, 10")
                s.e(f"s_add_u32 m0, s{sW8320}, {XSLOT[g] + r * 1040}")
                s.e(f"s_add_u32 s{sXR}, s{sXR}, {'s%d' % sW8K if r == 0 else 1024}")
                xt[g] = s.vmem(f"buffer_load_dwordx4 v4, {srd(sX)}, s{sXR} offen lds")

            return [lambda r=r: job(r) for r in range(8)]

        def accr(areg, dst, off):
            for i in range(4):
                t = s.ds(f"ds_read_b128 {vr(dst + 4 * i, 4)}, v{areg} offset:{off + 1024 * i}")
            return t

        state, toks, ht = {}, {}, {}
        Q = deque()

        def run(budget):
            c0 = s.cost
            while Q and s.cost - c0 < budget:
                Q.popleft()()

        def mem(jobs, gap=o["qgap"]):
            for job in jobs:
                job()
                run(gap)

        def restage(done, cover, nxt):
            rd = self.b_hb_consume(s, done, toks)
            mem(cover)
            s.wait(lg=rd)
            mem(nxt)

        hb = lambda n: self.b_hb_jobs(s, n, toks)
        mem(chunk(0))
        self.stamp(s, "iss0", "p1")
        s.e(f"s_load_dword s{sT}, s[{sWS}:{sWS + 1}], {EPOCH}")

        def deferred(q):
            q.e(f"""v_lshlrev_b32 v5, 4, v0
                s_lshl_b32 s{sA}, s{sROT}, 3
                v_add_u32 v4, s{sA}, v0
                v_and_b32 v4, 63, v4
                v_lshlrev_b32 v4, 4, v4
                s_mul_i32 s{sW8320}, s{sW}, 8320
                v_lshrrev_b32 v7, 2, v0
                v_min_u32 v7, 1, v7
                v_lshlrev_b32 v7, 28, v7
                v_add_lshl_u32 v7, v7, v0, 2
                s_lshl_b32 s44, s{sJ}, 7
                s_add_u32 s44, s44, {FH}""")
            self.srd_consts(q, (sWS,))
            self.b_late_setup(q)
            q.e(f"""v_and_b32 v13, 15, v0
                v_lshlrev_b32 v13, 7, v13
                s_lshl_b32 s35, s{sCH}, 13
                s_lshl_b32 s{sA}, s{sW}, 11
                s_add_u32 s35, s35, s{sA}""")

        Q.extend(lambda i=i: s.e(i) for i in self.capture(deferred))
        mem(chunk(1), 50)
        self.stamp(s, "iss1", "p1")
        run(300)
        fill = deque(xjobs(2) + xjobs(3))
        for c in range(8):
            s.wait(vm=ct[c])
            s.barrier(f"b{c}")
            self.stamp(s, f"b{c}", "|p1" if c == 0 else "p1")
            if c + 2 < 8:
                mem(chunk(c + 2), 40)
            if c >= o["fill_from"]:
                mem([fill.popleft() for z in range(min(len(fill), o["fill_n"] if c < 6 else 4))], 40)
            if c == 5:
                assert not Q
                self.tag_ready(s)
                s.e(f"v_mov_b32 v11, s{sT}")
        while len(fill) > 8:
            fill.popleft()()
        s.vmem(f"buffer_load_dword v14, v13, {srd(sSK)}, s35 offen")
        self.b_pad_dma(s)
        s.wait(vm=xt[2])
        s.barrier("b8")
        self.stamp(s, "b8", "|p1|p2")

        def beta(g):
            s.wait(vm=xt.get(g), lg=s.lg)
            self.stamp(s, f"ar{g}", "arr")
            s.barrier(f"beta{g}")
            self.stamp(s, f"be{g}", "p2|arr")
            self.b_publish(s, self.published[g])

        def mix(a, b):
            out = []
            for z in range(max(len(a), len(b))):
                out += a[z:z + 1] + b[z:z + 1]
            return out

        mem(fill)
        mem(mix(hb(0) + hb(1), xjobs(4)))
        beta(3)
        x = xjobs(5)
        restage(0, mix(hb(2), x[:4]), mix(hb(3), x[4:]))
        for g in (4, 5):
            beta(g)
            x = xjobs(g + 2)
            restage(2 * g - 7, x[:2], mix(hb(2 * g - 4), x[2:4]))
            restage(2 * g - 6, x[4:6], mix(hb(2 * g - 3), x[6:]))
        beta(6)
        cp = self.b_copy_jobs(s, toks)
        ra1 = self.b_ra_jobs(s, 1, toks)
        kvp = self.b_kvpoll_issue(s)
        restage(5, cp[:3], [])
        restage(6, cp[3:6], [])
        restage(7, cp[6:], [])
        kvt = self.b_kvt_dma(s, kvp)
        beta(7)
        hp0 = s.vmem(self.b_hpoll_txt(0))
        ra = ra1 + self.b_ra_jobs(s, 0, toks)
        mem(ra[:6])
        hj = self.b_hstart(s, hp0, ht)
        mem(mix(hj[:4], ra[6:10]))
        s.wait(vm=kvt)
        beta(8)
        mem(mix(ra[10:] + self.b_ra_jobs(s, 2, toks), hj[4:]))
        self.b_post(s, toks, ht)
        return s

    def stream_PB(self):
        s = Stream("PB")
        s.e(f"""L_role_p:
            s_cmp_lt_u32 s{sW8}, 4
            s_cbranch_scc1 L_PA
            v_lshlrev_b32 v5, 4, v0""")
        self.srd_consts(s, (sK, sV, sSH, sWS))
        s.e(f"s_waitcnt lgkmcnt(0)\ns_load_dword s{sT}, s[{sWS}:{sWS + 1}], {EPOCH}")
        state, toks = {}, {}
        kt, vt = self.kv_load(s)
        self.tag_ready(s)
        s.e(f"v_mov_b32 v11, s{sT}")
        tok = self.kv_compute(s, kt, vt)
        self.stamp(s, "kv")
        self.b_late_setup(s)
        ssm_tok = self.b_ssm_load(s)
        self.kv_flag(s, tok, 11, 12)
        self.stamp(s, "kvflag")
        do = lambda jobs: [f() for f in jobs]
        do(self.b_copy_items(s, ssm_tok, state))
        self.b_pad_dma(s)
        for hb in range(3):
            do(self.b_hb_jobs(s, hb, toks))
        extra = deque(self.b_ra_jobs(s, 0, toks) + self.b_ra_jobs(s, 2, toks))
        for hb in range(8):
            rd = self.b_hb_consume(s, hb, toks)
            do([extra.popleft(), extra.popleft()])
            s.wait(lg=rd)
            if hb + 3 < 8:
                do(self.b_hb_jobs(s, hb + 3, toks))
            if hb == 2:
                kvp = self.b_kvpoll_issue(s)
            if hb == 4:
                kvt_tok = self.b_kvt_dma(s, kvp)
        s.wait(vm=kvt_tok, lg=s.lg)
        s.barrier("beta8")
        self.stamp(s, "beta8")
        hp0 = s.vmem(self.b_hpoll_txt(0))
        do(self.b_ra_jobs(s, 1, toks))
        ht = {}
        do(self.b_hstart(s, hp0, ht))
        self.b_post(s, toks, ht)
        s.e("L_exit:\ns_endpgm")
        return s

    def b_post(self, s, toks, ht):
        WD, ACC, NS = self.B_WD, (64, 96), self.B_NS
        slot = lambda n: 24 + 4 * (n % NS)
        polls = {12: [self.b_hpoll_txt(0), self.b_hpoll_txt(1, 23)], 28: [self.b_hpoll_txt(0, 22, 19)],
                 44: [self.b_hpoll_txt(1, 22, 19)]}
        ptok = {12: [s.vmem(t) for t in polls[12]][-1]}
        pa = self.partial_addrs(s, 1, 13)
        s.e(f"""s_lshl_b32 s{sA}, s{sW}, 2
            s_add_u32 s{sA}, s{sA}, {PFL}
            v_mov_b32 v13, s{sA}
            v_mov_b32 v14, 1""")
        aR = [Addr(s, 9, ST1), Addr(s, 10, ST1)]
        wr = {}

        def wdread(m):
            b, ks = divmod(m, 4)
            s.wait(vm=toks["ra"])
            for dt in range(2):
                for x in range(2):
                    r, off = aR[dt].off(RA[b] + 2048 * ks + 512 * x, RA[b])
                    wr[m] = s.ds(f"ds_read_b64_tr_b16 {vr(WD + 8 * m + 4 * dt + 2 * x, 2)}, {r} offset:{off}")

        def mm(n, dt):
            th, b, ks = self.G2[n]
            a, w = ACC[th] + 16 * dt, WD + 8 * (4 * (b & 3) + ks) + 4 * dt
            s.e(f"{MFMA32} {vr(a, 16)}, {vr(w, 4)}, {vr(slot(n), 4)}, {vr(a, 16) if (b, ks) != (0, 0) else 0}")

        if self.o["hold"]:
            s.barrier("hold")
        s.e("s_setprio 1")
        self.stamp(s, "g2s", "|post")
        for n in range(48):
            s.wait(vm=ht[n], lg=wr.get(n - 28))
            if n in (5, 16, 28, 40):
                self.stamp(s, f"n{n}", "post")
            mm(n, 0)
            if 41 <= n < 45:
                self.partial_write(s, pa, ACC[0], RA[0], 0, n - 41)
            mm(n, 1)
            if 41 <= n < 45:
                self.partial_write(s, pa, ACC[0], RA[0], 1, n - 41)
            if n == self.o["ygo"]:
                s.ds("ds_write_b32 v13, v14 offset:16")
            if n == 44:
                s.ds("ds_write_b32 v13, v14")
                self.stamp(s, "p0", "|post")
            if 17 <= n < 29:
                wdread(n - 17)
            if n + NS in polls:
                self.poll(s, ptok[n + NS], polls[n + NS], [22, 23][:len(polls[n + NS])])
            if n + NS < 56:
                self.b_hload(s, ht, n + NS)
            if n + 2 * NS - 2 in polls:
                ptok[n + 2 * NS - 2] = s.vmem(polls[n + 2 * NS - 2][0])
        for n in range(48, 56):
            s.wait(vm=ht[n])
            mm(n, 0)
        for n in range(48, 56):
            mm(n, 1)
            if n >= 52:
                s.e("s_nop 1")
                self.partial_write(s, pa, ACC[1], RA[1], 0, n - 52)
        self.stamp(s, "g2b", "|post")
        for q in range(4):
            wtok = self.partial_write(s, pa, ACC[1], RA[1], 1, q)
        s.wait(lg=wtok)
        s.barrier("Z2")
        self.finish(s)

    def policy(self, line):
        abl = self.o["abl"]
        ws = srd(sWS) in line and " sc1" in line
        if "h" in abl and line.startswith("buffer_load_dwordx4") and ws and f"s{sC} offen" in line:
            return line.replace(f"s{sC} offen", f"s{sW8K} offen").replace(srd(sWS), srd(sX))
        if "p" in abl and line.startswith("buffer_load_dword ") and ws and ", 0 offen" in line:
            d = line.split()[1].rstrip(",")
            return f"v_mov_b32 {d}, s{sT}\n    buffer_load_dword v255, v0, {srd(sX)}, 0 offen"
        if "s" in abl and line.startswith("buffer_store_dwordx4") and ws:
            return line.replace(" sc1", "")
        if "d" in abl and line.startswith("buffer_load_dwordx4 v8,"):
            return re.sub(r"s\d+ offen", f"s{sW8K} offen", line)
        if "x" in abl and line.startswith("buffer_load_dwordx4 v4,"):
            return re.sub(r"s\d+ offen", f"s{sW8K} offen", line)
        if "f" in abl and line.startswith("buffer_store") and ws:
            return line.replace(" sc1", "")
        if "l" in abl and line.startswith("buffer_load_dwordx4") and ws:
            return line.replace(" sc1", "")
        if not line.startswith("buffer_load"):
            return line
        for key, regs in (("x", (sX,)), ("w", (sWG, sWU)), ("d", (sWD,)), ("k", (sK, sV, sSH, sSK))):
            if key in self.o["nt"] and any(srd(r) in line for r in regs):
                return line[:-4] + " nt lds" if line.endswith(" lds") else line + " nt"
        return line

    def build(self):
        ga = self.stream_GA()
        streams = [self.entry(), self.stream_GB(), ga, self.stream_PB(), self.stream_PA()]
        by = {s.name: s for s in streams}
        assert by["GA"].nbar == by["GB"].nbar, (by["GA"].nbar, by["GB"].nbar)
        assert by["PA"].nbar == by["PB"].nbar, (by["PA"].nbar, by["PB"].nbar)
        body = []
        self.info = {}
        for s in streams:
            lines, added = fix_hazards([self.policy(l) for l in s.L])
            self.info[s.name] = (len(lines), added, s.nbar)
            body += lines
        ref = open(f"cdna_kernels/{NAME}.s.ref").read().split("\n")
        head = [l for l in ref if l.startswith(";") and "@launch" not in l]
        out = head + [f"; @launch grid=(256,1,1) block=(512,1,1) lds={LDS_BYTES}",
                      '.amdgcn_target "amdgcn-amd-amdhsa--gfx950"', ".text", f".globl {NAME}_kernel", ".p2align 8",
                      f".type {NAME}_kernel,@function", f"{NAME}_kernel:"]
        out += [l if l.endswith(":") else "    " + l for l in body]
        out += ["L_code_end:", '.section .rodata,"a"', ".p2align 6", f".amdhsa_kernel {NAME}_kernel",
                "  .amdhsa_next_free_vgpr 256", "  .amdhsa_next_free_sgpr 102", "  .amdhsa_accum_offset 256",
                "  .amdhsa_group_segment_fixed_size 0", "  .amdhsa_kernarg_size 104", "  .amdhsa_user_sgpr_count 2",
                "  .amdhsa_user_sgpr_kernarg_segment_ptr 1", "  .amdhsa_system_sgpr_workgroup_id_x 1",
                "  .amdhsa_float_denorm_mode_32 3", ".end_amdhsa_kernel", ""]
        return "\n".join(out)


def parse_opts(args):
    kw = {}
    for a in args:
        k, v = a.split("=")
        kw[k] = int(v) if v.lstrip("-").isdigit() else v
    return kw


if __name__ == "__main__":
    path = sys.argv[1]
    g = Gen(**parse_opts(sys.argv[2:]))
    open(path, "w").write(g.build())
    print(g.info, g.published)
```

```python
import re
import struct
import sys
from collections import deque

from asmlib import Addr, Stream, fix_hazards, vr

NAME = "recurrent_scan__ssm_conv_h3__glu_gated_geglu__prompt"

DEFAULTS = dict(stamp=0, st="", pf=6, upto="all", conv_lead=10, conv_grp=3, poll_limit=40000, nt="", diag="",
                fill_from=2, fill_n=3, gap=5, kflip=1, abl="", prio_b=0, qgap=30, p0_at=16, drain=22,
                b0_at=72, conv_valu=2, remap=0, skew=1, hold=0, ygo=34)

EPOCH, STATS, FKV, FY, FH, STAMPS = 0x0, 0x8000, 0x10000, 0x20000, 0x40000, 0xA0000
KVT, YB, HB, WS_END = 0x100000, 0x300000, 0x500000, 0xC00000
TAG_STEP = 0x9E3779B1

X1, X2, X0 = 0, 33280, 66560
ACC0, ST1, ST2, SPARE = 99840, 116224, 132608, 148992
KVB, KVS = SPARE, 5120
PFL = KVB + 4608
LDS_BYTES = 163840
G = 2
CH = 16384 + 4096 * G
XSLOT = {2: X1, 3: X2, 4: X0, 5: X1, 6: X2, 7: X0}
RA = (X2, ST1, X0)

sX, sWS, sWD, sOUT, sWG, sWU, sK, sV, sSH, sSK = 4, 8, 12, 16, 20, 24, 28, 32, 36, 40
sDP, sD, sT, sW, sW8 = 44, 46, 47, 48, 49
sXCD, sSLOT, sI, sJ, sROT, sP2, sDB, sBLK = 50, 51, 52, 53, 54, 55, 56, 57
sW1K, sW4K, sW8K, sW8320 = 61, 62, 63, 64
sA, sB_, sC, sE, sF, sCNT, sG = 65, 66, 67, 68, 1, 70, 71
sCQ, sCH = 3, 0
sBLA = 28
BLK = [sBLK, sBLK + 1, sBLK + 2, sBLK + 3, 37, 38, 39]
sSTAMP = 72
NSTAMP = 15

srd = lambda n: f"s[{n}:{n + 3}]"
fhex = lambda x: "0x%08x" % struct.unpack("<I", struct.pack("<f", x))[0]
LOG2E = 1.4426950408889634
MFMA32 = "v_mfma_f32_32x32x16_bf16"
MFMA16 = "v_mfma_f32_16x16x32_bf16"


class Gen:
    def __init__(self, **kw):
        self.o = dict(DEFAULTS, **kw)
        self.stamp_names = {}

    def stamp(self, s, name, group=""):
        if not self.o["stamp"]:
            return
        names = self.stamp_names.setdefault(s.name, [])
        if name != "end" and self.o["st"] not in group.split("|"):
            return
        if name not in names:
            assert len(names) < NSTAMP - 2, names
            names.append(name)
        r = sSTAMP + 4 + 2 * names.index(name)
        s.e(f"s_memtime s[{r}:{r + 1}]")

    def finish(self, s):
        if self.o["stamp"]:
            s.e("s_waitcnt vmcnt(0)")
            self.stamp(s, "end")
            s.e(f"s_memrealtime s[{sBLK + 1}:{sBLK + 2}]")
            self.diag(s)
            s.e(f"""s_waitcnt lgkmcnt(0)
                s_lshl_b32 s{sA}, s2, 9
                s_lshl_b32 s{sB_}, s{sW8}, 6
                s_add_u32 s{sA}, s{sA}, s{sB_}
                s_add_u32 s{sA}, s{sA}, {STAMPS}
                v_mov_b32 v1, 0""")
            for k in range(2 + len(self.stamp_names[s.name])):
                s.e(f"v_mov_b32 v2, s{sSTAMP + 2 * k}")
                s.e(f"buffer_store_dword v2, v1, {srd(sWS)}, s{sA} offen offset:{4 * k}")
            s.e(f"v_mov_b32 v2, s{sBLK + 1}\nbuffer_store_dword v2, v1, {srd(sWS)}, s{sA} offen offset:60")
        s.e("s_endpgm")

    def diag(self, s):
        if not self.o["diag"]:
            return
        stream, name, wg, mult = self.o["diag"].split(":")
        if stream != s.name:
            return
        loop, skip = s.label("diag"), s.label("nodiag")
        names = self.stamp_names[s.name]
        e = sSTAMP + 4 + 2 * names.index("end")
        s.e(f"s_waitcnt lgkmcnt(0)\ns_cmp_lg_u32 s2, {wg}\ns_cbranch_scc1 {skip}")
        if name.startswith("rt"):
            if name == "rtfixed":
                s.e(f"s_mov_b32 s{sA}, {mult}")
            else:
                s.e(f"s_sub_u32 s{sA}, s{sBLK + 1}, s{sSTAMP}\ns_mul_i32 s{sA}, s{sA}, {mult}")
            s.e(f"""s_min_u32 s{sA}, s{sA}, 100000
                {loop}:
                s_memrealtime s[{sE}:{sE + 1}]
                s_waitcnt lgkmcnt(0)
                s_sub_u32 s{sB_}, s{sE}, s{sBLK + 1}
                s_cmp_lt_u32 s{sB_}, s{sA}
                s_cbranch_scc1 {loop}
                {skip}:""")
            return
        if name == "fixed":
            s.e(f"s_mov_b32 s{sA}, {mult}")
        else:
            r = sSTAMP + 2 + 2 * (names.index(name) + 1)
            s.e(f"s_sub_u32 s{sA}, s{r}, s{sSTAMP + 2}\ns_mul_i32 s{sA}, s{sA}, {mult}")
        s.e(f"""s_min_u32 s{sA}, s{sA}, 2000000
            {loop}:
            s_memtime s[{sE}:{sE + 1}]
            s_waitcnt lgkmcnt(0)
            s_sub_u32 s{sB_}, s{sE}, s{e}
            s_cmp_lt_u32 s{sB_}, s{sA}
            s_cbranch_scc1 {loop}
            {skip}:""")

    @staticmethod
    def capture(fn):
        tmp = Stream("tmp")
        fn(tmp)
        assert tmp.vm == 0 and tmp.lg == 0
        out = []
        for line in tmp.L:
            if out and out[-1].split("\n")[-1].startswith("s_cmp"):
                out[-1] += "\n" + line
            else:
                out.append(line)
        return out

    def poll(self, s, tok, issue, regs, mask=None):
        def check():
            s.e(f"v_cmp_ne_u32 vcc, s{sT}, v{regs[0]}")
            for r in regs[1:]:
                s.e(f"v_cmp_ne_u32 s[{sE}:{sE + 1}], s{sT}, v{r}")
                s.e(f"s_or_b64 vcc, vcc, s[{sE}:{sE + 1}]")
            if mask:
                s.e(f"s_and_b64 vcc, vcc, {mask:#x}")
        ok, again = s.label("ok"), s.label("poll")
        s.wait(vm=tok)
        check()
        s.e(f"s_cbranch_vccz {ok}")
        s.e(f"s_mov_b32 s{sCNT}, 0")
        s.e(f"{again}:")
        for t in issue:
            s.e(t)
        s.e("s_waitcnt vmcnt(0)")
        check()
        s.e(f"""s_add_u32 s{sCNT}, s{sCNT}, 1
            s_cmp_gt_u32 s{sCNT}, {self.o['poll_limit']}
            s_cbranch_scc1 {ok}
            s_cbranch_vccnz {again}
            {ok}:""")

    def flag(self, s, vT, vZ, soff):
        return s.vmem(f"buffer_store_dword v{vT}, v{vZ}, {srd(sWS)}, {soff} offen sc1")

    def lane0_offset(self, s, v):
        s.e(f"v_min_u32 v{v}, 1, v0\nv_lshlrev_b32 v{v}, 30, v{v}")

    def tag_ready(self, s):
        s.wait_all_lg()
        s.e(f"s_add_u32 s{sT}, s{sT}, {TAG_STEP:#x}")

    def row_of_group(self, s, dst, g):
        s.e(f"""s_add_u32 s{dst}, s{sCQ}, {g >> 1}
            s_and_b32 s{dst}, s{dst}, 3
            s_lshl_b32 s{dst}, s{dst}, 6
            s_add_u32 s{dst}, s{dst}, s{sI}""")
        if g & 1:
            s.e(f"s_add_u32 s{dst}, s{dst}, 32")

    def block_ids(self, s):
        s.e(f"""s_add_u32 s{sE}, s{sDB}, s{sXCD}
            s_mul_i32 s{sA}, s{sE}, 37
            s_lshr_b32 s{sA}, s{sA}, 8
            s_mul_i32 s{sA}, s{sA}, 7
            s_sub_u32 s{sE}, s{sE}, s{sA}""")
        for b in range(7):
            s.e(f"""s_add_u32 s{sA}, s{sW}, {4 * b}
                s_mul_i32 s{sB_}, s{sA}, 37
                s_lshr_b32 s{sB_}, s{sB_}, 8
                s_mul_i32 s{sC}, s{sB_}, 7
                s_sub_u32 s{sA}, s{sA}, s{sC}
                s_add_u32 s{sA}, s{sA}, s{sE}
                s_sub_u32 s{sC}, s{sA}, 7
                s_cmp_ge_u32 s{sA}, 7
                s_cselect_b32 s{sA}, s{sC}, s{sA}
                s_sub_u32 s{sB_}, s{sP2}, s{sB_}
                s_and_b32 s{sB_}, s{sB_}, 3
                s_mul_i32 s{sB_}, s{sB_}, 7
                s_add_u32 s{BLK[b]}, s{sA}, s{sB_}""")

    def hflag_addr(self, s, v, t, blks):
        s.e(f"""v_bfe_u32 v{t}, v0, 2, 2
            v_mov_b32 v{v}, s{blks[0]}""")
        for b in range(1, len(blks)):
            s.e(f"""v_mov_b32 v{t + 1}, s{blks[b]}
                v_cmp_eq_u32 vcc, {b}, v{t}
                v_cndmask_b32 v{v}, v{v}, v{t + 1}, vcc""")
        s.e(f"""s_mul_i32 s{sA}, s{sP2}, {2 * 3584}
            s_add_u32 s{sA}, s{sA}, {FH}
            v_and_b32 v{t}, 3, v0
            v_lshlrev_b32 v{t}, 2, v{t}
            v_lshl_add_u32 v{v}, v{v}, 7, v{t}
            v_add_u32 v{v}, s{sA}, v{v}""")

    def wd_src_addr(self, s, vD, t):
        s.e(f"""v_lshrrev_b32 v{t}, 3, v0
            v_bfe_u32 v{t + 1}, v0, 4, 1
            v_lshlrev_b32 v{t + 1}, 2, v{t + 1}
            v_and_b32 v{vD}, 7, v0
            v_xor_b32 v{vD}, v{vD}, v{t + 1}
            v_lshlrev_b32 v{vD}, 4, v{vD}
            v_lshl_add_u32 v{vD}, v{t}, 10, v{vD}""")

    def wd_read_addrs(self, s, vR0, vR1, t, base):
        s.e(f"""v_lshrrev_b32 v{t}, 5, v0
            v_lshlrev_b32 v{vR0}, 10, v{t}
            v_bfe_u32 v{t}, v0, 2, 2
            v_lshl_add_u32 v{vR0}, v{t}, 7, v{vR0}
            v_bfe_u32 v{t}, v0, 3, 1
            v_lshl_add_u32 v{vR0}, v{t}, 6, v{vR0}
            v_bfe_u32 v{t}, v0, 4, 1
            v_lshl_add_u32 v{vR0}, v{t}, 5, v{vR0}
            v_and_b32 v{t}, 3, v0
            v_lshl_add_u32 v{vR0}, v{t}, 3, v{vR0}
            v_xor_b32 v{vR1}, 64, v{vR0}
            s_add_u32 s{sA}, s{sW8K}, {base}
            v_add_u32 v{vR0}, s{sA}, v{vR0}
            v_add_u32 v{vR1}, s{sA}, v{vR1}""")

    def wd_dma(self, s, b, wpart, lds):
        s.e(f"s_add_u32 m0, s{wpart}, {lds}\ns_add_u32 s{sBLA + b}, s{sBLA + b}, 8192")
        return s.vmem(f"buffer_load_dwordx4 v8, {srd(sWD)}, s{sBLA + b} offen lds")

    def lds_spin(self, s, addr_reg, dst, quad, want=1, payload=None):
        spin, free = s.label("spin"), s.label("spinok")
        s.e(f"s_mov_b32 s{sCNT}, 0\n{spin}:")
        s.e(f"ds_read_b128 {vr(dst, 4)}, v{addr_reg}" if quad else f"ds_read_b32 v{dst}, v{addr_reg}")
        if payload:
            s.e(payload)
        s.e("s_waitcnt lgkmcnt(0)")
        s.lg_done = s.lg
        if quad:
            s.e(f"""v_and_b32 v{dst}, v{dst}, v{dst + 1}
                v_and_b32 v{dst + 2}, v{dst + 2}, v{dst + 3}
                v_and_b32 v{dst}, v{dst}, v{dst + 2}""")
        s.e(f"""v_cmp_ne_u32 vcc, {want}, v{dst}
            s_cbranch_vccz {free}
            s_add_u32 s{sCNT}, s{sCNT}, 1
            s_cmp_le_u32 s{sCNT}, {64 * self.o['poll_limit']}
            s_cbranch_scc1 {spin}
            {free}:""")

    def epi_instrs(self, AG, CS, P, CON, stp):
        AU = AG + 8
        M, CA, CB, SD2 = (CON + k for k in range(4))
        c0 = -2.0 * LOG2E * 0.7978845608028654
        head = [f"v_and_b32 v{SD2}, 0xffff0000, v{stp}", f"v_rcp_f32 v{CA}, v{SD2}", f"v_lshlrev_b32 v{M}, 16, v{stp}",
                f"v_mul_f32 v{SD2}, v{SD2}, v{SD2}", f"v_mul_f32 v{CB}, v{CA}, v{CA}",
                f"v_mul_f32 v{CA}, {fhex(c0)}, v{CA}", f"v_mul_f32 v{CB}, {fhex(0.044715)}, v{CB}",
                f"v_mul_f32 v{CB}, v{CB}, v{CA}"]
        R = range(8)
        mix = lambda a, b: [x for pair in zip(a, b) for x in pair]
        body = [f"v_fma_f32 v{AG + k}, -v{M}, v{CS + k}, v{AG + k}" for k in R]
        body += [f"v_mul_f32 v{P[k]}, v{AG + k}, v{AG + k}" for k in R]
        body += [f"v_fma_f32 v{P[k]}, v{P[k]}, v{CB}, v{CA}" for k in R]
        body += [f"v_mul_f32 v{P[k]}, v{P[k]}, v{AG + k}" for k in R]
        body += mix([f"v_exp_f32 v{P[k]}, v{P[k]}" for k in R],
                    [f"v_fma_f32 v{AU + k}, -v{M}, v{CS + 8 + k}, v{AU + k}" for k in R])
        body += [f"v_fma_f32 v{P[k]}, v{P[k]}, v{SD2}, v{SD2}" for k in R]
        body += mix([f"v_rcp_f32 v{P[k]}, v{P[k]}" for k in R],
                    [f"v_mul_f32 v{AU + k}, v{AU + k}, v{AG + k}" for k in R])
        body += [f"v_mul_f32 v{AU + k}, v{AU + k}, v{P[k]}" for k in R]
        body += [f"v_cvt_pk_bf16_f32 v{AG + x}, v{AU + 2 * x}, v{AU + 2 * x + 1}" for x in range(4)]
        return head, body

    def partial_addrs(self, s, v, t):
        s.e(f"""v_and_b32 v{t}, 31, v0
            v_lshlrev_b32 v{t}, 8, v{t}
            v_add_u32 v{t}, s{sW8K}, v{t}
            v_lshrrev_b32 v{t + 1}, 5, v0
            v_and_b32 v{t + 2}, 7, v0
            v_xor_b32 v{t + 1}, v{t + 1}, v{t + 2}""")
        for i in range(4):
            s.e(f"""v_xor_b32 v{t + 2}, {2 * i}, v{t + 1}
                v_lshl_add_u32 v{v + i}, v{t + 2}, 4, v{t}""")
        return [Addr(s, v + i, 0) for i in range(4)]

    def partial_write(self, s, pa, acc, region, dt, i):
        r, o = pa[i].off(region + dt * 128, region)
        return s.ds(f"ds_write_b128 {r}, {vr(acc + 16 * dt + 4 * i, 4)} offset:{o}")

    def h_soff(self, s, b, th):
        s.e(f"""s_lshl_b32 s{sA}, s{BLK[b]}, 12
            s_add_u32 s{sC}, s{sA}, s{sF}""")
        if th:
            s.e(f"s_add_u32 s{sC}, s{sC}, 114688")

    def entry(self):
        s = Stream("entry")
        if self.o["stamp"]:
            s.e(f"s_memrealtime s[{sSTAMP}:{sSTAMP + 1}]")
            s.e(f"s_memtime s[{sSTAMP + 2}:{sSTAMP + 3}]")
        s.e("s_cmp_ge_u32 s2, 256\ns_cbranch_scc1 L_exit")
        if self.o["remap"] == 1:
            s.e(f"""s_lshr_b32 s{sA}, s2, 4
                s_xor_b32 s{sB_}, s2, {(14 ^ 28) << 3}
                s_cmp_eq_u32 s{sA}, 7
                s_cselect_b32 s2, s{sB_}, s2
                s_cmp_eq_u32 s{sA}, 14
                s_cselect_b32 s2, s{sB_}, s2""")
        if self.o["remap"] == 2:
            s.e(f"""s_lshr_b32 s{sA}, s2, 5
                s_xor_b32 s{sB_}, s2, {(3 ^ 5) << 5}
                s_cmp_eq_u32 s{sA}, 3
                s_cselect_b32 s2, s{sB_}, s2
                s_cmp_eq_u32 s{sA}, 5
                s_cselect_b32 s2, s{sB_}, s2""")
        for reg, slot in ((sWG, 7), (sWU, 8), (sX, 0), (sWS, 12), (sK, 1), (sV, 2), (sSH, 3), (sSK, 4), (sDP, 5),
                          (sWD, 9), (sOUT, 10)):
            s.e(f"s_load_dwordx2 s[{reg}:{reg + 1}], s[0:1], {slot * 8}")
        s.e(f"""v_lshrrev_b32 v1, 6, v0
            s_lshr_b32 s{sSLOT}, s2, 3
            v_readfirstlane_b32 s{sW8}, v1
            v_and_b32 v0, 63, v0
            s_cmp_lg_u32 s{sW8}, 0
            s_cbranch_scc1 L_nopf
            s_getpc_b64 s[{sE}:{sE + 1}]
            L_pc:
            s_sub_u32 s{sE}, s{sE}, L_pc-{NAME}_kernel
            s_subb_u32 s{sE + 1}, s{sE + 1}, 0
            v_and_b32 v1, 15, v0
            v_lshlrev_b32 v1, 5, v1
            v_add_u32 v1, s{sSLOT}, v1
            v_lshlrev_b32 v1, 7, v1
            v_min_u32 v1, L_code_end-{NAME}_kernel-4, v1
            global_load_dword v255, v1, s[{sE}:{sE + 1}]
            L_nopf:""")
        self.srd_consts(s, (sX, sWG, sWU))
        s.e(f"""s_and_b32 s{sW}, s{sW8}, 3
            s_and_b32 s{sXCD}, s2, 7
            s_and_b32 s{sB_}, s{sXCD}, 1
            s_lshl_b32 s{sA}, s{sB_}, 2
            s_lshr_b32 s{sCQ}, s{sXCD}, 1
            s_and_b32 s{sC}, s{sSLOT}, 3
            s_lshr_b32 s{sDB}, s{sSLOT}, 2
            s_add_u32 s{sI}, s{sA}, s{sC}
            s_lshl_b32 s{sI}, s{sI}, 8
            s_mul_i32 s{sJ}, s{sCQ}, 7
            s_add_u32 s{sJ}, s{sJ}, s{sDB}
            s_lshl_b32 s{sROT}, s{sC}, 1
            s_add_u32 s{sROT}, s{sROT}, s{sDB}""")
        if self.o["kflip"]:
            s.e(f"s_add_u32 s{sROT}, s{sROT}, s{sB_}")
        s.e(f"""s_lshl_b32 s{sW1K}, s{sW}, 10
            s_lshl_b32 s{sW4K}, s{sW}, 12
            s_lshl_b32 s{sW8K}, s{sW}, 13
            s_cmp_ge_u32 s{sSLOT}, 28
            s_cbranch_scc1 L_role_p
            s_cmp_lt_u32 s{sW8}, 4
            s_cbranch_scc1 L_GA""")
        return s

    SIZES = {sX: 2097152, sWS: WS_END, sWD: 1835008, sOUT: 2097152, sWG: 1835008, sWU: 1835008, sK: 2097152,
             sV: 2097152, sSH: 4096, sSK: 2097152}

    def srd_consts(self, s, regs):
        for reg in regs:
            s.e(f"s_mov_b32 s{reg + 2}, {self.SIZES[reg]}\ns_mov_b32 s{reg + 3}, 0x00020000")

    def pair_index(self, s):
        s.e(f"""s_and_b32 s{sA}, s{sXCD}, 1
            s_lshl_b32 s{sA}, s{sA}, 2
            s_add_u32 s{sP2}, s{sA}, s{sCQ}
            s_lshl_b32 s{sP2}, s{sP2}, 2
            s_and_b32 s{sA}, s{sSLOT}, 3
            s_add_u32 s{sP2}, s{sP2}, s{sA}
            s_mul_i32 s{sA}, s{sA}, {self.o['skew']}
            s_add_u32 s{sDB}, s{sDB}, s{sA}
            s_and_b32 s{sDB}, s{sDB}, 7""")

    def late_scalars(self, s):
        s.e(f"""s_waitcnt lgkmcnt(0)
            s_add_u32 s{sCH}, s2, 32
            s_and_b32 s{sCH}, s{sCH}, 255
            s_lshl_b32 s{sA}, s{sCH}, 2
            s_load_dword s{sT}, s[{sWS}:{sWS + 1}], {EPOCH}
            s_load_dword s{sD}, s[{sDP}:{sDP + 1}], s{sA}""")

    def stats_load(self, s):
        s.e(f"""v_lshrrev_b32 v22, 5, v0
            v_and_b32 v23, 31, v0
            v_lshlrev_b32 v23, 4, v23
            v_lshl_add_u32 v23, v22, 10, v23
            s_lshl_b32 s{sA}, s{sCQ}, 3
            s_add_u32 s{sA}, s{sA}, s{sDB}
            s_lshl_b32 s{sA}, s{sA}, 2
            s_add_u32 s{sA}, s{sA}, s{sW}
            s_lshl_b32 s{sA}, s{sA}, 1
            s_add_u32 s{sA}, s{sA}, s{sI}
            s_lshl_b32 s{sB_}, s{sA}, 10
            s_lshl_b32 s{sA}, s{sA}, 4
            s_lshl_b32 s{sC}, s{sW}, 4
            s_sub_u32 s{sA}, s{sA}, s{sC}
            s_add_u32 s{sA}, s{sA}, {STATS}
            v_lshlrev_b32 v22, 3, v22
            v_add_u32 v22, s{sA}, v22""")
        self.late_scalars(s)
        s.vmem(f"buffer_load_dwordx4 v[224:227], v23, {srd(sX)}, s{sB_} offen")
        return s.vmem(f"buffer_load_dwordx4 v[228:231], v23, {srd(sX)}, s{sB_} offen offset:512")

    def stats(self, s, tok):
        R, F = 224, 232

        def reduce(r):
            for sh in (8, 4, 2, 1):
                s.e(f"v_add_f32_dpp v{r}, v{r}, v{r} row_ror:{sh} row_mask:0xf bank_mask:0xf")
            s.e(f"v_mov_b32 v{r + 1}, v{r}\nv_permlane16_swap_b32 v{r}, v{r + 1}\nv_add_f32 v{r}, v{r}, v{r + 1}")

        s.wait(vm=tok)
        for k in range(8):
            s.e(f"v_lshlrev_b32 v{F + 2 * k}, 16, v{R + k}\nv_and_b32 v{F + 2 * k + 1}, 0xffff0000, v{R + k}")
        for k in range(8):
            s.e(f"v_add_f32 v{R + k}, v{F + 2 * k}, v{F + 2 * k + 1}")
        for w in (4, 2, 1):
            for k in range(w):
                s.e(f"v_add_f32 v{R + k}, v{R + k}, v{R + k + w}")
        reduce(R)
        s.e(f"v_mul_f32 v{R}, {fhex(1 / 512)}, v{R}")
        for k in range(16):
            s.e(f"v_sub_f32 v{F + k}, v{F + k}, v{R}")
        s.e(f"v_mul_f32 v{R + 2}, v{F}, v{F}\nv_mul_f32 v{R + 3}, v{F + 1}, v{F + 1}")
        for k in range(2, 16):
            s.e(f"v_fmac_f32 v{R + 2 + (k & 1)}, v{F + k}, v{F + k}")
        V = R + 2
        s.e(f"v_add_f32 v{V}, v{V}, v{V + 1}")
        reduce(V)
        s.e(f"""v_mul_f32 v{V}, {fhex(1 / 512)}, v{V}
            v_cvt_pk_bf16_f32 v{V}, v{V}, v{V}
            v_and_b32 v{V}, 0xffff0000, v{V}
            v_add_f32 v{V}, {fhex(1e-5)}, v{V}
            v_cvt_pk_bf16_f32 v{V}, v{V}, v{V}
            v_and_b32 v{V}, 0xffff0000, v{V}
            v_sqrt_f32 v{V}, v{V}""")
        self.tag_ready(s)
        s.e(f"""v_cvt_pk_bf16_f32 v{R + 5}, v{R}, v{V}
            v_mov_b32 v{R + 4}, s{sT}
            s_mov_b32 exec_lo, 1
            s_mov_b32 exec_hi, 1""")
        s.vmem(f"buffer_store_dwordx2 {vr(R + 4, 2)}, v22, {srd(sWS)}, 0 offen sc1")
        s.e("s_mov_b64 exec, -1")

    KV_K, KV_V, KV_T = 128, 172, 204

    def kv_load(self, s, mid=None):
        K, V, T = self.KV_K, self.KV_V, self.KV_T
        s.e(f"""v_lshrrev_b32 v16, 3, v0
            v_and_b32 v17, 7, v0
            v_lshlrev_b32 v18, 4, v17
            v_lshl_add_u32 v18, v16, 13, v18
            s_sub_u32 s{sA}, s2, 224
            s_lshl_b32 s{sA}, s{sA}, 16
            s_lshl_b32 s{sB_}, s{sW8}, 7
            s_add_u32 s{sA}, s{sA}, s{sB_}
            s_add_u32 s{sB_}, s{sA}, 4096
            s_sub_u32 s{sC}, s{sA}, 3072
            v_add_u32 v19, s{sC}, v18
            v_lshlrev_b32 v20, 6, v17
            s_lshl_b32 s{sC}, s{sW8}, 9""")
        row = lambda dst, buf, i: s.vmem(f"buffer_load_dwordx4 {vr(dst, 4)}, v18, {srd(buf)}, "
                                         f"s{sB_ if i >= 4 else sA} offen offset:{(i & 3) * 1024}")
        for z in range(4):
            s.vmem(f"buffer_load_dwordx4 {vr(T + 4 * z, 4)}, v20, {srd(sSH)}, s{sC} offen offset:{16 * z}")
        for i in (5, 6, 7):
            row(K + 4 * (3 + i), sK, i)
            s.vmem(f"buffer_load_dwordx4 {vr(K + 4 * (i - 5), 4)}, v19, {srd(sK)}, 0 offen offset:{(i - 5) * 1024}")
        for i in range(5):
            kt = row(K + 4 * (3 + i), sK, i)
        if mid:
            mid()
        s.barrier("p1")
        for i in range(8):
            vt = row(V + 4 * i, sV, i)
        return kt, vt

    def kv_compute(self, s, kt, vt):
        K, V, T = self.KV_K, self.KV_V, self.KV_T
        KS, KF, TP, PK = 24, 88, 100, 104

        def unpack(dst, src, e):
            s.e(f"v_and_b32 v{dst}, 0xffff0000, v{src}" if e else f"v_lshlrev_b32 v{dst}, 16, v{src}")

        s.e(f"""v_sub_u32 v19, 7, v17
            v_lshl_add_u32 v19, v19, 3, v16
            v_lshlrev_b32 v19, 2, v19
            v_lshlrev_b32 v20, 4, v17
            v_lshl_add_u32 v20, v16, 15, v20
            s_sub_u32 s{sB_}, s2, 224
            s_lshl_b32 s{sB_}, s{sB_}, 7
            s_lshl_b32 s{sC}, s{sW8}, 18
            s_sub_u32 s{sC}, s{sC}, s{sB_}
            s_add_u32 s{sC}, s{sC}, {KVT + 3968}""")
        s.wait(vm=kt)
        for c in range(8):
            for i in range(4):
                unpack(TP + i, T + 2 * c + (i >> 1), i & 1)
            for z in range(11):
                unpack(KF + z, K + 4 * z + (c >> 1), c & 1)
            for t in range(8):
                s.e(f"v_mul_f32 v{KS + 8 * c + t}, v{KF + t}, v{TP + 3}")
            for i in (2, 1, 0):
                for t in range(8):
                    s.e(f"v_fmac_f32 v{KS + 8 * c + t}, v{KF + t + 3 - i}, v{TP + i}")
        s.wait(vm=vt)
        pend = []

        def store(c, tok):
            s.wait(lg=tok)
            t = s.vmem(f"buffer_store_dwordx4 {vr(K + 4 * c, 4)}, v20, {srd(sWS)}, s{sC} offen sc1")
            s.e(f"s_add_u32 s{sC}, s{sC}, 4096")
            return t

        for c in range(8):
            for z in range(8):
                unpack(KF + z, V + 4 * z + (c >> 1), c & 1)
            for t in range(8):
                s.e(f"v_mul_f32 v{KS + 8 * c + t}, v{KS + 8 * c + t}, v{KF + t}")
            p = PK + 4 * (c & 1)
            for x in range(4):
                s.e(f"v_cvt_pk_bf16_f32 v{p + x}, v{KS + 8 * c + 7 - 2 * x}, v{KS + 8 * c + 6 - 2 * x}")
            if pend:
                store(*pend.pop())
            for x in range(4):
                tok = s.ds(f"ds_bpermute_b32 v{K + 4 * c + x}, v19, v{p + x}")
            pend.append((c, tok))
        return store(*pend.pop())

    def kv_flag(self, s, tok, vT, vZ):
        s.e(f"""s_sub_u32 s{sA}, s2, 224
            s_lshl_b32 s{sA}, s{sA}, 7
            s_lshl_b32 s{sB_}, s{sW8}, 12
            s_add_u32 s{sA}, s{sA}, s{sB_}
            s_add_u32 s{sA}, s{sA}, {FKV}""")
        s.wait(vm=tok)
        self.flag(s, vT, vZ, f"s{sA}")

    A_XF, A_ACC, A_ONE, A_W = 16, (48, 64, 80, 96), 112, 128
    sHS, sHF, sGR, sYO = 20, 28, 30, 34
    SIDE = 96

    def a_post_setup(self, s):
        self.pair_index(s)
        s.e(f"""v_and_b32 v16, 15, v0
            v_sub_u32 v17, 15, v16
            v_and_b32 v17, 3, v17
            v_add_u32 v8, v16, v17
            v_lshlrev_b32 v8, 1, v8
            v_mul_u32_u24 v17, 4160, v17
            v_add_u32 v8, v8, v17
            v_lshrrev_b32 v17, 4, v0
            v_lshl_add_u32 v8, v17, 4, v8
            s_lshr_b32 s{sA}, s{sW}, 1
            s_mul_i32 s{sB_}, s{sA}, 16640
            s_add_u32 s{sB_}, s{sB_}, {X1 + 2}
            v_add_u32 v8, s{sB_}, v8
            v_lshlrev_b32 v9, 4, v17
            v_lshlrev_b32 v16, 5, v16
            v_sub_u32 v9, v9, v16
            s_mul_i32 s{sB_}, s{sA}, {KVS}
            s_add_u32 s{sB_}, s{sB_}, {KVB + 480}
            v_add_u32 v9, s{sB_}, v9
            v_lshlrev_b32 v15, 4, v0""")
        self.lane0_offset(s, 11)
        self.srd_consts(s, (sOUT,))
        s.e(f"""s_and_b32 s{sA}, s{sW}, 1
            s_lshl_b32 s{sA}, s{sA}, 15
            s_lshr_b32 s{sB_}, s{sW}, 1
            s_lshl_b32 s{sB_}, s{sB_}, 2
            s_add_u32 s{sA}, s{sA}, s{sB_}
            s_lshl_b32 s{sB_}, s{sCH}, 7
            s_add_u32 s{sA}, s{sA}, s{sB_}
            s_add_u32 s{sG}, s{sA}, {FY}""")

    @staticmethod
    def fill(s, q, room):
        while q:
            it = q[0]
            cost = it[0] if isinstance(it, tuple) else 2 if it.startswith(("v_exp", "v_rcp")) else 1
            if cost > room and not (isinstance(it, tuple) and room > 0):
                break
            q.popleft()
            it[1]() if isinstance(it, tuple) else s.e(it)
            room -= cost
        return room

    def side_work(self, q):
        v = self.SIDE
        a, b = v + 14, v + 15
        q.e(f"""s_lshr_b32 s{sB_}, s{sW}, 1
            s_lshl_b32 s{sB_}, s{sB_}, 4
            s_lshr_b32 s{sB_}, s{sD}, s{sB_}
            s_and_b32 s{sB_}, s{sB_}, 0xffff
            v_and_b32 v{a}, 15, v0
            v_lshrrev_b32 v{b}, 4, v0
            v_lshl_add_u32 v{a}, v{b}, 3, v{a}
            v_sub_u32 v{a}, 15, v{a}""")
        for x in range(4):
            m = v + 4 + x
            q.e(f"""v_subrev_u32 v{b}, {2 * x}, v{a}
                v_med3_i32 v{b}, v{b}, 0, 2
                v_lshlrev_b32 v{b}, 3, v{b}
                v_lshlrev_b32 v{m}, v{b}, -1
                v_lshlrev_b32 v{m}, v{b}, v{m}""")
        q.e(f"""v_and_b32 v{b}, 1, v{a}
            v_lshlrev_b32 v{b}, 4, v{b}
            v_lshlrev_b32 v{b}, v{b}, s{sB_}
            v_ashrrev_i32 v{a}, 1, v{a}""")
        for x in range(4):
            q.e(f"v_cmp_eq_u32 s[{sE}:{sE + 1}], {x}, v{a}\nv_cndmask_b32 v{v + x}, 0, v{b}, s[{sE}:{sE + 1}]")
        q.e(f"""v_bfe_u32 v{v + 9}, v0, 1, 4
            v_lshrrev_b32 v{a}, 5, v0
            v_lshl_add_u32 v{v + 9}, v{a}, 4, v{v + 9}
            v_and_b32 v{b}, 1, v0
            v_lshl_add_u32 v{v + 9}, v{b}, 5, v{v + 9}
            v_lshlrev_b32 v{v + 9}, 2, v{v + 9}
            s_andn2_b32 s{sB_}, 1, s{sW}
            s_lshl_b32 s{sB_}, s{sB_}, 10
            s_add_u32 s{sB_}, s{sB_}, 512
            v_mul_u32_u24 v{a}, s{sB_}, v{a}
            v_and_b32 v{v + 10}, 31, v0
            v_lshl_add_u32 v{v + 10}, v{v + 10}, 4, v{a}
            s_lshr_b32 s{self.sYO}, s{sW}, 1
            s_lshl_b32 s{sB_}, s{sCH}, 1
            s_add_u32 s{self.sYO}, s{self.sYO}, s{sB_}
            s_lshl_b32 s{self.sYO}, s{self.sYO}, 12
            s_add_u32 s{self.sYO}, s{self.sYO}, {YB}""")

    def stream_GA(self):
        s = Stream("GA")
        o = self.o
        XF, S, ONE, W = self.A_XF, self.A_ACC, self.A_ONE, self.A_W
        s.e("L_GA:")
        stok = self.stats_load(s)
        s.e(f"""v_bfe_u32 v8, v0, 4, 1
            v_lshrrev_b32 v9, 5, v0
            v_bfe_u32 v10, v0, 2, 2
            v_lshlrev_b32 v1, 11, v8
            v_lshl_add_u32 v1, v9, 10, v1
            v_lshl_add_u32 v1, v10, 7, v1
            v_bfe_u32 v10, v0, 3, 1
            v_lshl_add_u32 v10, v8, 1, v10
            v_xor_b32 v10, s{sW}, v10
            v_lshl_add_u32 v1, v10, 5, v1
            v_and_b32 v10, 1, v0
            v_lshl_add_u32 v1, v10, 4, v1
            v_bfe_u32 v10, v0, 1, 1
            v_lshl_add_u32 v1, v10, 3, v1
            v_add_u32 v1, {X0}, v1
            v_and_b32 v8, 31, v0
            v_bfe_u32 v10, v0, 1, 3
            v_xor_b32 v10, v10, v9
            v_lshlrev_b32 v11, 7, v8
            v_add_u32 v11, {X0}, v11""")
        for k in range(4):
            s.e(f"v_xor_b32 v12, {2 * k}, v10\nv_lshl_add_u32 v{2 + k}, v12, 4, v11")
        s.e(f"""v_mul_u32_u24 v6, 1040, v8
            v_lshl_add_u32 v6, v9, 4, v6""")
        for k in range(4):
            s.e(f"v_mov_b32 v{ONE + k}, 0x3f803f80")
        self.srd_consts(s, (sWS,))
        self.stats(s, stok)
        self.stamp(s, "stats", "p1")
        s.e(f"v_mov_b32 v10, s{sT}\ns_setprio 2")

        def deferred(q):
            q.e("v_lshrrev_b32 v120, 3, v0\nv_lshlrev_b32 v120, 6, v120\nv_lshl_add_u32 v120, v0, 3, v120")
            q.e(f"""s_lshl_b32 s{sB_}, s{sJ}, 12
                s_add_u32 s{sB_}, s{sB_}, s{sW1K}
                s_add_u32 s{sB_}, s{sB_}, {HB}""")
            for z in range(4):
                self.row_of_group(q, sA, 2 * z)
                hs = self.sHS + 2 * z
                q.e(f"""s_lshl_b32 s{self.sGR + z}, s{sA}, 4
                    s_add_u32 s{self.sGR + z}, s{self.sGR + z}, {STATS}
                    s_mul_i32 s{hs}, s{sA}, 3584
                    s_add_u32 s{hs}, s{hs}, s{sB_}
                    s_add_u32 s{hs + 1}, s{hs}, 114688""")
            q.e(f"""s_mul_i32 s{self.sHF}, s{sA}, 112
                s_lshl_b32 s{sB_}, s{sJ}, 7
                s_add_u32 s{self.sHF}, s{self.sHF}, s{sB_}
                s_lshl_b32 s{sB_}, s{sW}, 2
                s_add_u32 s{self.sHF}, s{self.sHF}, s{sB_}
                s_add_u32 s{self.sHF}, s{self.sHF}, {FH}
                s_add_u32 s{self.sHF + 1}, s{self.sHF}, 3584""")
            self.a_post_setup(q)

        setup = deque(l.replace("v16", "v121").replace("v17", "v122") for l in self.capture(deferred))
        gran_txt = lambda q: f"buffer_load_dwordx2 v[116:117], v120, {srd(sWS)}, s{self.sGR + q} offen sc1"
        gtok = {}
        aTR = Addr(s, 1, X0)
        aXA = [Addr(s, 2 + k, X0) for k in range(4)]
        aXR = Addr(s, 6, 0)
        acc_of = {g: (S[0], S[1], S[3])[g % 3] for g in range(8)}
        cs = lambda c: X0 + (c % 3) * CH

        def rd1(n):
            c, st = divmod(n, 4)
            for x in range(2):
                r, off = aTR.off(cs(c) + st * 4096 + x * 512, cs(c))
                s.ds(f"ds_read_b64_tr_b16 {vr(W + 4 * n + 2 * x, 2)}, {r} offset:{off}")
            for g in range(G):
                r, off = aXA[st].off(cs(c) + 16384 + g * 4096, cs(c))
                t = s.ds(f"ds_read_b128 {vr(XF + 4 * ((n & 1) * G + g), 4)}, {r} offset:{off}")
            return t

        frag = lambda g, k: XF + 4 * (((g - G) * 32 + k + 4) % 8)
        xt = {}

        def rd2(g, k):
            r, off = aXR.off(XSLOT[g] + 32 * k, XSLOT[g])
            xt[g, k] = s.ds(f"ds_read_b128 {vr(frag(g, k), 4)}, {r} offset:{off}")

        PF = 6
        s.barrier("b0")
        self.stamp(s, "b0", "|p1")
        tok = rd1(0)
        for n in range(32):
            nxt = None
            if n % 4 == 3:
                s.wait(lg=tok)
                s.barrier(f"b{n // 4 + 1}")
                self.stamp(s, f"b{n // 4 + 1}", "|p1|p2" if n == 31 else "p1")
            if n == 18:
                gtok[0] = s.vmem(gran_txt(0))
            if n < 31:
                nxt = rd1(n + 1)
            else:
                assert not setup
                for k in range(PF):
                    rd2(G, k)
            s.wait(lg=tok)
            for g in range(G):
                a = acc_of[g]
                s.e(f"{MFMA32} {vr(a, 16)}, {vr(W + 4 * n, 4)}, {vr(XF + 4 * ((n & 1) * G + g), 4)}, "
                    f"{vr(a, 16) if n else 0}")
                for z in range(4):
                    if setup:
                        s.e(setup.popleft())
            s.e(f"{MFMA32} {vr(S[2], 16)}, {vr(W + 4 * n, 4)}, {vr(ONE, 4)}, {vr(S[2], 16) if n else 0}")
            tok = nxt

        P = [112, 113, 114, 115, 124, 125, 126, 127]
        htok, done_at = {}, {}
        now = [0]

        def stats_check(q):
            self.poll(s, gtok[q], [gran_txt(q)], [116])
            s.e("v_mov_b32 v118, v117\nv_mov_b32 v119, v117")
            if q < 3:
                gtok[q + 1] = s.vmem(gran_txt(q + 1))

        def store(e):
            htok[e] = s.vmem(f"buffer_store_dwordx4 {vr(acc_of[e], 4)}, v15, {srd(sWS)}, s{self.sHS + e} offen sc1")
            done_at[e] = now[0]

        def epi_items(e):
            head, body = self.epi_instrs(acc_of[e], S[2], P, 1, 118 + (e & 1))
            pre = [] if e & 1 else [(5, lambda: stats_check(e >> 1)), "v_permlane32_swap_b32 v118, v119"]
            return pre + head + body + [(1, lambda: store(e))]

        epi = deque(epi_items(0))
        side = deque(self.capture(self.side_work))
        self.published = {}
        for g in range(G, 8):
            epi.extend(epi_items(g - 1))
            assert g < 3 or g - 3 in htok
            for k in range(32):
                now[0] = 32 * g + k
                room = o["gap"]
                if k + PF < 32:
                    rd2(g, k + PF)
                elif k == 28:
                    old = [e for e in done_at if done_at[e] <= now[0] - o["drain"] and e < 6]
                    new = [e for e in old if not any(e in v for v in self.published.values())]
                    self.published[g + 1] = new
                    s.wait(vm=htok[new[-1]] if new else None, lg=s.lg)
                    self.stamp(s, f"ar{g + 1}", "arr")
                    s.barrier(f"beta{g + 1}")
                    self.stamp(s, f"be{g + 1}", "p2|arr")
                    room -= 3
                    if g < 7:
                        for q in range(3):
                            rd2(g + 1, q)
                elif k > 28 and g < 7:
                    rd2(g + 1, k - 26)
                if k % 4 == 0 and k < 28:
                    s.wait(lg=xt[g, k + 3])
                    room -= 1
                if g == 7 and k == 31:
                    room = 1000 if epi else room
                room = self.fill(s, epi, room)
                if g == 7 and not epi:
                    self.fill(s, side, min(room, o["gap"]))
                a = acc_of[g]
                s.e(f"{MFMA32} {vr(a, 16)}, {vr(W + 4 * k, 4)}, {vr(frag(g, k), 4)}, {vr(a, 16) if k else 0}")
        assert not epi and sorted(sum(self.published.values(), [])) == list(range(6)), self.published
        self.stamp(s, "g1end", "|p2|post")

        def late_flag(e):
            s.wait(vm=htok[e])
            self.flag(s, 10, 11, f"s{self.sHF + e - 6}")

        self.a_post(s, list(side), lambda: epi_items(7), late_flag)
        return s

    def stream_PA(self):
        s = Stream("PA")
        s.e("L_PA:")
        self.srd_consts(s, (sK, sV, sSH))
        stok = self.stats_load(s)
        self.srd_consts(s, (sWS,))
        kt, vt = self.kv_load(s, lambda: self.stats(s, stok))
        s.e(f"v_mov_b32 v10, s{sT}")
        tok = self.kv_compute(s, kt, vt)
        self.stamp(s, "kv")
        self.a_post_setup(s)
        self.kv_flag(s, tok, 10, 11)
        self.stamp(s, "kvflag")
        self.side_work(s)
        s.e("s_setprio 2")
        s.barrier("beta8")
        self.stamp(s, "beta8")
        self.a_post(s, [], lambda: [], None)
        return s

    def a_post(self, s, side, epi7, late_flag):
        join1, set1 = s.label("convjoin"), s.label("set1")
        s.e(f"s_bitcmp1_b32 s{sW}, 0\ns_cbranch_scc1 {set1}")
        snap = (s.vm, s.vm_done, s.lg, s.lg_done, s.nbar)
        res = []
        for st, tiles in enumerate(((7, 4, 3, 0), (6, 5, 2, 1))):
            s.vm, s.vm_done, s.lg, s.lg_done, s.nbar = snap
            if st:
                s.e(f"{set1}:\ns_nop 7")
            ytok = self.conv(s, st, tiles, side, epi7, late_flag)
            s.wait_all_lg()
            res.append((s.vm, s.vm_done, s.nbar, ytok))
            if not st:
                s.e(f"s_branch {join1}")
        assert res[0] == res[1]
        s.e(f"{join1}:\ns_setprio 0")
        self.stamp(s, "conv", "|post")
        sXO, sST, sYS = 20, 22, 23
        XR, SR, YR, XU, XM, YF = (16, 20), (24, 25), 28, (128, 136), (144, 152), (160, 168)
        F, RB, NL, SD, T = (176, 184), 192, 36, (38, 40), 224
        s.e(f"""s_lshl_b32 s{sXO}, s{sP2}, 16
            s_add_u32 s{sXO}, s{sXO}, s{sW8K}
            s_lshl_b32 s{sA}, s{sDB}, 7
            s_add_u32 s{sXO}, s{sXO}, s{sA}
            s_add_u32 s{sXO + 1}, s{sXO}, 32768
            s_lshl_b32 s{sST}, s{sP2}, 10
            s_lshl_b32 s{sB_}, s{sW}, 7
            s_add_u32 s{sST}, s{sST}, s{sB_}
            s_add_u32 s{sST}, s{sST}, {STATS}
            v_lshrrev_b32 v13, 3, v0
            v_and_b32 v14, 7, v0
            v_lshlrev_b32 v2, 4, v14
            v_lshl_add_u32 v6, v13, 12, v2
            v_lshl_add_u32 v2, v13, 10, v2
            v_lshlrev_b32 v9, 3, v13""")
        s.vmem(f"buffer_load_dwordx4 {vr(XR[0], 4)}, v2, {srd(sX)}, s{sXO} offen")
        s.vmem(f"buffer_load_dwordx4 {vr(XR[1], 4)}, v2, {srd(sX)}, s{sXO + 1} offen")
        st_txt = [f"buffer_load_dwordx2 {vr(44 + 2 * th, 2)}, v9, {srd(sWS)}, s{sST} offen offset:{512 * th} sc1"
                  for th in range(2)]
        for t in st_txt:
            xtok = s.vmem(t)
        s.e(f"""s_lshr_b32 s{sA}, s{sP2}, 2
            s_lshr_b32 s{sB_}, s{sP2}, 3
            s_xor_b32 s{sA}, s{sA}, s{sB_}
            s_and_b32 s{sA}, s{sA}, 1
            s_lshl_b32 s{sA}, s{sA}, 15
            s_lshl_b32 s{sB_}, s{sDB}, 12
            s_add_u32 s{sA}, s{sA}, s{sB_}
            s_add_u32 s{sA}, s{sA}, s{sW1K}
            s_add_u32 s{sA}, s{sA}, {FY}
            v_bfe_u32 v8, v0, 1, 3
            v_and_b32 v1, 1, v0
            v_lshlrev_b32 v1, 2, v1
            v_lshl_add_u32 v8, v8, 7, v1
            v_add_u32 v8, s{sA}, v8
            s_lshl_b32 s{sYS}, s{sDB}, 18
            s_lshl_b32 s{sB_}, s{sW}, 16
            s_add_u32 s{sYS}, s{sYS}, s{sB_}
            s_lshl_b32 s{sB_}, s{sP2}, 7
            s_add_u32 s{sYS}, s{sYS}, s{sB_}
            s_add_u32 s{sYS}, s{sYS}, {YB}
            s_add_u32 s{sYS + 1}, s{sYS}, 32768
            s_lshl_b32 s{sB_}, s{sW}, 5
            s_add_u32 s{sB_}, s{sB_}, s{sW4K}
            s_add_u32 s{sB_}, s{sB_}, {ACC0}
            v_add_u32 v12, s{sB_}, v15
            v_lshlrev_b32 v1, 1, v14
            v_xor_b32 v1, v1, v13
            s_lshl_b32 s{sA}, s{sW}, 11
            s_add_u32 s{sA}, s{sA}, {RA[0]}
            v_lshlrev_b32 v3, 8, v13
            v_lshl_add_u32 v3, v1, 4, v3
            v_xor_b32 v4, 16, v3
            v_add_u32 v3, s{sA}, v3
            v_add_u32 v4, s{sA}, v4
            v_lshrrev_b32 v1, 1, v14
            v_lshlrev_b32 v5, 12, v1
            v_and_b32 v1, 1, v14
            v_lshl_add_u32 v5, v1, 10, v5
            v_lshl_add_u32 v5, v14, 4, v5
            v_lshl_add_u32 v5, v13, 1, v5
            s_lshl_b32 s{sA}, s{sW}, 4
            s_add_u32 s{sA}, s{sA}, {ACC0}
            v_add_u32 v5, s{sA}, v5
            v_mov_b32 v13, {PFL}""")
        s.wait(vm=ytok)
        self.flag(s, 10, 11, f"s{sG}")
        self.stamp(s, "yflag", "post")
        for k in range(16):
            s.e(f"v_mov_b32 v{YF[0] + k}, 0")
        self.poll(s, xtok, st_txt, [44, 46])
        for th in range(2):
            for k in range(4):
                s.e(f"v_lshlrev_b32 v{XU[th] + 2 * k}, 16, v{XR[th] + k}")
                s.e(f"v_and_b32 v{XU[th] + 2 * k + 1}, 0xffff0000, v{XR[th] + k}")
            s.e(f"""v_lshlrev_b32 v1, 16, v{45 + 2 * th}
                v_and_b32 v{SD[th]}, 0xffff0000, v{45 + 2 * th}
                v_and_b32 v{SD[th] + 1}, 0xffff0000, v{45 + 2 * th}
                v_mov_b32 v{NL + th}, {fhex(-LOG2E)}""")
            for k in range(8):
                s.e(f"v_sub_f32 v{XM[th] + k}, v{XU[th] + k}, v1")
        ypoll = f"buffer_load_dword v7, v8, {srd(sWS)}, 0 offen sc1"
        s.e(f"s_lshl_b32 s{sA}, s{sW}, 2\ns_add_u32 s{sA}, s{sA}, {PFL + 16}\nv_mov_b32 v14, s{sA}")
        self.lds_spin(s, 14, 56, False)
        self.stamp(s, "go", "post")
        self.poll(s, s.vmem(ypoll), [ypoll], [7])
        self.stamp(s, "yp", "|post")
        for z in range(2):
            ytok = s.vmem(f"buffer_load_dwordx4 {vr(YR + 4 * z, 4)}, v6, {srd(sWS)}, s{sYS + z} offen sc1")
        ra = [Addr(s, 3, RA[0]), Addr(s, 4, RA[0])]

        def vop(op, pk, d, *src):
            if pk:
                for k in range(0, 8, 2):
                    s.e(f"v_pk_{op}_f32 {vr(d + k, 2)}, " + ", ".join(vr(r + k * st, 2) for r, st in src))
            else:
                for k in range(8):
                    s.e(f"v_{op}_f32 v{d + k}, " + ", ".join(f"v{r + k * st}" for r, st in src))

        def preads(region):
            out = []
            for w in range(4):
                for e in range(2):
                    r, off = ra[e].off(region + 8192 * w, region)
                    t = s.ds(f"ds_read_b128 {vr(RB + 8 * w + 4 * e, 4)}, {r} offset:{off}")
                out.append(t)
            return out

        def gate(th, rd, pk):
            for w in range(1, 4):
                s.wait(lg=rd[w])
                vop("add", pk, F[th], (RB if w == 1 else F[th], 1), (RB + 8 * w, 1))
            vop("mul", pk, T, (F[th], 1), (NL, 0))
            for k in range(8):
                s.e(f"v_exp_f32 v{T + k}, v{T + k}")
            vop("mul", pk, F[th], (F[th], 1), (XM[th], 1))
            vop("fma", pk, T, (T, 1), (SD[th], 0), (SD[th], 0))
            for k in range(8):
                s.e(f"v_rcp_f32 v{T + k}, v{T + k}")

        def store(th):
            R = 48 + 4 * th
            for x in range(4):
                s.e(f"v_cvt_pk_bf16_f32 v{R + x}, v{F[th] + 2 * x}, v{F[th] + 2 * x + 1}")
            s.vmem(f"buffer_store_dwordx4 {vr(R, 4)}, v2, {srd(sOUT)}, s{sXO + th} offen")

        self.lds_spin(s, 13, 56, True)
        self.stamp(s, "Z1", "|post")
        gate(0, preads(RA[0]), False)
        vop("mul", False, F[0], (F[0], 1), (T, 1))
        for e in range(2):
            ra[e].off(RA[1], RA[1])
        s.wait(vm=ytok)
        for z in range(2):
            wtok = s.ds(f"ds_write_b128 v12, {vr(YR + 4 * z, 4)} offset:{1040 * z}")
        s.wait(lg=wtok)
        self.stamp(s, "f0", "|post")
        s.barrier("Z2")
        self.stamp(s, "Z2", "|post")
        yread = lambda th: [s.ds(f"ds_read_u16_d16_hi v{YF[th] + k}, v5 offset:{128 * k + 64 * th}")
                            for k in range(8)][-1]
        y0 = yread(0)
        rd = preads(RA[1])
        s.wait(lg=y0)
        vop("fma", True, F[0], (F[0], 1), (YF[0], 1), (XU[0], 1))
        y1 = yread(1)
        store(0)
        gate(1, rd, True)
        s.wait(lg=y1)
        vop("mul", True, F[1], (F[1], 1), (YF[1], 1))
        vop("fma", True, F[1], (F[1], 1), (T, 1), (XU[1], 1))
        store(1)
        self.epoch(s)
        self.finish(s)

    def epoch(self, s):
        if s.name != "PA":
            return
        skip = s.label("noepoch")
        s.e(f"""s_cmp_lg_u32 s2, 255
            s_cbranch_scc1 {skip}
            s_cmp_lg_u32 s{sW8}, 0
            s_cbranch_scc1 {skip}
            v_lshlrev_b32 v20, 7, v0""")
        txt = []
        for z in range(4):
            s.e(f"s_mov_b32 s{sBLK + z}, {FY + 8192 * z}")
            txt.append(f"buffer_load_dword v{16 + z}, v20, {srd(sWS)}, s{sBLK + z} offen sc1")
        for t in txt:
            tok = s.vmem(t)
        self.poll(s, tok, txt, list(range(16, 20)))
        self.flag(s, 10, 11, "0")
        s.e(f"{skip}:")

    def conv(self, s, st, tiles, side, epi7, late_flag):
        o = self.o
        CACC, DF = 48, self.SIDE
        acc = {n: CACC + 4 * i for i, n in enumerate(tiles)}
        pool = deque(128 + 4 * i for i in range(28))
        ops = []
        for r in (1, 2, 3, 4, 5, 6, 7, 0):
            for i in range(8):
                ops += [(n, ("A", r + 8 * i), ("G", r, n - i)) for n in tiles if n >= i]
                if r == 0 and i == 0:
                    ops += [(n, ("D",), ("G", 0, n)) for n in tiles]
        first, last = {}, {}
        for idx, (n, a, g) in enumerate(ops):
            for key in (a, g):
                first.setdefault(key, idx)
                last[key] = idx
        loads = deque(sorted((k for k in first if k[0] != "D"), key=lambda k: first[k]))
        total = sum(2 if k[0] == "A" else 1 for k in loads)
        reg, tok = {("D",): DF}, {("D",): 0}
        issued = 0

        def load(key):
            nonlocal issued
            r = reg[key] = pool.popleft()
            if key[0] == "A":
                s.ds(f"ds_read_b64 {vr(r, 2)}, v8 offset:{64 * key[1]}")
                tok[key] = s.ds(f"ds_read_b64 {vr(r + 2, 2)}, v8 offset:{64 * key[1] + 8}")
                issued += 2
            else:
                tok[key] = s.ds(f"ds_read_b128 {vr(r, 4)}, v9 offset:{512 * (7 - key[2]) + 64 * key[1]}")
                issued += 1

        lead, grp = o["conv_lead"], o["conv_grp"]
        while loads and first[loads[0]] < 7:
            load(loads.popleft())
        epi = deque(epi7())
        side = deque(side)
        started = set()
        f7 = None
        for idx, (n, a, g) in enumerate(ops):
            while loads and pool and s.lg - s.lg_done <= 13 and (
                    first[loads[0]] <= idx + lead or issued < total * (idx + lead) / len(ops)):
                load(loads.popleft())
            if idx in (0, 50, 110):
                self.stamp(s, f"c{idx}", "post")
            if epi:
                self.fill(s, epi, o["conv_valu"])
                f7 = idx + 45
            else:
                self.fill(s, side, 1 if len(side) < 124 - idx else 2)
            if late_flag and idx == 35:
                late_flag(6)
            if late_flag and idx == f7:
                late_flag(7)
            if o["hold"] and idx == o["hold"]:
                s.barrier("hold")
            assert a in tok and g in tok, "fragment pool exhausted"
            if max(tok[a], tok[g]) > s.lg_done:
                ahead = [tok[k] for op in ops[idx:idx + grp] for k in op[1:] if k in tok]
                s.wait(lg=max(ahead))
            if a == ("A", 0) and first[a] == idx:
                assert not side and not epi
                for x in range(4):
                    s.e(f"v_and_b32 v{reg[a] + x}, v{reg[a] + x}, v{DF + 4 + x}")
            c = vr(acc[n], 4) if n in started else 0
            started.add(n)
            s.e(f"{MFMA16} {vr(acc[n], 4)}, {vr(reg[a], 4)}, {vr(reg[g], 4)}, {c}")
            for key in (a, g):
                if last[key] == idx and key[0] != "D":
                    pool.append(reg[key])
        assert not loads
        pairs = ((tiles[3], tiles[2]), (tiles[1], tiles[0]))
        toks = []
        for z, (n1, n2) in enumerate(pairs):
            R = 80 + 8 * z
            for q, n in enumerate((n1, n2)):
                s.e(f"v_cvt_pk_bf16_f32 v{R + 2 * q}, v{acc[n]}, v{acc[n] + 1}")
                s.e(f"v_cvt_pk_bf16_f32 v{R + 2 * q + 1}, v{acc[n] + 2}, v{acc[n] + 3}")
            s.e(f"v_permlane16_swap_b32 v{R}, v{R + 2}\nv_permlane16_swap_b32 v{R + 1}, v{R + 3}")
            for x in range(4):
                t = s.ds(f"ds_bpermute_b32 v{R + 4 + x}, v{DF + 9}, v{R + x}")
            toks.append(t)
        for z, (n1, n2) in enumerate(pairs):
            s.wait(lg=toks[z])
            ytok = s.vmem(f"buffer_store_dwordx4 {vr(84 + 8 * z, 4)}, v{DF + 10}, {srd(sWS)}, s{self.sYO} offen "
                          f"offset:{512 * n1} sc1")
        return ytok

    B_CS, B_WD = 64, 128

    def b_late_setup(self, s):
        self.srd_consts(s, (sWD, sSK))
        s.e(f"s_add_u32 s{sCH}, s2, 32\ns_and_b32 s{sCH}, s{sCH}, 255")
        self.pair_index(s)
        self.lane0_offset(s, 12)
        self.block_ids(s)
        s.e(f"s_lshl_b32 s{sA}, s{sDB}, 7\ns_sub_u32 s{sA}, s{sA}, 8192")
        for b in range(7):
            s.e(f"s_lshl_b32 s{sBLA + b}, s{BLK[b]}, 16\ns_add_u32 s{sBLA + b}, s{sBLA + b}, s{sA}")
        self.wd_src_addr(s, 8, 13)
        self.wd_read_addrs(s, 9, 10, 13, ST1)
        s.e(f"""s_add_u32 s{sA}, s{sW4K}, {ST1 - ACC0}
            v_subrev_u32 v17, s{sA}, v9
            v_subrev_u32 v18, s{sA}, v10""")
        self.hflag_addr(s, 20, 13, BLK[:4])
        self.hflag_addr(s, 19, 13, BLK[4:])

    HB_BUF = staticmethod(lambda hb: (2 - hb) % 3)

    def b_hb_jobs(self, s, hb, toks):
        buf = self.HB_BUF(hb)

        def job(e):
            wpart, lds = (sW4K, ACC0) if buf == 2 else (sW8K, ST1 + 4096 * buf)
            toks[hb] = self.wd_dma(s, hb >> 1, wpart, lds + 1024 * e)

        return [lambda e=e: job(e) for e in range(4)]

    def b_hb_consume(self, s, hb, toks):
        buf = self.HB_BUF(hb)
        s.wait(vm=toks[hb])
        for k2 in range(2):
            n = 2 * hb + k2
            for dt in range(2):
                for x in range(2):
                    a, off = (17 + dt, 0) if buf == 2 else (9 + dt, 4096 * buf)
                    t = s.ds(f"ds_read_b64_tr_b16 {vr(self.B_WD + 8 * n + 4 * dt + 2 * x, 2)}, v{a} "
                             f"offset:{off + 2048 * k2 + 512 * x}")
        return t

    def b_ra_jobs(self, s, b, toks):
        def job(e):
            toks["ra"] = self.wd_dma(s, 4 + b, sW8K, RA[b] + 1024 * e)

        return [lambda e=e: job(e) for e in range(8)]

    def b_ssm_load(self, s):
        s.e(f"""s_and_b32 s{sA}, s{sW}, 1
            s_lshl_b32 s{sA}, s{sA}, 11
            v_add_u32 v13, s{sA}, v5
            v_subrev_u32 v14, 8, v13
            v_add_u32 v15, 1016, v13
            s_lshr_b32 s{sA}, s{sW}, 1
            s_lshl_b32 s{sB_}, s{sCH}, 1
            s_add_u32 s{sA}, s{sA}, s{sB_}
            s_lshl_b32 s{sA}, s{sA}, 12""")
        s.vmem(f"buffer_load_dwordx4 v[106:109], v13, {srd(sSK)}, s{sA} offen")
        s.vmem(f"buffer_load_dwordx2 v[104:105], v14, {srd(sSK)}, s{sA} offen")
        s.vmem(f"buffer_load_dwordx4 v[112:115], v13, {srd(sSK)}, s{sA} offen offset:1024")
        return s.vmem(f"buffer_load_dwordx2 v[110:111], v15, {srd(sSK)}, s{sA} offen")

    def b_copy_items(self, s, tok, state):
        items = []

        def base():
            s.e(f"""s_lshr_b32 s{sA}, s{sW}, 1
                s_mul_i32 s{sA}, s{sA}, 16640
                s_add_u32 s{sA}, s{sA}, {X1 + 32}
                v_add_u32 v13, s{sA}, v13""")
            state["cp"] = None

        items.append(base)
        for z in range(2):
            d = 106 + 6 * z

            def even(z=z, d=d):
                s.wait(vm=tok, lg=state["cp"])
                s.ds(f"ds_write_b128 v13, {vr(d, 4)} offset:{1024 * z}")
                for x in range(4):
                    s.e(f"v_mov_b32 v{116 + x}, v{d - 1 + x}")
                s.ds(f"ds_write_b128 v13, v[116:119] offset:{2 * 4160 + 1024 * z}")

            def odd(z=z, d=d):
                for x in range(4):
                    s.e(f"v_alignbyte_b32 v{120 + x}, v{d + x}, v{d + x - 1}, 2")
                s.ds(f"ds_write_b128 v13, v[120:123] offset:{4160 + 1024 * z}")
                for x in range(4):
                    s.e(f"v_alignbyte_b32 v{124 + x}, v{d + x - 1}, v{d + x - 2}, 2")
                state["cp"] = s.ds(f"ds_write_b128 v13, v[124:127] offset:{3 * 4160 + 1024 * z}")

            items += [even, odd]
        return items

    def b_kvpoll_txt(self):
        return f"buffer_load_dword v22, v21, {srd(sWS)}, 0 offen sc1"

    def b_kvpoll_issue(self, s):
        s.e(f"""s_lshr_b32 s{sA}, s{sCH}, 5
            s_lshl_b32 s{sA}, s{sA}, 12
            s_andn2_b32 s{sB_}, 1, s{sW}
            s_lshl_b32 s{sB_}, s{sB_}, 11
            s_add_u32 s{sA}, s{sA}, s{sB_}
            s_add_u32 s{sA}, s{sA}, {FKV}
            v_and_b32 v21, 15, v0
            v_lshlrev_b32 v21, 7, v21
            v_add_u32 v21, s{sA}, v21""")
        return s.vmem(self.b_kvpoll_txt())

    def b_kvt_dma(self, s, ptok):
        self.poll(s, ptok, [self.b_kvpoll_txt()], [22])
        s.e(f"""s_lshl_b32 s{sA}, s{sCH}, 13
            s_lshl_b32 s{sB_}, s{sW}, 11
            s_add_u32 s{sA}, s{sA}, s{sB_}
            s_add_u32 s{sA}, s{sA}, {KVT}
            s_lshr_b32 s{sC}, s{sW}, 1
            s_lshl_b32 s{sC}, s{sC}, 10
            s_add_u32 s{sB_}, s{sB_}, s{sC}
            s_add_u32 m0, s{sB_}, {KVB}""")
        for z in range(2):
            t = s.vmem(f"buffer_load_dwordx4 v5, {srd(sWS)}, s{sA} offen offset:{1024 * z} sc1 lds")
        return t

    def b_pad_dma(self, s):
        s.e(f"""s_lshr_b32 s{sA}, s{sW}, 1
            s_mul_i32 s{sA}, s{sA}, {KVS}
            s_add_u32 m0, s{sA}, {KVB + 4096}
            v_mov_b32 v16, 0x40000000""")
        return s.vmem(f"buffer_load_dwordx4 v16, {srd(sSK)}, 0 offen lds")

    def b_copy_jobs(self, s, toks):
        sS, sL = 35, 36

        def job(p, z):
            if (p, z) == (0, 0):
                s.e(f"""s_lshl_b32 s{sS}, s{sCH}, 13
                    s_lshl_b32 s{sL}, s{sW}, 11
                    s_add_u32 s{sS}, s{sS}, s{sL}
                    s_lshr_b32 s{sA}, s{sW}, 1
                    s_mul_i32 s{sA}, s{sA}, {16640 - 4096}
                    s_add_u32 s{sL}, s{sL}, s{sA}""")
            s.e(f"s_add_u32 m0, s{sL}, {X1 + 32 + 4160 * p}\ns_sub_u32 s{sA}, s{sS}, {2 * p}")
            toks["cp"] = s.vmem(f"buffer_load_dwordx4 v5, {srd(sSK)}, s{sA} offen offset:{1024 * z} lds")

        return [lambda p=p, z=z: job(p, z) for z in range(2) for p in range(4)]

    def b_publish(self, s, groups):
        if not groups:
            return
        skip = s.label("nopub")
        s.e(f"s_cmp_lg_u32 s{sW}, 0\ns_cbranch_scc1 {skip}")
        for g in groups:
            self.row_of_group(s, sA, g)
            s.e(f"""s_mul_i32 s{sA}, s{sA}, 112
                s_add_u32 s{sA}, s{sA}, s44
                buffer_store_dword v11, v7, {srd(sWS)}, s{sA} offen sc1""")
        s.e(f"{skip}:")

    B_NS = 10
    G2 = ([(0, b, k) for b in range(4) for k in range(4)] + [(1, b, k) for b in range(3) for k in range(4)]
          + [(0, b, k) for b in range(4, 7) for k in range(4)] + [(1, b, k) for b in range(3, 7) for k in range(4)])

    def b_hload(self, s, ht, n):
        th, b, ks = self.G2[n]
        if ks == 0:
            self.h_soff(s, b, th)
        ht[n] = s.vmem(f"buffer_load_dwordx4 {vr(24 + 4 * (n % self.B_NS), 4)}, v5, {srd(sWS)}, s{sC} offen "
                       f"offset:{1024 * ks} sc1")

    def b_hpoll_txt(self, th, dst=22, src=20):
        return f"buffer_load_dword v{dst}, v{src}, {srd(sWS)}, 0 offen offset:{3584 * th} sc1"

    def b_hstart(self, s, hp0, ht):
        s.e(f"s_mul_i32 s{sF}, s{sP2}, {2 * 114688}\ns_add_u32 s{sF}, s{sF}, {HB}")
        self.poll(s, hp0, [self.b_hpoll_txt(0)], [22], mask=0xfff)
        self.stamp(s, "hp0", "|post")
        return [lambda n=n: self.b_hload(s, ht, n) for n in range(self.B_NS)]

    def stream_GB(self):
        s = Stream("GB")
        o = self.o
        s.e(f"""L_GB:
            v_lshrrev_b32 v13, 3, v0
            v_and_b32 v14, 7, v0
            v_bfe_u32 v15, v0, 4, 1
            v_lshlrev_b32 v15, 1, v15
            v_xor_b32 v15, v15, v14
            v_mul_u32_u24 v1, 3584, v13
            v_lshl_add_u32 v1, v15, 4, v1
            v_xor_b32 v2, 64, v1
            s_lshl_b32 s{sA}, s{sW}, 2
            v_lshrrev_b32 v15, 1, v13
            v_add_u32 v15, s{sA}, v15
            v_and_b32 v15, 7, v15
            v_xor_b32 v15, v15, v14
            v_lshlrev_b32 v3, 10, v13
            v_lshl_add_u32 v3, v15, 4, v3
            s_mul_i32 s{sG}, s{sW}, 57344
            s_lshl_b32 s{sA}, s{sJ}, 7
            s_add_u32 s{sG}, s{sG}, s{sA}""")
        sXB, sU, sV_ = sE + 1, sCNT, sD
        self.row_of_group(s, sXB, 0)
        s.e(f"""s_lshl_b32 s{sXB}, s{sXB}, 10
            s_add_u32 s{sXB}, s{sXB}, s{sW8K}
            s_setprio {o['prio_b']}
            s_waitcnt lgkmcnt(0)
            s_mov_b32 s{sF}, s{sXB}""")
        cs = lambda c: X0 + (c % 3) * CH
        ct = {}

        def chunk(c):
            steps = [
                (f"""s_add_u32 s{sU}, s{sROT}, {c}
                    s_and_b32 s{sU}, s{sU}, 7
                    s_mul_i32 s{sV_}, s{sU}, 229376
                    s_add_u32 m0, s{sW4K}, {cs(c)}
                    s_add_u32 s{sV_}, s{sV_}, s{sG}""", 1, sWG, sV_),
                (f"s_add_u32 m0, s{sW4K}, {cs(c) + 2048}\ns_lshl_b32 s{sU}, s{sU}, 7", 2, sWU, sV_),
                (f"s_add_u32 m0, s{sW4K}, {cs(c) + 1024}\ns_add_u32 s{sV_}, s{sV_}, 28672", 1, sWG, sV_),
                (f"s_add_u32 m0, s{sW4K}, {cs(c) + 3072}\ns_add_u32 s{sU}, s{sU}, s{sF}", 2, sWU, sV_),
                (f"s_add_u32 m0, s{sW1K}, {cs(c) + 16384}\ns_add_u32 s{sV_}, s{sU}, 32768", 3, sX, sU),
                (f"s_add_u32 m0, s{sW1K}, {cs(c) + 20480}", 3, sX, sV_),
            ]

            def job(pre, v, buf, so):
                s.e(pre)
                ct[c] = s.vmem(f"buffer_load_dwordx4 v{v}, {srd(buf)}, s{so} offen lds")

            return [lambda a=a: job(*a) for a in steps]

        xt = {}
        sXR = 45

        def xjobs(g):
            def job(r):
                if r == 0:
                    self.row_of_group(s, sXR, g)
                    s.e(f"s_lshl_b32 s{sXR}, s{sXR}, 10")
                s.e(f"s_add_u32 m0, s{sW8320}, {XSLOT[g] + r * 1040}")
                s.e(f"s_add_u32 s{sXR}, s{sXR}, {'s%d' % sW8K if r == 0 else 1024}")
                xt[g] = s.vmem(f"buffer_load_dwordx4 v4, {srd(sX)}, s{sXR} offen lds")

            return [lambda r=r: job(r) for r in range(8)]

        def accr(areg, dst, off):
            for i in range(4):
                t = s.ds(f"ds_read_b128 {vr(dst + 4 * i, 4)}, v{areg} offset:{off + 1024 * i}")
            return t

        state, toks, ht = {}, {}, {}
        Q = deque()

        def run(budget):
            c0 = s.cost
            while Q and s.cost - c0 < budget:
                Q.popleft()()

        def mem(jobs, gap=o["qgap"]):
            for job in jobs:
                job()
                run(gap)

        def restage(done, cover, nxt):
            rd = self.b_hb_consume(s, done, toks)
            mem(cover)
            s.wait(lg=rd)
            mem(nxt)

        hb = lambda n: self.b_hb_jobs(s, n, toks)
        mem(chunk(0))
        self.stamp(s, "iss0", "p1")
        s.e(f"s_load_dword s{sT}, s[{sWS}:{sWS + 1}], {EPOCH}")

        def deferred(q):
            q.e(f"""v_lshlrev_b32 v5, 4, v0
                s_lshl_b32 s{sA}, s{sROT}, 3
                v_add_u32 v4, s{sA}, v0
                v_and_b32 v4, 63, v4
                v_lshlrev_b32 v4, 4, v4
                s_mul_i32 s{sW8320}, s{sW}, 8320
                v_lshrrev_b32 v7, 2, v0
                v_min_u32 v7, 1, v7
                v_lshlrev_b32 v7, 28, v7
                v_add_lshl_u32 v7, v7, v0, 2
                s_lshl_b32 s44, s{sJ}, 7
                s_add_u32 s44, s44, {FH}""")
            self.srd_consts(q, (sWS,))
            self.b_late_setup(q)
            q.e(f"""v_and_b32 v13, 15, v0
                v_lshlrev_b32 v13, 7, v13
                s_lshl_b32 s35, s{sCH}, 13
                s_lshl_b32 s{sA}, s{sW}, 11
                s_add_u32 s35, s35, s{sA}""")

        Q.extend(lambda i=i: s.e(i) for i in self.capture(deferred))
        mem(chunk(1), 50)
        self.stamp(s, "iss1", "p1")
        run(300)
        fill = deque(xjobs(2) + xjobs(3))
        for c in range(8):
            s.wait(vm=ct[c])
            s.barrier(f"b{c}")
            self.stamp(s, f"b{c}", "|p1" if c == 0 else "p1")
            if c + 2 < 8:
                mem(chunk(c + 2), 40)
            if c >= o["fill_from"]:
                mem([fill.popleft() for z in range(min(len(fill), o["fill_n"] if c < 6 else 4))], 40)
            if c == 5:
                assert not Q
                self.tag_ready(s)
                s.e(f"v_mov_b32 v11, s{sT}")
        while len(fill) > 8:
            fill.popleft()()
        s.vmem(f"buffer_load_dword v14, v13, {srd(sSK)}, s35 offen")
        self.b_pad_dma(s)
        s.wait(vm=xt[2])
        s.barrier("b8")
        self.stamp(s, "b8", "|p1|p2")

        def beta(g):
            s.wait(vm=xt.get(g), lg=s.lg)
            self.stamp(s, f"ar{g}", "arr")
            s.barrier(f"beta{g}")
            self.stamp(s, f"be{g}", "p2|arr")
            self.b_publish(s, self.published[g])

        def mix(a, b):
            out = []
            for z in range(max(len(a), len(b))):
                out += a[z:z + 1] + b[z:z + 1]
            return out

        mem(fill)
        mem(mix(hb(0) + hb(1), xjobs(4)))
        beta(3)
        x = xjobs(5)
        restage(0, mix(hb(2), x[:4]), mix(hb(3), x[4:]))
        for g in (4, 5):
            beta(g)
            x = xjobs(g + 2)
            restage(2 * g - 7, x[:2], mix(hb(2 * g - 4), x[2:4]))
            restage(2 * g - 6, x[4:6], mix(hb(2 * g - 3), x[6:]))
        beta(6)
        cp = self.b_copy_jobs(s, toks)
        ra1 = self.b_ra_jobs(s, 1, toks)
        kvp = self.b_kvpoll_issue(s)
        restage(5, cp[:3], [])
        restage(6, cp[3:6], [])
        restage(7, cp[6:], [])
        kvt = self.b_kvt_dma(s, kvp)
        beta(7)
        hp0 = s.vmem(self.b_hpoll_txt(0))
        ra = ra1 + self.b_ra_jobs(s, 0, toks)
        mem(ra[:6])
        hj = self.b_hstart(s, hp0, ht)
        mem(mix(hj[:4], ra[6:10]))
        s.wait(vm=kvt)
        beta(8)
        mem(mix(ra[10:] + self.b_ra_jobs(s, 2, toks), hj[4:]))
        self.b_post(s, toks, ht)
        return s

    def stream_PB(self):
        s = Stream("PB")
        s.e(f"""L_role_p:
            s_cmp_lt_u32 s{sW8}, 4
            s_cbranch_scc1 L_PA
            v_lshlrev_b32 v5, 4, v0""")
        self.srd_consts(s, (sK, sV, sSH, sWS))
        s.e(f"s_waitcnt lgkmcnt(0)\ns_load_dword s{sT}, s[{sWS}:{sWS + 1}], {EPOCH}")
        state, toks = {}, {}
        kt, vt = self.kv_load(s)
        self.tag_ready(s)
        s.e(f"v_mov_b32 v11, s{sT}")
        tok = self.kv_compute(s, kt, vt)
        self.stamp(s, "kv")
        self.b_late_setup(s)
        ssm_tok = self.b_ssm_load(s)
        self.kv_flag(s, tok, 11, 12)
        self.stamp(s, "kvflag")
        do = lambda jobs: [f() for f in jobs]
        do(self.b_copy_items(s, ssm_tok, state))
        self.b_pad_dma(s)
        for hb in range(3):
            do(self.b_hb_jobs(s, hb, toks))
        extra = deque(self.b_ra_jobs(s, 0, toks) + self.b_ra_jobs(s, 2, toks))
        for hb in range(8):
            rd = self.b_hb_consume(s, hb, toks)
            do([extra.popleft(), extra.popleft()])
            s.wait(lg=rd)
            if hb + 3 < 8:
                do(self.b_hb_jobs(s, hb + 3, toks))
            if hb == 2:
                kvp = self.b_kvpoll_issue(s)
            if hb == 4:
                kvt_tok = self.b_kvt_dma(s, kvp)
        s.wait(vm=kvt_tok, lg=s.lg)
        s.barrier("beta8")
        self.stamp(s, "beta8")
        hp0 = s.vmem(self.b_hpoll_txt(0))
        do(self.b_ra_jobs(s, 1, toks))
        ht = {}
        do(self.b_hstart(s, hp0, ht))
        self.b_post(s, toks, ht)
        s.e("L_exit:\ns_endpgm")
        return s

    def b_post(self, s, toks, ht):
        WD, ACC, NS = self.B_WD, (64, 96), self.B_NS
        slot = lambda n: 24 + 4 * (n % NS)
        polls = {12: [self.b_hpoll_txt(0), self.b_hpoll_txt(1, 23)], 28: [self.b_hpoll_txt(0, 22, 19)],
                 44: [self.b_hpoll_txt(1, 22, 19)]}
        ptok = {12: [s.vmem(t) for t in polls[12]][-1]}
        pa = self.partial_addrs(s, 1, 13)
        s.e(f"""s_lshl_b32 s{sA}, s{sW}, 2
            s_add_u32 s{sA}, s{sA}, {PFL}
            v_mov_b32 v13, s{sA}
            v_mov_b32 v14, 1""")
        aR = [Addr(s, 9, ST1), Addr(s, 10, ST1)]
        wr = {}

        def wdread(m):
            b, ks = divmod(m, 4)
            s.wait(vm=toks["ra"])
            for dt in range(2):
                for x in range(2):
                    r, off = aR[dt].off(RA[b] + 2048 * ks + 512 * x, RA[b])
                    wr[m] = s.ds(f"ds_read_b64_tr_b16 {vr(WD + 8 * m + 4 * dt + 2 * x, 2)}, {r} offset:{off}")

        def mm(n, dt):
            th, b, ks = self.G2[n]
            a, w = ACC[th] + 16 * dt, WD + 8 * (4 * (b & 3) + ks) + 4 * dt
            s.e(f"{MFMA32} {vr(a, 16)}, {vr(w, 4)}, {vr(slot(n), 4)}, {vr(a, 16) if (b, ks) != (0, 0) else 0}")

        if self.o["hold"]:
            s.barrier("hold")
        s.e("s_setprio 1")
        self.stamp(s, "g2s", "|post")
        for n in range(48):
            s.wait(vm=ht[n], lg=wr.get(n - 28))
            if n in (5, 16, 28, 40):
                self.stamp(s, f"n{n}", "post")
            mm(n, 0)
            if 41 <= n < 45:
                self.partial_write(s, pa, ACC[0], RA[0], 0, n - 41)
            mm(n, 1)
            if 41 <= n < 45:
                self.partial_write(s, pa, ACC[0], RA[0], 1, n - 41)
            if n == self.o["ygo"]:
                s.ds("ds_write_b32 v13, v14 offset:16")
            if n == 44:
                s.ds("ds_write_b32 v13, v14")
                self.stamp(s, "p0", "|post")
            if 17 <= n < 29:
                wdread(n - 17)
            if n + NS in polls:
                self.poll(s, ptok[n + NS], polls[n + NS], [22, 23][:len(polls[n + NS])])
            if n + NS < 56:
                self.b_hload(s, ht, n + NS)
            if n + 2 * NS - 2 in polls:
                ptok[n + 2 * NS - 2] = s.vmem(polls[n + 2 * NS - 2][0])
        for n in range(48, 56):
            s.wait(vm=ht[n])
            mm(n, 0)
        for n in range(48, 56):
            mm(n, 1)
            if n >= 52:
                s.e("s_nop 1")
                self.partial_write(s, pa, ACC[1], RA[1], 0, n - 52)
        self.stamp(s, "g2b", "|post")
        for q in range(4):
            wtok = self.partial_write(s, pa, ACC[1], RA[1], 1, q)
        s.wait(lg=wtok)
        s.barrier("Z2")
        self.finish(s)

    def policy(self, line):
        abl = self.o["abl"]
        ws = srd(sWS) in line and " sc1" in line
        if "h" in abl and line.startswith("buffer_load_dwordx4") and ws and f"s{sC} offen" in line:
            return line.replace(f"s{sC} offen", f"s{sW8K} offen").replace(srd(sWS), srd(sX))
        if "p" in abl and line.startswith("buffer_load_dword ") and ws and ", 0 offen" in line:
            d = line.split()[1].rstrip(",")
            return f"v_mov_b32 {d}, s{sT}\n    buffer_load_dword v255, v0, {srd(sX)}, 0 offen"
        if "s" in abl and line.startswith("buffer_store_dwordx4") and ws:
            return line.replace(" sc1", "")
        if "d" in abl and line.startswith("buffer_load_dwordx4 v8,"):
            return re.sub(r"s\d+ offen", f"s{sW8K} offen", line)
        if "x" in abl and line.startswith("buffer_load_dwordx4 v4,"):
            return re.sub(r"s\d+ offen", f"s{sW8K} offen", line)
        if "f" in abl and line.startswith("buffer_store") and ws:
            return line.replace(" sc1", "")
        if "l" in abl and line.startswith("buffer_load_dwordx4") and ws:
            return line.replace(" sc1", "")
        if not line.startswith("buffer_load"):
            return line
        for key, regs in (("x", (sX,)), ("w", (sWG, sWU)), ("d", (sWD,)), ("k", (sK, sV, sSH, sSK))):
            if key in self.o["nt"] and any(srd(r) in line for r in regs):
                return line[:-4] + " nt lds" if line.endswith(" lds") else line + " nt"
        return line

    def build(self):
        ga = self.stream_GA()
        streams = [self.entry(), self.stream_GB(), ga, self.stream_PB(), self.stream_PA()]
        by = {s.name: s for s in streams}
        assert by["GA"].nbar == by["GB"].nbar, (by["GA"].nbar, by["GB"].nbar)
        assert by["PA"].nbar == by["PB"].nbar, (by["PA"].nbar, by["PB"].nbar)
        body = []
        self.info = {}
        for s in streams:
            lines, added = fix_hazards([self.policy(l) for l in s.L])
            self.info[s.name] = (len(lines), added, s.nbar)
            body += lines
        ref = open(f"cdna_kernels/{NAME}.s.ref").read().split("\n")
        head = [l for l in ref if l.startswith(";") and "@launch" not in l]
        out = head + [f"; @launch grid=(256,1,1) block=(512,1,1) lds={LDS_BYTES}",
                      '.amdgcn_target "amdgcn-amd-amdhsa--gfx950"', ".text", f".globl {NAME}_kernel", ".p2align 8",
                      f".type {NAME}_kernel,@function", f"{NAME}_kernel:"]
        out += [l if l.endswith(":") else "    " + l for l in body]
        out += ["L_code_end:", '.section .rodata,"a"', ".p2align 6", f".amdhsa_kernel {NAME}_kernel",
                "  .amdhsa_next_free_vgpr 256", "  .amdhsa_next_free_sgpr 102", "  .amdhsa_accum_offset 256",
                "  .amdhsa_group_segment_fixed_size 0", "  .amdhsa_kernarg_size 104", "  .amdhsa_user_sgpr_count 2",
                "  .amdhsa_user_sgpr_kernarg_segment_ptr 1", "  .amdhsa_system_sgpr_workgroup_id_x 1",
                "  .amdhsa_float_denorm_mode_32 3", ".end_amdhsa_kernel", ""]
        return "\n".join(out)


def parse_opts(args):
    kw = {}
    for a in args:
        k, v = a.split("=")
        kw[k] = int(v) if v.lstrip("-").isdigit() else v
    return kw


if __name__ == "__main__":
    path = sys.argv[1]
    g = Gen(**parse_opts(sys.argv[2:]))
    open(path, "w").write(g.build())
    print(g.info, g.published)
```

```python
import re
import struct
import sys
from collections import deque

from asmlib import Addr, Stream, fix_hazards, vr

NAME = "recurrent_scan__ssm_conv_h3__glu_gated_geglu__prompt"

DEFAULTS = dict(stamp=0, st="", pf=6, upto="all", conv_lead=10, conv_grp=3, poll_limit=40000, nt="", diag="",
                fill_from=2, fill_n=3, gap=5, kflip=1, abl="", prio_b=0, qgap=30, p0_at=16, drain=22,
                b0_at=72, conv_valu=2, remap=0, skew=0, dboff=4, fill_max=16, hold=0, ygo=34, plan="111101", ra7=4, late_ra=8, gr_at=23, cp6=5, spf=0, spf_from=1, pre=0)

EPOCH, STATS, FKV, FY, FH, STAMPS = 0x0, 0x8000, 0x10000, 0x20000, 0x40000, 0xA0000
KVT, YB, HB, WS_END = 0x100000, 0x300000, 0x500000, 0xC00000
TAG_STEP = 0x9E3779B1

X1, X2, X0 = 0, 33280, 66560
ACC0, ST1, ST2, SPARE = 99840, 116224, 132608, 148992
KVB, KVS = SPARE, 5120
PFL = KVB + 4608
LDS_BYTES = 163840
G = 2
CH = 16384 + 4096 * G
XSLOT = {2: X1, 3: X2, 4: X0, 5: X1, 6: X2, 7: X0}
RA = (X2, X0, ST1)

sX, sWS, sWD, sOUT, sWG, sWU, sK, sV, sSH, sSK = 4, 8, 12, 16, 20, 24, 28, 32, 36, 40
sDP, sD, sT, sW, sW8 = 44, 46, 47, 48, 49
sXCD, sSLOT, sI, sJ, sROT, sP2, sDB, sBLK = 50, 51, 52, 53, 54, 55, 56, 57
sW1K, sW4K, sW8K, sW8320 = 61, 62, 63, 64
sA, sB_, sC, sE, sF, sCNT, sG = 65, 66, 67, 68, 1, 70, 71
sCQ, sCH = 3, 0
sBLA = 28
BLK = [sBLK, sBLK + 1, sBLK + 2, sBLK + 3, 37, 38, 39]
sSTAMP = 72
NSTAMP = 15

srd = lambda n: f"s[{n}:{n + 3}]"
fhex = lambda x: "0x%08x" % struct.unpack("<I", struct.pack("<f", x))[0]
LOG2E = 1.4426950408889634
MFMA32 = "v_mfma_f32_32x32x16_bf16"
MFMA16 = "v_mfma_f32_16x16x32_bf16"


class Gen:
    def __init__(self, **kw):
        self.o = dict(DEFAULTS, **kw)
        self.stamp_names = {}

    def stamp(self, s, name, group=""):
        if not self.o["stamp"]:
            return
        names = self.stamp_names.setdefault(s.name, [])
        if name != "end" and self.o["st"] not in group.split("|"):
            return
        if name not in names:
            assert len(names) < NSTAMP - 2, names
            names.append(name)
        r = sSTAMP + 4 + 2 * names.index(name)
        s.e(f"s_mem{'real' if self.o['stamp'] == 2 else ''}time s[{r}:{r + 1}]")

    def finish(self, s):
        if self.o["stamp"]:
            s.e("s_waitcnt vmcnt(0)")
            self.stamp(s, "end")
            s.e(f"s_memrealtime s[{sBLK + 1}:{sBLK + 2}]")
            self.diag(s)
            s.e(f"""s_waitcnt lgkmcnt(0)
                s_lshl_b32 s{sA}, s2, 9
                s_lshl_b32 s{sB_}, s{sW8}, 6
                s_add_u32 s{sA}, s{sA}, s{sB_}
                s_add_u32 s{sA}, s{sA}, {STAMPS}
                v_mov_b32 v1, 0""")
            for k in range(2 + len(self.stamp_names[s.name])):
                s.e(f"v_mov_b32 v2, s{sSTAMP + 2 * k}")
                s.e(f"buffer_store_dword v2, v1, {srd(sWS)}, s{sA} offen offset:{4 * k}")
            s.e(f"v_mov_b32 v2, s{sBLK + 1}\nbuffer_store_dword v2, v1, {srd(sWS)}, s{sA} offen offset:60")
        s.e("s_endpgm")

    def diag(self, s):
        if not self.o["diag"]:
            return
        stream, name, wg, mult = self.o["diag"].split(":")
        if stream != s.name:
            return
        loop, skip = s.label("diag"), s.label("nodiag")
        names = self.stamp_names[s.name]
        e = sSTAMP + 4 + 2 * names.index("end")
        s.e(f"s_waitcnt lgkmcnt(0)\ns_cmp_lg_u32 s2, {wg}\ns_cbranch_scc1 {skip}")
        if name.startswith("rt"):
            if name == "rtfixed":
                s.e(f"s_mov_b32 s{sA}, {mult}")
            else:
                s.e(f"s_sub_u32 s{sA}, s{sBLK + 1}, s{sSTAMP}\ns_mul_i32 s{sA}, s{sA}, {mult}")
            s.e(f"""s_min_u32 s{sA}, s{sA}, 100000
                {loop}:
                s_memrealtime s[{sE}:{sE + 1}]
                s_waitcnt lgkmcnt(0)
                s_sub_u32 s{sB_}, s{sE}, s{sBLK + 1}
                s_cmp_lt_u32 s{sB_}, s{sA}
                s_cbranch_scc1 {loop}
                {skip}:""")
            return
        if name == "fixed":
            s.e(f"s_mov_b32 s{sA}, {mult}")
        else:
            r = sSTAMP + 2 + 2 * (names.index(name) + 1)
            s.e(f"s_sub_u32 s{sA}, s{r}, s{sSTAMP + 2}\ns_mul_i32 s{sA}, s{sA}, {mult}")
        s.e(f"""s_min_u32 s{sA}, s{sA}, 2000000
            {loop}:
            s_memtime s[{sE}:{sE + 1}]
            s_waitcnt lgkmcnt(0)
            s_sub_u32 s{sB_}, s{sE}, s{e}
            s_cmp_lt_u32 s{sB_}, s{sA}
            s_cbranch_scc1 {loop}
            {skip}:""")

    @staticmethod
    def capture(fn):
        tmp = Stream("tmp")
        fn(tmp)
        assert tmp.vm == 0 and tmp.lg == 0
        out = []
        for line in tmp.L:
            if out and out[-1].split("\n")[-1].startswith("s_cmp"):
                out[-1] += "\n" + line
            else:
                out.append(line)
        return out

    def poll(self, s, tok, issue, regs, mask=None):
        def check():
            s.e(f"v_cmp_ne_u32 vcc, s{sT}, v{regs[0]}")
            for r in regs[1:]:
                s.e(f"v_cmp_ne_u32 s[{sE}:{sE + 1}], s{sT}, v{r}")
                s.e(f"s_or_b64 vcc, vcc, s[{sE}:{sE + 1}]")
            if mask:
                s.e(f"s_and_b64 vcc, vcc, {mask:#x}")
        ok, again = s.label("ok"), s.label("poll")
        s.wait(vm=tok)
        check()
        s.e(f"s_cbranch_vccz {ok}")
        s.e(f"s_mov_b32 s{sCNT}, 0")
        s.e(f"{again}:")
        for t in issue:
            s.e(t)
        s.e("s_waitcnt vmcnt(0)")
        check()
        s.e(f"""s_add_u32 s{sCNT}, s{sCNT}, 1
            s_cmp_gt_u32 s{sCNT}, {self.o['poll_limit']}
            s_cbranch_scc1 {ok}
            s_cbranch_vccnz {again}
            {ok}:""")

    def flag(self, s, vT, vZ, soff):
        return s.vmem(f"buffer_store_dword v{vT}, v{vZ}, {srd(sWS)}, {soff} offen sc1")

    def lane0_offset(self, s, v):
        s.e(f"v_min_u32 v{v}, 1, v0\nv_lshlrev_b32 v{v}, 30, v{v}")

    def tag_ready(self, s):
        s.wait_all_lg()
        s.e(f"s_add_u32 s{sT}, s{sT}, {TAG_STEP:#x}")

    def row_of_group(self, s, dst, g):
        s.e(f"""s_add_u32 s{dst}, s{sCQ}, {g >> 1}
            s_and_b32 s{dst}, s{dst}, 3
            s_lshl_b32 s{dst}, s{dst}, 6
            s_add_u32 s{dst}, s{dst}, s{sI}""")
        if g & 1:
            s.e(f"s_add_u32 s{dst}, s{dst}, 32")

    def block_ids(self, s):
        s.e(f"""s_add_u32 s{sE}, s{sDB}, s{sXCD}
            s_mul_i32 s{sA}, s{sE}, 37
            s_lshr_b32 s{sA}, s{sA}, 8
            s_mul_i32 s{sA}, s{sA}, 7
            s_sub_u32 s{sE}, s{sE}, s{sA}""")
        for b in range(7):
            s.e(f"""s_add_u32 s{sA}, s{sW}, {4 * b}
                s_mul_i32 s{sB_}, s{sA}, 37
                s_lshr_b32 s{sB_}, s{sB_}, 8
                s_mul_i32 s{sC}, s{sB_}, 7
                s_sub_u32 s{sA}, s{sA}, s{sC}
                s_add_u32 s{sA}, s{sA}, s{sE}
                s_sub_u32 s{sC}, s{sA}, 7
                s_cmp_ge_u32 s{sA}, 7
                s_cselect_b32 s{sA}, s{sC}, s{sA}
                s_sub_u32 s{sB_}, s{sP2}, s{sB_}
                s_and_b32 s{sB_}, s{sB_}, 3
                s_mul_i32 s{sB_}, s{sB_}, 7
                s_add_u32 s{BLK[b]}, s{sA}, s{sB_}""")

    def hflag_addr(self, s, v, t, blks):
        s.e(f"""v_bfe_u32 v{t}, v0, 2, 2
            v_mov_b32 v{v}, s{blks[0]}""")
        for b in range(1, len(blks)):
            s.e(f"""v_mov_b32 v{t + 1}, s{blks[b]}
                v_cmp_eq_u32 vcc, {b}, v{t}
                v_cndmask_b32 v{v}, v{v}, v{t + 1}, vcc""")
        s.e(f"""s_mul_i32 s{sA}, s{sP2}, {2 * 3584}
            s_add_u32 s{sA}, s{sA}, {FH}
            v_and_b32 v{t}, 3, v0
            v_lshlrev_b32 v{t}, 2, v{t}
            v_lshl_add_u32 v{v}, v{v}, 7, v{t}
            v_add_u32 v{v}, s{sA}, v{v}""")

    def wd_src_addr(self, s, vD, t):
        s.e(f"""v_lshrrev_b32 v{t}, 3, v0
            v_bfe_u32 v{t + 1}, v0, 4, 1
            v_lshlrev_b32 v{t + 1}, 2, v{t + 1}
            v_and_b32 v{vD}, 7, v0
            v_xor_b32 v{vD}, v{vD}, v{t + 1}
            v_lshlrev_b32 v{vD}, 4, v{vD}
            v_lshl_add_u32 v{vD}, v{t}, 10, v{vD}""")

    def wd_read_addrs(self, s, vR0, vR1, t, base):
        s.e(f"""v_lshrrev_b32 v{t}, 5, v0
            v_lshlrev_b32 v{vR0}, 10, v{t}
            v_bfe_u32 v{t}, v0, 2, 2
            v_lshl_add_u32 v{vR0}, v{t}, 7, v{vR0}
            v_bfe_u32 v{t}, v0, 3, 1
            v_lshl_add_u32 v{vR0}, v{t}, 6, v{vR0}
            v_bfe_u32 v{t}, v0, 4, 1
            v_lshl_add_u32 v{vR0}, v{t}, 5, v{vR0}
            v_and_b32 v{t}, 3, v0
            v_lshl_add_u32 v{vR0}, v{t}, 3, v{vR0}
            v_xor_b32 v{vR1}, 64, v{vR0}
            s_add_u32 s{sA}, s{sW8K}, {base}
            v_add_u32 v{vR0}, s{sA}, v{vR0}
            v_add_u32 v{vR1}, s{sA}, v{vR1}""")

    def wd_dma(self, s, b, wpart, lds):
        s.e(f"s_add_u32 m0, s{wpart}, {lds}\ns_add_u32 s{sBLA + b}, s{sBLA + b}, 8192")
        return s.vmem(f"buffer_load_dwordx4 v8, {srd(sWD)}, s{sBLA + b} offen lds")

    def lds_spin(self, s, addr_reg, dst, quad, want=1, payload=None):
        spin, free = s.label("spin"), s.label("spinok")
        s.e(f"s_mov_b32 s{sCNT}, 0\n{spin}:")
        s.e(f"ds_read_b128 {vr(dst, 4)}, v{addr_reg}" if quad else f"ds_read_b32 v{dst}, v{addr_reg}")
        if payload:
            s.e(payload)
        s.e("s_waitcnt lgkmcnt(0)")
        s.lg_done = s.lg
        if quad:
            s.e(f"""v_and_b32 v{dst}, v{dst}, v{dst + 1}
                v_and_b32 v{dst + 2}, v{dst + 2}, v{dst + 3}
                v_and_b32 v{dst}, v{dst}, v{dst + 2}""")
        s.e(f"""v_cmp_ne_u32 vcc, {want}, v{dst}
            s_cbranch_vccz {free}
            s_add_u32 s{sCNT}, s{sCNT}, 1
            s_cmp_le_u32 s{sCNT}, {64 * self.o['poll_limit']}
            s_cbranch_scc1 {spin}
            {free}:""")

    def epi_instrs(self, AG, CS, P, CON, stp):
        AU = AG + 8
        M, CA, CB, SD2 = (CON + k for k in range(4))
        c0 = -2.0 * LOG2E * 0.7978845608028654
        head = [f"v_and_b32 v{SD2}, 0xffff0000, v{stp}", f"v_rcp_f32 v{CA}, v{SD2}", f"v_lshlrev_b32 v{M}, 16, v{stp}",
                f"v_mul_f32 v{SD2}, v{SD2}, v{SD2}", f"v_mul_f32 v{CB}, v{CA}, v{CA}",
                f"v_mul_f32 v{CA}, {fhex(c0)}, v{CA}", f"v_mul_f32 v{CB}, {fhex(0.044715)}, v{CB}",
                f"v_mul_f32 v{CB}, v{CB}, v{CA}"]
        R = range(8)
        mix = lambda a, b: [x for pair in zip(a, b) for x in pair]
        body = [f"v_fma_f32 v{AG + k}, -v{M}, v{CS + k}, v{AG + k}" for k in R]
        body += [f"v_mul_f32 v{P[k]}, v{AG + k}, v{AG + k}" for k in R]
        body += [f"v_fma_f32 v{P[k]}, v{P[k]}, v{CB}, v{CA}" for k in R]
        body += [f"v_mul_f32 v{P[k]}, v{P[k]}, v{AG + k}" for k in R]
        body += mix([f"v_exp_f32 v{P[k]}, v{P[k]}" for k in R],
                    [f"v_fma_f32 v{AU + k}, -v{M}, v{CS + 8 + k}, v{AU + k}" for k in R])
        body += [f"v_fma_f32 v{P[k]}, v{P[k]}, v{SD2}, v{SD2}" for k in R]
        body += mix([f"v_rcp_f32 v{P[k]}, v{P[k]}" for k in R],
                    [f"v_mul_f32 v{AU + k}, v{AU + k}, v{AG + k}" for k in R])
        body += [f"v_mul_f32 v{AU + k}, v{AU + k}, v{P[k]}" for k in R]
        body += [f"v_cvt_pk_bf16_f32 v{AG + x}, v{AU + 2 * x}, v{AU + 2 * x + 1}" for x in range(4)]
        return head, body

    def partial_addrs(self, s, v, t):
        s.e(f"""v_and_b32 v{t}, 31, v0
            v_lshlrev_b32 v{t}, 8, v{t}
            v_add_u32 v{t}, s{sW8K}, v{t}
            v_lshrrev_b32 v{t + 1}, 5, v0
            v_and_b32 v{t + 2}, 7, v0
            v_xor_b32 v{t + 1}, v{t + 1}, v{t + 2}""")
        for i in range(4):
            s.e(f"""v_xor_b32 v{t + 2}, {2 * i}, v{t + 1}
                v_lshl_add_u32 v{v + i}, v{t + 2}, 4, v{t}""")
        return [Addr(s, v + i, 0) for i in range(4)]

    def partial_write(self, s, pa, acc, region, dt, i):
        r, o = pa[i].off(region + dt * 128, region)
        return s.ds(f"ds_write_b128 {r}, {vr(acc + 16 * dt + 4 * i, 4)} offset:{o}")

    def h_soff(self, s, b, th):
        s.e(f"""s_lshl_b32 s{sA}, s{BLK[b]}, 12
            s_add_u32 s{sC}, s{sA}, s{sF}""")
        if th:
            s.e(f"s_add_u32 s{sC}, s{sC}, 114688")

    def entry(self):
        s = Stream("entry")
        if self.o["stamp"]:
            s.e(f"s_memrealtime s[{sSTAMP}:{sSTAMP + 1}]")
            s.e(f"s_mem{'real' if self.o['stamp'] == 2 else ''}time s[{sSTAMP + 2}:{sSTAMP + 3}]")
        s.e("s_cmp_ge_u32 s2, 256\ns_cbranch_scc1 L_exit")
        if self.o["remap"] == 1:
            s.e(f"""s_lshr_b32 s{sA}, s2, 4
                s_xor_b32 s{sB_}, s2, {(14 ^ 28) << 3}
                s_cmp_eq_u32 s{sA}, 7
                s_cselect_b32 s2, s{sB_}, s2
                s_cmp_eq_u32 s{sA}, 14
                s_cselect_b32 s2, s{sB_}, s2""")
        if self.o["remap"] == 2:
            s.e(f"""s_lshr_b32 s{sA}, s2, 5
                s_xor_b32 s{sB_}, s2, {(3 ^ 5) << 5}
                s_cmp_eq_u32 s{sA}, 3
                s_cselect_b32 s2, s{sB_}, s2
                s_cmp_eq_u32 s{sA}, 5
                s_cselect_b32 s2, s{sB_}, s2""")
        for reg, slot in ((sWG, 7), (sWU, 8), (sX, 0), (sWS, 12), (sK, 1), (sV, 2), (sSH, 3), (sSK, 4), (sDP, 5),
                          (sWD, 9), (sOUT, 10)):
            s.e(f"s_load_dwordx2 s[{reg}:{reg + 1}], s[0:1], {slot * 8}")
        s.e(f"""v_lshrrev_b32 v1, 6, v0
            s_lshr_b32 s{sSLOT}, s2, 3
            v_readfirstlane_b32 s{sW8}, v1
            v_and_b32 v0, 63, v0
            s_cmp_lg_u32 s{sW8}, 0
            s_cbranch_scc1 L_nopf
            s_getpc_b64 s[{sE}:{sE + 1}]
            L_pc:
            s_sub_u32 s{sE}, s{sE}, L_pc-{NAME}_kernel
            s_subb_u32 s{sE + 1}, s{sE + 1}, 0
            v_and_b32 v1, 15, v0
            v_lshlrev_b32 v1, 5, v1
            v_add_u32 v1, s{sSLOT}, v1
            v_lshlrev_b32 v1, 7, v1
            v_min_u32 v1, L_code_end-{NAME}_kernel-4, v1
            global_load_dword v255, v1, s[{sE}:{sE + 1}]
            L_nopf:""")
        self.srd_consts(s, (sX, sWG, sWU))
        s.e(f"""s_and_b32 s{sW}, s{sW8}, 3
            s_and_b32 s{sXCD}, s2, 7
            s_and_b32 s{sB_}, s{sXCD}, 1
            s_lshl_b32 s{sA}, s{sB_}, 2
            s_lshr_b32 s{sCQ}, s{sXCD}, 1
            s_and_b32 s{sC}, s{sSLOT}, 3
            s_lshr_b32 s{sDB}, s{sSLOT}, 2
            s_add_u32 s{sI}, s{sA}, s{sC}
            s_lshl_b32 s{sI}, s{sI}, 8
            s_mul_i32 s{sJ}, s{sCQ}, 7
            s_add_u32 s{sJ}, s{sJ}, s{sDB}
            s_lshl_b32 s{sROT}, s{sC}, 1
            s_add_u32 s{sROT}, s{sROT}, s{sDB}""")
        if self.o["kflip"]:
            s.e(f"s_add_u32 s{sROT}, s{sROT}, s{sB_}")
        s.e(f"""s_lshl_b32 s{sW1K}, s{sW}, 10
            s_lshl_b32 s{sW4K}, s{sW}, 12
            s_lshl_b32 s{sW8K}, s{sW}, 13
            s_cmp_ge_u32 s{sSLOT}, 28
            s_cbranch_scc1 L_role_p
            s_cmp_lt_u32 s{sW8}, 4
            s_cbranch_scc1 L_GA""")
        return s

    SIZES = {sX: 2097152, sWS: WS_END, sWD: 1835008, sOUT: 2097152, sWG: 1835008, sWU: 1835008, sK: 2097152,
             sV: 2097152, sSH: 4096, sSK: 2097152}

    def srd_consts(self, s, regs):
        for reg in regs:
            s.e(f"s_mov_b32 s{reg + 2}, {self.SIZES[reg]}\ns_mov_b32 s{reg + 3}, 0x00020000")

    def pair_index(self, s):
        s.e(f"""s_and_b32 s{sA}, s{sXCD}, 1
            s_lshl_b32 s{sA}, s{sA}, 2
            s_add_u32 s{sP2}, s{sA}, s{sCQ}
            s_lshl_b32 s{sP2}, s{sP2}, 2
            s_and_b32 s{sA}, s{sSLOT}, 3
            s_add_u32 s{sP2}, s{sP2}, s{sA}
            s_mul_i32 s{sA}, s{sA}, {self.o['skew']}
            s_add_u32 s{sDB}, s{sDB}, s{sA}
            s_add_u32 s{sDB}, s{sDB}, {self.o['dboff']}
            s_and_b32 s{sDB}, s{sDB}, 7""")

    def late_scalars(self, s):
        s.e(f"""s_waitcnt lgkmcnt(0)
            s_add_u32 s{sCH}, s2, 32
            s_and_b32 s{sCH}, s{sCH}, 255
            s_lshl_b32 s{sA}, s{sCH}, 2
            s_load_dword s{sT}, s[{sWS}:{sWS + 1}], {EPOCH}
            s_load_dword s{sD}, s[{sDP}:{sDP + 1}], s{sA}""")

    def stats_load(self, s):
        s.e(f"""v_lshrrev_b32 v22, 5, v0
            v_and_b32 v23, 31, v0
            v_lshlrev_b32 v23, 4, v23
            v_lshl_add_u32 v23, v22, 10, v23
            s_lshl_b32 s{sA}, s{sCQ}, 3
            s_add_u32 s{sA}, s{sA}, s{sDB}
            s_lshl_b32 s{sA}, s{sA}, 2
            s_add_u32 s{sA}, s{sA}, s{sW}
            s_lshl_b32 s{sA}, s{sA}, 1
            s_add_u32 s{sA}, s{sA}, s{sI}
            s_lshl_b32 s{sB_}, s{sA}, 10
            s_lshl_b32 s{sA}, s{sA}, 4
            s_lshl_b32 s{sC}, s{sW}, 4
            s_sub_u32 s{sA}, s{sA}, s{sC}
            s_add_u32 s{sA}, s{sA}, {STATS}
            v_lshlrev_b32 v22, 3, v22
            v_add_u32 v22, s{sA}, v22""")
        self.late_scalars(s)
        s.vmem(f"buffer_load_dwordx4 v[224:227], v23, {srd(sX)}, s{sB_} offen")
        return s.vmem(f"buffer_load_dwordx4 v[228:231], v23, {srd(sX)}, s{sB_} offen offset:512")

    def stats(self, s, tok):
        R, F = 224, 232

        def reduce(r):
            for sh in (8, 4, 2, 1):
                s.e(f"v_add_f32_dpp v{r}, v{r}, v{r} row_ror:{sh} row_mask:0xf bank_mask:0xf")
            s.e(f"v_mov_b32 v{r + 1}, v{r}\nv_permlane16_swap_b32 v{r}, v{r + 1}\nv_add_f32 v{r}, v{r}, v{r + 1}")

        self.stamp(s, "spre", "p0")
        s.wait(vm=tok)
        self.stamp(s, "srow", "p0")
        for k in range(8):
            s.e(f"v_lshlrev_b32 v{F + 2 * k}, 16, v{R + k}\nv_and_b32 v{F + 2 * k + 1}, 0xffff0000, v{R + k}")
        for k in range(8):
            s.e(f"v_add_f32 v{R + k}, v{F + 2 * k}, v{F + 2 * k + 1}")
        for w in (4, 2, 1):
            for k in range(w):
                s.e(f"v_add_f32 v{R + k}, v{R + k}, v{R + k + w}")
        reduce(R)
        s.e(f"v_mul_f32 v{R}, {fhex(1 / 512)}, v{R}")
        for k in range(16):
            s.e(f"v_sub_f32 v{F + k}, v{F + k}, v{R}")
        s.e(f"v_mul_f32 v{R + 2}, v{F}, v{F}\nv_mul_f32 v{R + 3}, v{F + 1}, v{F + 1}")
        for k in range(2, 16):
            s.e(f"v_fmac_f32 v{R + 2 + (k & 1)}, v{F + k}, v{F + k}")
        V = R + 2
        s.e(f"v_add_f32 v{V}, v{V}, v{V + 1}")
        reduce(V)
        s.e(f"""v_mul_f32 v{V}, {fhex(1 / 512)}, v{V}
            v_cvt_pk_bf16_f32 v{V}, v{V}, v{V}
            v_and_b32 v{V}, 0xffff0000, v{V}
            v_add_f32 v{V}, {fhex(1e-5)}, v{V}
            v_cvt_pk_bf16_f32 v{V}, v{V}, v{V}
            v_and_b32 v{V}, 0xffff0000, v{V}
            v_sqrt_f32 v{V}, v{V}""")
        self.tag_ready(s)
        s.e(f"""v_cvt_pk_bf16_f32 v{R + 5}, v{R}, v{V}
            v_mov_b32 v{R + 4}, s{sT}
            s_mov_b32 exec_lo, 1
            s_mov_b32 exec_hi, 1""")
        s.vmem(f"buffer_store_dwordx2 {vr(R + 4, 2)}, v22, {srd(sWS)}, 0 offen sc1")
        s.e("s_mov_b64 exec, -1")

    KV_K, KV_V, KV_T = 128, 172, 204

    def kv_load(self, s, mid=None):
        K, V, T = self.KV_K, self.KV_V, self.KV_T
        s.e(f"""v_lshrrev_b32 v16, 3, v0
            v_and_b32 v17, 7, v0
            v_lshlrev_b32 v18, 4, v17
            v_lshl_add_u32 v18, v16, 13, v18
            s_sub_u32 s{sA}, s2, 224
            s_lshl_b32 s{sA}, s{sA}, 16
            s_lshl_b32 s{sB_}, s{sW8}, 7
            s_add_u32 s{sA}, s{sA}, s{sB_}
            s_add_u32 s{sB_}, s{sA}, 4096
            s_sub_u32 s{sC}, s{sA}, 3072
            v_add_u32 v19, s{sC}, v18
            v_lshlrev_b32 v20, 6, v17
            s_lshl_b32 s{sC}, s{sW8}, 9""")
        row = lambda dst, buf, i: s.vmem(f"buffer_load_dwordx4 {vr(dst, 4)}, v18, {srd(buf)}, "
                                         f"s{sB_ if i >= 4 else sA} offen offset:{(i & 3) * 1024}")
        for z in range(4):
            s.vmem(f"buffer_load_dwordx4 {vr(T + 4 * z, 4)}, v20, {srd(sSH)}, s{sC} offen offset:{16 * z}")
        for i in (5, 6, 7):
            row(K + 4 * (3 + i), sK, i)
            s.vmem(f"buffer_load_dwordx4 {vr(K + 4 * (i - 5), 4)}, v19, {srd(sK)}, 0 offen offset:{(i - 5) * 1024}")
        for i in range(5):
            kt = row(K + 4 * (3 + i), sK, i)
        if mid:
            mid()
        s.barrier("p1")
        for i in range(8):
            vt = row(V + 4 * i, sV, i)
        return kt, vt

    def kv_compute(self, s, kt, vt):
        K, V, T = self.KV_K, self.KV_V, self.KV_T
        KS, KF, TP, PK = 24, 88, 100, 104

        def unpack(dst, src, e):
            s.e(f"v_and_b32 v{dst}, 0xffff0000, v{src}" if e else f"v_lshlrev_b32 v{dst}, 16, v{src}")

        s.e(f"""v_sub_u32 v19, 7, v17
            v_lshl_add_u32 v19, v19, 3, v16
            v_lshlrev_b32 v19, 2, v19
            v_lshlrev_b32 v20, 4, v17
            v_lshl_add_u32 v20, v16, 15, v20
            s_sub_u32 s{sB_}, s2, 224
            s_lshl_b32 s{sB_}, s{sB_}, 7
            s_lshl_b32 s{sC}, s{sW8}, 18
            s_sub_u32 s{sC}, s{sC}, s{sB_}
            s_add_u32 s{sC}, s{sC}, {KVT + 3968}""")
        s.wait(vm=kt)
        for c in range(8):
            for i in range(4):
                unpack(TP + i, T + 2 * c + (i >> 1), i & 1)
            for z in range(11):
                unpack(KF + z, K + 4 * z + (c >> 1), c & 1)
            for t in range(8):
                s.e(f"v_mul_f32 v{KS + 8 * c + t}, v{KF + t}, v{TP + 3}")
            for i in (2, 1, 0):
                for t in range(8):
                    s.e(f"v_fmac_f32 v{KS + 8 * c + t}, v{KF + t + 3 - i}, v{TP + i}")
        s.wait(vm=vt)
        pend = []

        def store(c, tok):
            s.wait(lg=tok)
            t = s.vmem(f"buffer_store_dwordx4 {vr(K + 4 * c, 4)}, v20, {srd(sWS)}, s{sC} offen sc1")
            s.e(f"s_add_u32 s{sC}, s{sC}, 4096")
            return t

        for c in range(8):
            for z in range(8):
                unpack(KF + z, V + 4 * z + (c >> 1), c & 1)
            for t in range(8):
                s.e(f"v_mul_f32 v{KS + 8 * c + t}, v{KS + 8 * c + t}, v{KF + t}")
            p = PK + 4 * (c & 1)
            for x in range(4):
                s.e(f"v_cvt_pk_bf16_f32 v{p + x}, v{KS + 8 * c + 7 - 2 * x}, v{KS + 8 * c + 6 - 2 * x}")
            if pend:
                store(*pend.pop())
            for x in range(4):
                tok = s.ds(f"ds_bpermute_b32 v{K + 4 * c + x}, v19, v{p + x}")
            pend.append((c, tok))
        return store(*pend.pop())

    def kv_flag(self, s, tok, vT, vZ):
        s.e(f"""s_sub_u32 s{sA}, s2, 224
            s_lshl_b32 s{sA}, s{sA}, 7
            s_lshl_b32 s{sB_}, s{sW8}, 12
            s_add_u32 s{sA}, s{sA}, s{sB_}
            s_add_u32 s{sA}, s{sA}, {FKV}""")
        s.wait(vm=tok)
        self.flag(s, vT, vZ, f"s{sA}")

    A_XF, A_ACC, A_ONE, A_W = 16, (48, 64, 80, 96), 112, 128
    sHS, sHF, sGR, sYO = 20, 28, 30, 34
    SIDE = 96

    def a_post_setup(self, s):
        self.pair_index(s)
        s.e(f"""v_and_b32 v16, 15, v0
            v_sub_u32 v17, 15, v16
            v_and_b32 v17, 3, v17
            v_add_u32 v8, v16, v17
            v_lshlrev_b32 v8, 1, v8
            v_mul_u32_u24 v17, 4160, v17
            v_add_u32 v8, v8, v17
            v_lshrrev_b32 v17, 4, v0
            v_lshl_add_u32 v8, v17, 4, v8
            s_lshr_b32 s{sA}, s{sW}, 1
            s_mul_i32 s{sB_}, s{sA}, 16640
            s_add_u32 s{sB_}, s{sB_}, {X1 + 2}
            v_add_u32 v8, s{sB_}, v8
            v_lshlrev_b32 v9, 4, v17
            v_lshlrev_b32 v16, 5, v16
            v_sub_u32 v9, v9, v16
            s_mul_i32 s{sB_}, s{sA}, {KVS}
            s_add_u32 s{sB_}, s{sB_}, {KVB + 480}
            v_add_u32 v9, s{sB_}, v9
            v_lshlrev_b32 v15, 4, v0""")
        self.lane0_offset(s, 11)
        self.srd_consts(s, (sOUT,))
        s.e(f"""s_and_b32 s{sA}, s{sW}, 1
            s_lshl_b32 s{sA}, s{sA}, 15
            s_lshr_b32 s{sB_}, s{sW}, 1
            s_lshl_b32 s{sB_}, s{sB_}, 2
            s_add_u32 s{sA}, s{sA}, s{sB_}
            s_lshl_b32 s{sB_}, s{sCH}, 7
            s_add_u32 s{sA}, s{sA}, s{sB_}
            s_add_u32 s{sG}, s{sA}, {FY}""")

    @staticmethod
    def fill(s, q, room):
        while q:
            it = q[0]
            cost = it[0] if isinstance(it, tuple) else 2 if it.startswith(("v_exp", "v_rcp")) else 1
            if cost > max(room, 0):
                break
            q.popleft()
            it[1]() if isinstance(it, tuple) else s.e(it)
            room -= cost
        return room

    def side_work(self, q):
        v = self.SIDE
        a, b = v + 14, v + 15
        q.e(f"""s_lshr_b32 s{sB_}, s{sW}, 1
            s_lshl_b32 s{sB_}, s{sB_}, 4
            s_lshr_b32 s{sB_}, s{sD}, s{sB_}
            s_and_b32 s{sB_}, s{sB_}, 0xffff
            v_and_b32 v{a}, 15, v0
            v_lshrrev_b32 v{b}, 4, v0
            v_lshl_add_u32 v{a}, v{b}, 3, v{a}
            v_sub_u32 v{a}, 15, v{a}""")
        for x in range(4):
            m = v + 4 + x
            q.e(f"""v_subrev_u32 v{b}, {2 * x}, v{a}
                v_med3_i32 v{b}, v{b}, 0, 2
                v_lshlrev_b32 v{b}, 3, v{b}
                v_lshlrev_b32 v{m}, v{b}, -1
                v_lshlrev_b32 v{m}, v{b}, v{m}""")
        q.e(f"""v_and_b32 v{b}, 1, v{a}
            v_lshlrev_b32 v{b}, 4, v{b}
            v_lshlrev_b32 v{b}, v{b}, s{sB_}
            v_ashrrev_i32 v{a}, 1, v{a}""")
        for x in range(4):
            q.e(f"v_cmp_eq_u32 s[{sE}:{sE + 1}], {x}, v{a}\nv_cndmask_b32 v{v + x}, 0, v{b}, s[{sE}:{sE + 1}]")
        q.e(f"""v_bfe_u32 v{a}, v0, 4, 1
            s_andn2_b32 s{sB_}, 1, s{sW}
            s_lshl_b32 s{sB_}, s{sB_}, 10
            s_add_u32 s{sB_}, s{sB_}, 512
            v_mul_u32_u24 v{a}, s{sB_}, v{a}
            v_lshrrev_b32 v{b}, 5, v0
            v_lshl_add_u32 v{a}, v{b}, 4, v{a}
            v_and_b32 v{v + 10}, 15, v0
            v_lshl_add_u32 v{v + 10}, v{v + 10}, 5, v{a}
            s_lshr_b32 s{self.sYO}, s{sW}, 1
            s_lshl_b32 s{sB_}, s{sCH}, 1
            s_add_u32 s{self.sYO}, s{self.sYO}, s{sB_}
            s_lshl_b32 s{self.sYO}, s{self.sYO}, 12
            s_add_u32 s{self.sYO}, s{self.sYO}, {YB}""")

    def stream_GA(self):
        s = Stream("GA")
        o = self.o
        XF, S, ONE, W = self.A_XF, self.A_ACC, self.A_ONE, self.A_W
        s.e("L_GA:")
        stok = self.stats_load(s)
        s.e(f"""v_bfe_u32 v8, v0, 4, 1
            v_lshrrev_b32 v9, 5, v0
            v_bfe_u32 v10, v0, 2, 2
            v_lshlrev_b32 v1, 11, v8
            v_lshl_add_u32 v1, v9, 10, v1
            v_lshl_add_u32 v1, v10, 7, v1
            v_bfe_u32 v10, v0, 3, 1
            v_lshl_add_u32 v10, v8, 1, v10
            v_xor_b32 v10, s{sW}, v10
            v_lshl_add_u32 v1, v10, 5, v1
            v_and_b32 v10, 1, v0
            v_lshl_add_u32 v1, v10, 4, v1
            v_bfe_u32 v10, v0, 1, 1
            v_lshl_add_u32 v1, v10, 3, v1
            v_add_u32 v1, {X0}, v1
            v_and_b32 v8, 31, v0
            v_bfe_u32 v10, v0, 1, 3
            v_xor_b32 v10, v10, v9
            v_lshlrev_b32 v11, 7, v8
            v_add_u32 v11, {X0}, v11""")
        for k in range(4):
            s.e(f"v_xor_b32 v12, {2 * k}, v10\nv_lshl_add_u32 v{2 + k}, v12, 4, v11")
        s.e(f"""v_mul_u32_u24 v6, 1040, v8
            v_lshl_add_u32 v6, v9, 4, v6""")
        for k in range(4):
            s.e(f"v_mov_b32 v{ONE + k}, 0x3f803f80")
        self.srd_consts(s, (sWS,))
        self.stats(s, stok)
        self.stamp(s, "stats", "p1|p0")
        s.e(f"v_mov_b32 v10, s{sT}\ns_setprio 2")

        def deferred(q):
            q.e("v_lshrrev_b32 v7, 3, v0\nv_lshlrev_b32 v7, 6, v7\nv_lshl_add_u32 v7, v0, 3, v7")
            q.e(f"""s_lshl_b32 s{sB_}, s{sJ}, 12
                s_add_u32 s{sB_}, s{sB_}, s{sW1K}
                s_add_u32 s{sB_}, s{sB_}, {HB}""")
            for z in range(4):
                self.row_of_group(q, sA, 2 * z)
                hs = self.sHS + 2 * z
                q.e(f"""s_lshl_b32 s{self.sGR + z}, s{sA}, 4
                    s_add_u32 s{self.sGR + z}, s{self.sGR + z}, {STATS}
                    s_mul_i32 s{hs}, s{sA}, 3584
                    s_add_u32 s{hs}, s{hs}, s{sB_}
                    s_add_u32 s{hs + 1}, s{hs}, 114688""")
            q.e(f"""s_mul_i32 s{self.sHF}, s{sA}, 112
                s_lshl_b32 s{sB_}, s{sJ}, 7
                s_add_u32 s{self.sHF}, s{self.sHF}, s{sB_}
                s_lshl_b32 s{sB_}, s{sW}, 2
                s_add_u32 s{self.sHF}, s{self.sHF}, s{sB_}
                s_add_u32 s{self.sHF}, s{self.sHF}, {FH}
                s_add_u32 s{self.sHF + 1}, s{self.sHF}, 3584""")
            self.a_post_setup(q)

        setup = deque(l.replace("v16", "v121").replace("v17", "v122") for l in self.capture(deferred))
        gran_txt = [f"buffer_load_dwordx2 {vr(96 + 2 * q, 2)}, v7, {srd(sWS)}, s{self.sGR + q} offen sc1"
                    for q in range(4)]
        aTR = Addr(s, 1, X0)
        aXA = [Addr(s, 2 + k, X0) for k in range(4)]
        aXR = Addr(s, 6, 0)
        acc_of = {g: (S[0], S[1], S[3])[g % 3] for g in range(8)}
        cs = lambda c: X0 + (c % 3) * CH

        def rd1(n):
            c, st = divmod(n, 4)
            for x in range(2):
                r, off = aTR.off(cs(c) + st * 4096 + x * 512, cs(c))
                s.ds(f"ds_read_b64_tr_b16 {vr(W + 4 * n + 2 * x, 2)}, {r} offset:{off}")
            for g in range(G):
                r, off = aXA[st].off(cs(c) + 16384 + g * 4096, cs(c))
                t = s.ds(f"ds_read_b128 {vr(XF + 4 * ((n & 1) * G + g), 4)}, {r} offset:{off}")
            return t

        frag = lambda g, k: XF + 4 * (((g - G) * 32 + k + 4) % 8)
        xt = {}

        def rd2(g, k):
            r, off = aXR.off(XSLOT[g] + 32 * k, XSLOT[g])
            xt[g, k] = s.ds(f"ds_read_b128 {vr(frag(g, k), 4)}, {r} offset:{off}")

        PF = 6
        s.barrier("b0")
        self.stamp(s, "b0", "|p1")
        tok = rd1(0)
        for n in range(32):
            nxt = None
            if n % 4 == 3:
                s.wait(lg=tok)
                s.barrier(f"b{n // 4 + 1}")
                self.stamp(s, f"b{n // 4 + 1}", "|p1|p2" if n == 31 else "p1")
            if n == o["gr_at"]:
                gtok = [s.vmem(x) for x in gran_txt][-1]
            if n == 30:
                assert not setup
                self.poll(s, gtok, gran_txt, [96, 98, 100, 102])
                for q in range(4):
                    s.e(f"v_mov_b32 v{116 + 2 * q}, v{97 + 2 * q}\nv_mov_b32 v{117 + 2 * q}, v{97 + 2 * q}")
                for q in range(4):
                    s.e(f"v_permlane32_swap_b32 v{116 + 2 * q}, v{117 + 2 * q}")
            if n < 31:
                nxt = rd1(n + 1)
            else:
                assert not setup
                for k in range(PF):
                    rd2(G, k)
            s.wait(lg=tok)
            for g in range(G):
                a = acc_of[g]
                s.e(f"{MFMA32} {vr(a, 16)}, {vr(W + 4 * n, 4)}, {vr(XF + 4 * ((n & 1) * G + g), 4)}, "
                    f"{vr(a, 16) if n else 0}")
                for z in range(4):
                    if setup:
                        s.e(setup.popleft())
            s.e(f"{MFMA32} {vr(S[2], 16)}, {vr(W + 4 * n, 4)}, {vr(ONE, 4)}, {vr(S[2], 16) if n else 0}")
            tok = nxt

        P = [112, 113, 114, 115, 124, 125, 126, 127]
        htok, ready = {}, []

        def store(e):
            htok[e] = s.vmem(f"buffer_store_dwordx4 {vr(acc_of[e], 4)}, v15, {srd(sWS)}, s{self.sHS + e} offen sc1")

        def epi_items(e):
            head, body = self.epi_instrs(acc_of[e], S[2], P, 1, 116 + e)
            return head + body + [(1, lambda: store(e)) if e == 7 else (0, lambda: ready.append(e))]

        epi = deque(epi_items(0))
        side = deque(self.capture(self.side_work))
        self.published = {}
        for g in range(G, 8):
            epi.extend(epi_items(g - 1))
            assert g < 3 or g - 3 in htok
            for k in range(32):
                if k % 3 == 0 or k == 28:
                    self.stamp(s, f"k{k}", f"k{g}")
                room = o["gap"]
                if k + PF < 32:
                    rd2(g, k + PF)
                elif k == 28:
                    new = [e for e in htok if not any(e in v for v in self.published.values())]
                    self.published[g + 1] = new
                    s.wait(vm=s.vm, lg=s.lg)
                    self.stamp(s, f"ar{g + 1}", "arr")
                    s.barrier(f"beta{g + 1}")
                    while ready:
                        store(ready.pop(0))
                    self.stamp(s, f"be{g + 1}", "p2|arr")
                    room -= 4
                    if g < 7:
                        for q in range(3):
                            rd2(g + 1, q)
                elif k > 28 and g < 7:
                    rd2(g + 1, k - 26)
                if k % 4 == 0 and k < 28:
                    s.wait(lg=xt[g, k + 3])
                    room -= 1
                if g == 7 and k == 27:
                    room = 1000 if epi else room
                room = self.fill(s, epi, room)
                if g == 7 and not epi:
                    self.fill(s, side, min(room, o["gap"]))
                a = acc_of[g]
                s.e(f"{MFMA32} {vr(a, 16)}, {vr(W + 4 * k, 4)}, {vr(frag(g, k), 4)}, {vr(a, 16) if k else 0}")
        assert not epi and sorted(sum(self.published.values(), [])) == list(range(6)), self.published
        self.stamp(s, "g1end", "|p2|post")

        def late_flag(e):
            s.wait(vm=htok[e])
            self.flag(s, 10, 11, f"s{self.sHF + e - 6}")

        self.a_post(s, list(side), lambda: epi_items(7), late_flag)
        return s

    def stream_PA(self):
        s = Stream("PA")
        s.e("L_PA:")
        self.srd_consts(s, (sK, sV, sSH))
        stok = self.stats_load(s)
        self.srd_consts(s, (sWS,))
        kt, vt = self.kv_load(s, lambda: self.stats(s, stok))
        s.e(f"v_mov_b32 v10, s{sT}")
        tok = self.kv_compute(s, kt, vt)
        self.stamp(s, "kv")
        self.a_post_setup(s)
        self.kv_flag(s, tok, 10, 11)
        self.stamp(s, "kvflag")
        self.side_work(s)
        s.e("s_setprio 2")
        s.barrier("beta8")
        self.stamp(s, "beta8")
        self.a_post(s, [], lambda: [], None)
        return s

    def a_post(self, s, side, epi7, late_flag):
        join1, set1 = s.label("convjoin"), s.label("set1")
        s.e(f"s_bitcmp1_b32 s{sW}, 0\ns_cbranch_scc1 {set1}")
        snap = (s.vm, s.vm_done, s.lg, s.lg_done, s.nbar)
        res = []
        for st, tiles in enumerate(((7, 4, 3, 0), (6, 5, 2, 1))):
            s.vm, s.vm_done, s.lg, s.lg_done, s.nbar = snap
            if st:
                s.e(f"{set1}:\ns_nop 7")
            ytok = self.conv(s, st, tiles, side, epi7, late_flag)
            s.wait_all_lg()
            res.append((s.vm, s.vm_done, s.nbar, ytok))
            if not st:
                s.e(f"s_branch {join1}")
        assert res[0] == res[1]
        s.e(f"{join1}:\ns_setprio 0")
        self.stamp(s, "conv", "|post")
        sXO, sST, sYS = 20, 22, 23
        XR, SR, YR, XU, XM, YF = (16, 20), (24, 25), 28, (128, 136), (144, 152), (160, 168)
        F, RB, NL, SD, T = (176, 184), 192, 36, (38, 40), 224
        s.e(f"""s_lshl_b32 s{sXO}, s{sP2}, 16
            s_add_u32 s{sXO}, s{sXO}, s{sW8K}
            s_lshl_b32 s{sA}, s{sDB}, 7
            s_add_u32 s{sXO}, s{sXO}, s{sA}
            s_add_u32 s{sXO + 1}, s{sXO}, 32768
            s_lshl_b32 s{sST}, s{sP2}, 10
            s_lshl_b32 s{sB_}, s{sW}, 7
            s_add_u32 s{sST}, s{sST}, s{sB_}
            s_add_u32 s{sST}, s{sST}, {STATS}
            v_lshrrev_b32 v13, 3, v0
            v_and_b32 v14, 7, v0
            v_lshlrev_b32 v2, 4, v14
            v_lshl_add_u32 v6, v13, 12, v2
            v_lshl_add_u32 v2, v13, 10, v2
            v_lshlrev_b32 v9, 3, v13""")
        s.vmem(f"buffer_load_dwordx4 {vr(XR[0], 4)}, v2, {srd(sX)}, s{sXO} offen")
        s.vmem(f"buffer_load_dwordx4 {vr(XR[1], 4)}, v2, {srd(sX)}, s{sXO + 1} offen")
        st_txt = [f"buffer_load_dwordx2 {vr(44 + 2 * th, 2)}, v9, {srd(sWS)}, s{sST} offen offset:{512 * th} sc1"
                  for th in range(2)]
        for t in st_txt:
            xtok = s.vmem(t)
        s.e(f"""s_lshr_b32 s{sA}, s{sP2}, 2
            s_lshr_b32 s{sB_}, s{sP2}, 3
            s_xor_b32 s{sA}, s{sA}, s{sB_}
            s_and_b32 s{sA}, s{sA}, 1
            s_lshl_b32 s{sA}, s{sA}, 15
            s_lshl_b32 s{sB_}, s{sDB}, 12
            s_add_u32 s{sA}, s{sA}, s{sB_}
            s_add_u32 s{sA}, s{sA}, s{sW1K}
            s_add_u32 s{sA}, s{sA}, {FY}
            v_bfe_u32 v8, v0, 1, 3
            v_and_b32 v1, 1, v0
            v_lshlrev_b32 v1, 2, v1
            v_lshl_add_u32 v8, v8, 7, v1
            v_add_u32 v8, s{sA}, v8
            s_lshl_b32 s{sYS}, s{sDB}, 18
            s_lshl_b32 s{sB_}, s{sW}, 16
            s_add_u32 s{sYS}, s{sYS}, s{sB_}
            s_lshl_b32 s{sB_}, s{sP2}, 7
            s_add_u32 s{sYS}, s{sYS}, s{sB_}
            s_add_u32 s{sYS}, s{sYS}, {YB}
            s_add_u32 s{sYS + 1}, s{sYS}, 32768
            s_lshl_b32 s{sB_}, s{sW}, 5
            s_add_u32 s{sB_}, s{sB_}, s{sW4K}
            s_add_u32 s{sB_}, s{sB_}, {ACC0}
            v_add_u32 v12, s{sB_}, v15
            v_lshlrev_b32 v1, 1, v14
            v_xor_b32 v1, v1, v13
            s_lshl_b32 s{sA}, s{sW}, 11
            s_add_u32 s{sA}, s{sA}, {RA[0]}
            v_lshlrev_b32 v3, 8, v13
            v_lshl_add_u32 v3, v1, 4, v3
            v_xor_b32 v4, 16, v3
            v_add_u32 v3, s{sA}, v3
            v_add_u32 v4, s{sA}, v4
            v_lshrrev_b32 v1, 1, v14
            v_lshlrev_b32 v5, 12, v1
            v_and_b32 v1, 1, v14
            v_lshl_add_u32 v5, v1, 10, v5
            v_lshl_add_u32 v5, v14, 4, v5
            v_lshl_add_u32 v5, v13, 1, v5
            s_lshl_b32 s{sA}, s{sW}, 4
            s_add_u32 s{sA}, s{sA}, {ACC0}
            v_add_u32 v5, s{sA}, v5
            v_mov_b32 v13, {PFL}""")
        s.wait(vm=ytok)
        self.flag(s, 10, 11, f"s{sG}")
        self.stamp(s, "yflag", "post")
        for k in range(16):
            s.e(f"v_mov_b32 v{YF[0] + k}, 0")
        self.poll(s, xtok, st_txt, [44, 46])
        for th in range(2):
            for k in range(4):
                s.e(f"v_lshlrev_b32 v{XU[th] + 2 * k}, 16, v{XR[th] + k}")
                s.e(f"v_and_b32 v{XU[th] + 2 * k + 1}, 0xffff0000, v{XR[th] + k}")
            s.e(f"""v_lshlrev_b32 v1, 16, v{45 + 2 * th}
                v_and_b32 v{SD[th]}, 0xffff0000, v{45 + 2 * th}
                v_and_b32 v{SD[th] + 1}, 0xffff0000, v{45 + 2 * th}
                v_mov_b32 v{NL + th}, {fhex(-LOG2E)}""")
            for k in range(8):
                s.e(f"v_sub_f32 v{XM[th] + k}, v{XU[th] + k}, v1")
        ypoll = f"buffer_load_dword v7, v8, {srd(sWS)}, 0 offen sc1"
        s.e(f"s_lshl_b32 s{sA}, s{sW}, 2\ns_add_u32 s{sA}, s{sA}, {PFL + 16}\nv_mov_b32 v14, s{sA}")
        self.lds_spin(s, 14, 56, False)
        self.stamp(s, "go", "post")
        self.poll(s, s.vmem(ypoll), [ypoll], [7])
        self.stamp(s, "yp", "|post")
        for z in range(2):
            ytok = s.vmem(f"buffer_load_dwordx4 {vr(YR + 4 * z, 4)}, v6, {srd(sWS)}, s{sYS + z} offen sc1")
        ra = [Addr(s, 3, RA[0]), Addr(s, 4, RA[0])]

        def vop(op, pk, d, *src):
            if pk:
                for k in range(0, 8, 2):
                    s.e(f"v_pk_{op}_f32 {vr(d + k, 2)}, " + ", ".join(vr(r + k * st, 2) for r, st in src))
            else:
                for k in range(8):
                    s.e(f"v_{op}_f32 v{d + k}, " + ", ".join(f"v{r + k * st}" for r, st in src))

        def preads(region):
            out = []
            for w in range(4):
                for e in range(2):
                    r, off = ra[e].off(region + 8192 * w, region)
                    t = s.ds(f"ds_read_b128 {vr(RB + 8 * w + 4 * e, 4)}, {r} offset:{off}")
                out.append(t)
            return out

        def gate(th, rd, pk):
            for w in range(1, 4):
                s.wait(lg=rd[w])
                vop("add", pk, F[th], (RB if w == 1 else F[th], 1), (RB + 8 * w, 1))
            vop("mul", pk, T, (F[th], 1), (NL, 0))
            for k in range(8):
                s.e(f"v_exp_f32 v{T + k}, v{T + k}")
            vop("mul", pk, F[th], (F[th], 1), (XM[th], 1))
            vop("fma", pk, T, (T, 1), (SD[th], 0), (SD[th], 0))
            for k in range(8):
                s.e(f"v_rcp_f32 v{T + k}, v{T + k}")

        def store(th):
            R = 48 + 4 * th
            for x in range(4):
                s.e(f"v_cvt_pk_bf16_f32 v{R + x}, v{F[th] + 2 * x}, v{F[th] + 2 * x + 1}")
            s.vmem(f"buffer_store_dwordx4 {vr(R, 4)}, v2, {srd(sOUT)}, s{sXO + th} offen")

        self.lds_spin(s, 13, 56, True)
        self.stamp(s, "Z1", "|post")
        gate(0, preads(RA[0]), False)
        vop("mul", False, F[0], (F[0], 1), (T, 1))
        for e in range(2):
            ra[e].off(RA[1], RA[1])
        s.wait(vm=ytok)
        for z in range(2):
            wtok = s.ds(f"ds_write_b128 v12, {vr(YR + 4 * z, 4)} offset:{1040 * z}")
        s.wait(lg=wtok)
        self.stamp(s, "f0", "|post")
        s.barrier("Z2")
        self.stamp(s, "Z2", "|post")
        yread = lambda th: [s.ds(f"ds_read_u16_d16_hi v{YF[th] + k}, v5 offset:{128 * k + 64 * th}")
                            for k in range(8)][-1]
        y0 = yread(0)
        rd = preads(RA[1])
        s.wait(lg=y0)
        vop("fma", True, F[0], (F[0], 1), (YF[0], 1), (XU[0], 1))
        y1 = yread(1)
        store(0)
        gate(1, rd, True)
        s.wait(lg=y1)
        vop("mul", True, F[1], (F[1], 1), (YF[1], 1))
        vop("fma", True, F[1], (F[1], 1), (T, 1), (XU[1], 1))
        store(1)
        self.epoch(s)
        self.finish(s)

    def epoch(self, s):
        if s.name != "PA":
            return
        skip = s.label("noepoch")
        s.e(f"""s_cmp_lg_u32 s2, 255
            s_cbranch_scc1 {skip}
            s_cmp_lg_u32 s{sW8}, 0
            s_cbranch_scc1 {skip}
            v_lshlrev_b32 v20, 7, v0""")
        txt = []
        for z in range(4):
            s.e(f"s_mov_b32 s{sBLK + z}, {FY + 8192 * z}")
            txt.append(f"buffer_load_dword v{16 + z}, v20, {srd(sWS)}, s{sBLK + z} offen sc1")
        for t in txt:
            tok = s.vmem(t)
        self.poll(s, tok, txt, list(range(16, 20)))
        self.flag(s, 10, 11, "0")
        s.e(f"{skip}:")

    def conv(self, s, st, tiles, side, epi7, late_flag):
        o = self.o
        CACC, DF = 48, self.SIDE
        acc = {n: CACC + 4 * i for i, n in enumerate(tiles)}
        pool = deque(128 + 4 * i for i in range(28))
        ops = []
        for r in (1, 2, 3, 4, 5, 6, 7, 0):
            for i in range(8):
                ops += [(n, ("A", r + 8 * i), ("G", r, n - i)) for n in tiles if n >= i]
                if r == 0 and i == 0:
                    ops += [(n, ("D",), ("G", 0, n)) for n in tiles]
        first, last = {}, {}
        for idx, (n, a, g) in enumerate(ops):
            for key in (a, g):
                first.setdefault(key, idx)
                last[key] = idx
        loads = deque(sorted((k for k in first if k[0] != "D"), key=lambda k: first[k]))
        total = sum(2 if k[0] == "A" else 1 for k in loads)
        reg, tok = {("D",): DF}, {("D",): 0}
        issued = 0

        def load(key):
            nonlocal issued
            r = reg[key] = pool.popleft()
            if key[0] == "A":
                s.ds(f"ds_read_b64 {vr(r, 2)}, v8 offset:{64 * key[1]}")
                tok[key] = s.ds(f"ds_read_b64 {vr(r + 2, 2)}, v8 offset:{64 * key[1] + 8}")
                issued += 2
            else:
                tok[key] = s.ds(f"ds_read_b128 {vr(r, 4)}, v9 offset:{512 * (7 - key[2]) + 64 * key[1]}")
                issued += 1

        lead, grp = o["conv_lead"], o["conv_grp"]
        while loads and first[loads[0]] < 7:
            load(loads.popleft())
        epi = deque(epi7())
        side = deque(side)
        started = set()
        f7 = None
        for idx, (n, a, g) in enumerate(ops):
            while loads and pool and s.lg - s.lg_done <= 13 and (
                    first[loads[0]] <= idx + lead or issued < total * (idx + lead) / len(ops)):
                load(loads.popleft())
            if idx in (0, 50, 110):
                self.stamp(s, f"c{idx}", "post")
            if epi:
                self.fill(s, epi, o["conv_valu"])
                f7 = idx + 45
            else:
                self.fill(s, side, 1 if len(side) < 124 - idx else 2)
            if late_flag and idx == 42:
                late_flag(6)
            if late_flag and idx == f7:
                late_flag(7)
            if o["hold"] and idx == o["hold"]:
                s.barrier("hold")
            assert a in tok and g in tok, "fragment pool exhausted"
            if max(tok[a], tok[g]) > s.lg_done:
                ahead = [tok[k] for op in ops[idx:idx + grp] for k in op[1:] if k in tok]
                s.wait(lg=max(ahead))
            if a == ("A", 0) and first[a] == idx:
                assert not side and not epi
                for x in range(4):
                    s.e(f"v_and_b32 v{reg[a] + x}, v{reg[a] + x}, v{DF + 4 + x}")
            c = vr(acc[n], 4) if n in started else 0
            started.add(n)
            s.e(f"{MFMA16} {vr(acc[n], 4)}, {vr(reg[a], 4)}, {vr(reg[g], 4)}, {c}")
            for key in (a, g):
                if last[key] == idx and key[0] != "D":
                    pool.append(reg[key])
        assert not loads
        pairs = ((tiles[3], tiles[2]), (tiles[1], tiles[0]))
        for z, (n1, n2) in enumerate(pairs):
            R = 80 + 8 * z
            for q, n in enumerate((n1, n2)):
                s.e(f"v_cvt_pk_bf16_f32 v{R + 2 * q}, v{acc[n]}, v{acc[n] + 1}")
                s.e(f"v_cvt_pk_bf16_f32 v{R + 2 * q + 1}, v{acc[n] + 2}, v{acc[n] + 3}")
            s.e(f"v_permlane16_swap_b32 v{R}, v{R + 2}\nv_permlane16_swap_b32 v{R + 1}, v{R + 3}")
            ytok = s.vmem(f"buffer_store_dwordx4 {vr(R, 4)}, v{DF + 10}, {srd(sWS)}, s{self.sYO} offen "
                          f"offset:{512 * n1} sc1")
        return ytok

    B_CS, B_WD = 64, 128

    def b_late_setup(self, s):
        self.srd_consts(s, (sWD, sSK))
        s.e(f"s_add_u32 s{sCH}, s2, 32\ns_and_b32 s{sCH}, s{sCH}, 255")
        self.pair_index(s)
        self.lane0_offset(s, 12)
        self.block_ids(s)
        s.e(f"s_lshl_b32 s{sA}, s{sDB}, 7\ns_sub_u32 s{sA}, s{sA}, 8192")
        for b in range(7):
            s.e(f"s_lshl_b32 s{sBLA + b}, s{BLK[b]}, 16\ns_add_u32 s{sBLA + b}, s{sBLA + b}, s{sA}")
        self.wd_src_addr(s, 8, 13)
        self.wd_read_addrs(s, 9, 10, 13, ST1)
        s.e(f"""s_add_u32 s{sA}, s{sW4K}, {ST1 - ACC0}
            v_subrev_u32 v17, s{sA}, v9
            v_subrev_u32 v18, s{sA}, v10""")
        self.hflag_addr(s, 20, 13, BLK[:4])
        self.hflag_addr(s, 19, 13, BLK[4:])

    HB_BUF = staticmethod(lambda hb: (2 - hb) % 3)

    def b_hb_jobs(self, s, hb, toks):
        buf = self.HB_BUF(hb)

        def job(e):
            wpart, lds = (sW4K, ACC0) if buf == 2 else (sW8K, ST1 + 4096 * buf)
            toks[hb] = self.wd_dma(s, hb >> 1, wpart, lds + 1024 * e)

        return [lambda e=e: job(e) for e in range(4)]

    def b_hb_consume(self, s, hb, toks):
        buf = self.HB_BUF(hb)
        s.wait(vm=toks[hb])
        for k2 in range(2):
            n = 2 * hb + k2
            for dt in range(2):
                for x in range(2):
                    a, off = (17 + dt, 0) if buf == 2 else (9 + dt, 4096 * buf)
                    t = s.ds(f"ds_read_b64_tr_b16 {vr(self.B_WD + 8 * n + 4 * dt + 2 * x, 2)}, v{a} "
                             f"offset:{off + 2048 * k2 + 512 * x}")
        return t

    @staticmethod
    def mix(a, b):
        out = []
        for z in range(max(len(a), len(b))):
            out += a[z:z + 1] + b[z:z + 1]
        return out

    def b_window(self, s, toks, cover, quota, drain=False):
        do = lambda jobs: [f() for f in jobs]
        cover = deque(cover)
        take = lambda n: [cover.popleft() for _ in range(min(n, len(cover)))]
        st = toks.setdefault("st", [0, 0])
        quota = min(quota, 8 - st[0])
        rounds = quota + (min(3, st[0] + quota - st[1]) if drain else 0)
        for r in range(rounds):
            part = take(-(-len(cover) // (rounds - r)))
            if st[0] - st[1] == 3 or r >= quota:
                if r >= quota:
                    do(part[:-2])
                    part = part[-2:]
                rd = self.b_hb_consume(s, st[1], toks)
                st[1] += 1
                do(part[:2])
                s.wait(lg=rd)
                part = part[2:]
            if r < quota:
                do(self.mix(self.b_hb_jobs(s, st[0], toks), part))
                st[0] += 1
        do(cover)

    def b_ra_jobs(self, s, b, toks):
        def job(e):
            toks["ra", b] = self.wd_dma(s, 4 + b, sW8K, RA[b] + 1024 * e)

        return [lambda e=e: job(e) for e in range(8)]

    def b_ssm_load(self, s):
        s.e(f"""s_and_b32 s{sA}, s{sW}, 1
            s_lshl_b32 s{sA}, s{sA}, 11
            v_add_u32 v13, s{sA}, v5
            v_subrev_u32 v14, 8, v13
            v_add_u32 v15, 1016, v13
            s_lshr_b32 s{sA}, s{sW}, 1
            s_lshl_b32 s{sB_}, s{sCH}, 1
            s_add_u32 s{sA}, s{sA}, s{sB_}
            s_lshl_b32 s{sA}, s{sA}, 12""")
        s.vmem(f"buffer_load_dwordx4 v[106:109], v13, {srd(sSK)}, s{sA} offen")
        s.vmem(f"buffer_load_dwordx2 v[104:105], v14, {srd(sSK)}, s{sA} offen")
        s.vmem(f"buffer_load_dwordx4 v[112:115], v13, {srd(sSK)}, s{sA} offen offset:1024")
        return s.vmem(f"buffer_load_dwordx2 v[110:111], v15, {srd(sSK)}, s{sA} offen")

    def b_copy_items(self, s, tok, state):
        items = []

        def base():
            s.e(f"""s_lshr_b32 s{sA}, s{sW}, 1
                s_mul_i32 s{sA}, s{sA}, 16640
                s_add_u32 s{sA}, s{sA}, {X1 + 32}
                v_add_u32 v13, s{sA}, v13""")
            state["cp"] = None

        items.append(base)
        for z in range(2):
            d = 106 + 6 * z

            def even(z=z, d=d):
                s.wait(vm=tok, lg=state["cp"])
                s.ds(f"ds_write_b128 v13, {vr(d, 4)} offset:{1024 * z}")
                for x in range(4):
                    s.e(f"v_mov_b32 v{116 + x}, v{d - 1 + x}")
                s.ds(f"ds_write_b128 v13, v[116:119] offset:{2 * 4160 + 1024 * z}")

            def odd(z=z, d=d):
                for x in range(4):
                    s.e(f"v_alignbyte_b32 v{120 + x}, v{d + x}, v{d + x - 1}, 2")
                s.ds(f"ds_write_b128 v13, v[120:123] offset:{4160 + 1024 * z}")
                for x in range(4):
                    s.e(f"v_alignbyte_b32 v{124 + x}, v{d + x - 1}, v{d + x - 2}, 2")
                state["cp"] = s.ds(f"ds_write_b128 v13, v[124:127] offset:{3 * 4160 + 1024 * z}")

            items += [even, odd]
        return items

    def b_kvpoll_txt(self):
        return f"buffer_load_dword v22, v21, {srd(sWS)}, 0 offen sc1"

    def b_kvpoll_issue(self, s):
        s.e(f"""s_lshr_b32 s{sA}, s{sCH}, 5
            s_lshl_b32 s{sA}, s{sA}, 12
            s_andn2_b32 s{sB_}, 1, s{sW}
            s_lshl_b32 s{sB_}, s{sB_}, 11
            s_add_u32 s{sA}, s{sA}, s{sB_}
            s_add_u32 s{sA}, s{sA}, {FKV}
            v_and_b32 v21, 15, v0
            v_lshlrev_b32 v21, 7, v21
            v_add_u32 v21, s{sA}, v21""")
        return s.vmem(self.b_kvpoll_txt())

    def b_kvt_dma(self, s, ptok):
        self.poll(s, ptok, [self.b_kvpoll_txt()], [22])
        s.e(f"""s_lshl_b32 s{sA}, s{sCH}, 13
            s_lshl_b32 s{sB_}, s{sW}, 11
            s_add_u32 s{sA}, s{sA}, s{sB_}
            s_add_u32 s{sA}, s{sA}, {KVT}
            s_lshr_b32 s{sC}, s{sW}, 1
            s_lshl_b32 s{sC}, s{sC}, 10
            s_add_u32 s{sB_}, s{sB_}, s{sC}
            s_add_u32 m0, s{sB_}, {KVB}""")
        for z in range(2):
            t = s.vmem(f"buffer_load_dwordx4 v5, {srd(sWS)}, s{sA} offen offset:{1024 * z} sc1 lds")
        return t

    def b_pad_dma(self, s):
        s.e(f"""s_lshr_b32 s{sA}, s{sW}, 1
            s_mul_i32 s{sA}, s{sA}, {KVS}
            s_add_u32 m0, s{sA}, {KVB + 4096}
            v_mov_b32 v16, 0x40000000""")
        return s.vmem(f"buffer_load_dwordx4 v16, {srd(sSK)}, 0 offen lds")

    def b_copy_jobs(self, s, toks):
        sS, sL = 35, 36

        def job(p, z):
            if (p, z) == (0, 0):
                s.e(f"""s_lshl_b32 s{sS}, s{sCH}, 13
                    s_lshl_b32 s{sL}, s{sW}, 11
                    s_add_u32 s{sS}, s{sS}, s{sL}
                    s_lshr_b32 s{sA}, s{sW}, 1
                    s_mul_i32 s{sA}, s{sA}, {16640 - 4096}
                    s_add_u32 s{sL}, s{sL}, s{sA}""")
            s.e(f"s_add_u32 m0, s{sL}, {X1 + 32 + 4160 * p}\ns_sub_u32 s{sA}, s{sS}, {2 * p}")
            toks["cp"] = s.vmem(f"buffer_load_dwordx4 v5, {srd(sSK)}, s{sA} offen offset:{1024 * z} lds")

        return [lambda p=p, z=z: job(p, z) for z in range(2) for p in range(4)]

    def b_publish(self, s, groups):
        if not groups:
            return
        skip = s.label("nopub")
        s.e(f"s_cmp_lg_u32 s{sW}, 0\ns_cbranch_scc1 {skip}")
        for g in groups:
            self.row_of_group(s, sA, g)
            s.e(f"""s_mul_i32 s{sA}, s{sA}, 112
                s_add_u32 s{sA}, s{sA}, s44
                buffer_store_dword v11, v7, {srd(sWS)}, s{sA} offen sc1""")
        s.e(f"{skip}:")

    B_NS = 10
    G2 = ([(0, b, k) for b in range(4) for k in range(4)] + [(1, b, k) for b in range(3) for k in range(4)]
          + [(0, b, k) for b in range(4, 7) for k in range(4)] + [(1, b, k) for b in range(3, 7) for k in range(4)])

    def b_hload(self, s, ht, n):
        th, b, ks = self.G2[n]
        if ks == 0:
            self.h_soff(s, b, th)
        ht[n] = s.vmem(f"buffer_load_dwordx4 {vr(24 + 4 * (n % self.B_NS), 4)}, v5, {srd(sWS)}, s{sC} offen "
                       f"offset:{1024 * ks} sc1")

    def b_hpoll_txt(self, th, dst=22, src=20):
        return f"buffer_load_dword v{dst}, v{src}, {srd(sWS)}, 0 offen offset:{3584 * th} sc1"

    def b_hstart(self, s, hp0, ht):
        s.e(f"s_mul_i32 s{sF}, s{sP2}, {2 * 114688}\ns_add_u32 s{sF}, s{sF}, {HB}")
        self.poll(s, hp0, [self.b_hpoll_txt(0)], [22], mask=0xfff)
        self.stamp(s, "hp0", "|post")
        return [lambda n=n: self.b_hload(s, ht, n) for n in range(self.B_NS)]

    def stream_GB(self):
        s = Stream("GB")
        o = self.o
        s.e(f"""L_GB:
            v_lshrrev_b32 v13, 3, v0
            v_and_b32 v14, 7, v0
            v_bfe_u32 v15, v0, 4, 1
            v_lshlrev_b32 v15, 1, v15
            v_xor_b32 v15, v15, v14
            v_mul_u32_u24 v1, 3584, v13
            v_lshl_add_u32 v1, v15, 4, v1
            v_xor_b32 v2, 64, v1
            s_lshl_b32 s{sA}, s{sW}, 2
            v_lshrrev_b32 v15, 1, v13
            v_add_u32 v15, s{sA}, v15
            v_and_b32 v15, 7, v15
            v_xor_b32 v15, v15, v14
            v_lshlrev_b32 v3, 10, v13
            v_lshl_add_u32 v3, v15, 4, v3
            s_mul_i32 s{sG}, s{sW}, 57344
            s_lshl_b32 s{sA}, s{sJ}, 7
            s_add_u32 s{sG}, s{sG}, s{sA}""")
        sXB, sU, sV_ = sE + 1, sCNT, sD
        self.row_of_group(s, sXB, 0)
        s.e(f"""s_lshl_b32 s{sXB}, s{sXB}, 10
            s_add_u32 s{sXB}, s{sXB}, s{sW8K}
            s_setprio {o['prio_b']}""")
        self.stamp(s, "pre", "p0")
        s.e(f"s_waitcnt lgkmcnt(0)\ns_mov_b32 s{sF}, s{sXB}")
        self.stamp(s, "karg", "p0")
        cs = lambda c: X0 + (c % 3) * CH
        ct = {}

        def chunk(c):
            steps = [
                (f"""s_add_u32 s{sU}, s{sROT}, {c}
                    s_and_b32 s{sU}, s{sU}, 7
                    s_mul_i32 s{sV_}, s{sU}, 229376
                    s_add_u32 m0, s{sW4K}, {cs(c)}
                    s_add_u32 s{sV_}, s{sV_}, s{sG}""", 1, sWG, sV_),
                (f"s_add_u32 m0, s{sW4K}, {cs(c) + 2048}\ns_lshl_b32 s{sU}, s{sU}, 7", 2, sWU, sV_),
                (f"s_add_u32 m0, s{sW4K}, {cs(c) + 1024}\ns_add_u32 s{sV_}, s{sV_}, 28672", 1, sWG, sV_),
                (f"s_add_u32 m0, s{sW4K}, {cs(c) + 3072}\ns_add_u32 s{sU}, s{sU}, s{sF}", 2, sWU, sV_),
                (f"s_add_u32 m0, s{sW1K}, {cs(c) + 16384}\ns_add_u32 s{sV_}, s{sU}, 32768", 3, sX, sU),
                (f"s_add_u32 m0, s{sW1K}, {cs(c) + 20480}", 3, sX, sV_),
            ]

            def job(pre, v, buf, so):
                s.e(pre)
                ct[c] = s.vmem(f"buffer_load_dwordx4 v{v}, {srd(buf)}, s{so} offen lds")

            return [lambda a=a: job(*a) for a in steps]

        xt = {}
        sXR = 45

        def xjobs(g):
            def job(r):
                if r == 0:
                    self.row_of_group(s, sXR, g)
                    s.e(f"s_lshl_b32 s{sXR}, s{sXR}, 10")
                s.e(f"s_add_u32 m0, s{sW8320}, {XSLOT[g] + r * 1040}")
                s.e(f"s_add_u32 s{sXR}, s{sXR}, {'s%d' % sW8K if r == 0 else 1024}")
                xt[g] = s.vmem(f"buffer_load_dwordx4 v4, {srd(sX)}, s{sXR} offen lds")

            return [lambda r=r: job(r) for r in range(8)]

        def accr(areg, dst, off):
            for i in range(4):
                t = s.ds(f"ds_read_b128 {vr(dst + 4 * i, 4)}, v{areg} offset:{off + 1024 * i}")
            return t

        state, toks, ht = {}, {}, {}
        Q = deque()

        def run(budget):
            c0 = s.cost
            while Q and s.cost - c0 < budget:
                Q.popleft()()

        def mem(jobs, gap=o["qgap"]):
            for job in jobs:
                job()
                run(gap)

        def restage(done, cover, nxt):
            rd = self.b_hb_consume(s, done, toks)
            mem(cover)
            s.wait(lg=rd)
            mem(nxt)

        hb = lambda n: self.b_hb_jobs(s, n, toks)
        mem(chunk(0))
        self.stamp(s, "iss0", "p1|p0")
        s.e(f"s_load_dword s{sT}, s[{sWS}:{sWS + 1}], {EPOCH}")

        def deferred(q):
            q.e(f"""v_lshlrev_b32 v5, 4, v0
                s_lshl_b32 s{sA}, s{sROT}, 3
                v_add_u32 v4, s{sA}, v0
                v_and_b32 v4, 63, v4
                v_lshlrev_b32 v4, 4, v4
                s_mul_i32 s{sW8320}, s{sW}, 8320
                v_lshrrev_b32 v7, 2, v0
                v_min_u32 v7, 1, v7
                v_lshlrev_b32 v7, 28, v7
                v_add_lshl_u32 v7, v7, v0, 2
                s_lshl_b32 s44, s{sJ}, 7
                s_add_u32 s44, s44, {FH}""")
            self.srd_consts(q, (sWS,))
            self.b_late_setup(q)
            q.e(f"""v_and_b32 v13, 15, v0
                v_lshlrev_b32 v13, 7, v13
                s_lshl_b32 s35, s{sCH}, 13
                s_lshl_b32 s{sA}, s{sW}, 11
                s_add_u32 s35, s35, s{sA}""")

        if o["spf"]:
            s.e(f"""s_lshl_b32 s{sA}, s2, 13
                s_lshl_b32 s{sB_}, s{sW}, 11
                s_add_u32 s{sA}, s{sA}, s{sB_}
                s_add_u32 s16, s{sWD}, s{sA}
                s_addc_u32 s17, s{sWD + 1}, 0
                s_add_u32 s{sA}, s{sA}, {32 << 13}
                s_add_u32 s18, s{sSK}, s{sA}
                s_addc_u32 s19, s{sSK + 1}, 0""")
        Q.extend(lambda i=i: s.e(i) for i in self.capture(deferred))
        mem(chunk(1), 50)
        self.stamp(s, "iss1", "p1|p0")
        run(300)
        fill = deque(xjobs(2) + xjobs(3))
        spf = deque()
        if o["spf"]:
            spf.extend(f"s_load_dword s36, s[16:17], {64 * z}" for z in range(32))
            if o["spf"] & 16:
                spf.extend(f"s_load_dword s36, s[18:19], {64 * z}" for z in range(32))
        for c in range(8):
            s.wait(vm=ct[c])
            if c < 3:
                self.stamp(s, f"land{c}", "p0")
            s.barrier(f"b{c}")
            self.stamp(s, f"b{c}", "|p1|p0" if c == 0 else "p1")
            if c >= o["spf_from"]:
                for z in range(min(len(spf), o["spf"] & 15)):
                    s.e(spf.popleft())
            if c + 2 < 8:
                mem(chunk(c + 2), 40)
            if c >= o["fill_from"]:
                room = len(fill) - (16 - o["fill_max"])
                mem([fill.popleft() for z in range(min(room, o["fill_n"] if c < 6 else 4))], 40)
            if c == 0:
                self.tag_ready(s)
                s.e(f"v_mov_b32 v11, s{sT}")
            if c == 5:
                assert not Q
        while len(fill) > 8:
            fill.popleft()()
        if not o["spf"] & 16:
            s.vmem(f"buffer_load_dword v14, v13, {srd(sSK)}, s35 offen")
        self.b_pad_dma(s)
        s.wait(vm=xt[2])
        s.barrier("b8")
        self.stamp(s, "b8", "|p1|p2")

        def beta(g):
            s.wait(vm=xt.get(g), lg=s.lg)
            self.stamp(s, f"ar{g}", "arr")
            s.barrier(f"beta{g}")
            self.stamp(s, f"be{g}", "p2|arr")
            self.b_publish(s, self.published[g])

        plan = [int(c) for c in str(o["plan"]).zfill(6)]
        while spf:
            s.e(spf.popleft())
        self.b_window(s, toks, list(fill) + xjobs(4), plan[0])
        for g in (3, 4, 5):
            beta(g)
            self.b_window(s, toks, xjobs(g + 2), plan[g - 2])
        beta(6)
        s.wait_all_lg()
        kvp = self.b_kvpoll_issue(s)
        cp = self.b_copy_jobs(s, toks)
        self.b_window(s, toks, cp[:o["cp6"]], plan[4])
        kvt = self.b_kvt_dma(s, kvp)
        beta(7)
        mem(cp[o["cp6"]:])
        kvt = max(kvt, toks["cp"])
        ra = self.b_ra_jobs(s, 0, toks) + self.b_ra_jobs(s, 1, toks)
        assert o["ra7"] <= 8
        self.b_window(s, toks, ra[:o["ra7"]], plan[5])
        hp0 = s.vmem(self.b_hpoll_txt(0))
        s.wait(vm=kvt)
        beta(8)
        self.b_tail(s, toks, ra[o["ra7"]:], hp0)
        return s

    def stream_PB(self):
        s = Stream("PB")
        s.e(f"""L_role_p:
            s_cmp_lt_u32 s{sW8}, 4
            s_cbranch_scc1 L_PA
            v_lshlrev_b32 v5, 4, v0""")
        self.srd_consts(s, (sK, sV, sSH, sWS))
        s.e(f"s_waitcnt lgkmcnt(0)\ns_load_dword s{sT}, s[{sWS}:{sWS + 1}], {EPOCH}")
        state, toks = {}, {}
        kt, vt = self.kv_load(s)
        self.tag_ready(s)
        s.e(f"v_mov_b32 v11, s{sT}")
        tok = self.kv_compute(s, kt, vt)
        self.stamp(s, "kv")
        self.b_late_setup(s)
        ssm_tok = self.b_ssm_load(s)
        self.kv_flag(s, tok, 11, 12)
        self.stamp(s, "kvflag")
        do = lambda jobs: [f() for f in jobs]
        do(self.b_copy_items(s, ssm_tok, state))
        self.b_pad_dma(s)
        ra = self.b_ra_jobs(s, 0, toks) + self.b_ra_jobs(s, 1, toks)
        self.b_window(s, toks, [], 2)
        kvp = self.b_kvpoll_issue(s)
        self.b_window(s, toks, [], 1)
        kvt = self.b_kvt_dma(s, kvp)
        self.b_window(s, toks, ra[:4], 0)
        s.wait(vm=kvt, lg=s.lg)
        s.barrier("beta8")
        self.stamp(s, "beta8")
        self.b_window(s, toks, ra[4:10], 3)
        hp0 = s.vmem(self.b_hpoll_txt(0))
        self.b_tail(s, toks, ra[10:], hp0)
        s.e("L_exit:\ns_endpgm")
        return s

    def b_tail(self, s, toks, ra, hp0):
        ht = {}
        left = 8 - toks["st"][0]
        self.b_window(s, toks, ra[:3 * left], left)
        hj = self.b_hstart(s, hp0, ht)
        self.b_window(s, toks, self.mix(hj, ra[3 * left:]), 0, drain=True)
        last = self.b_ra_jobs(s, 2, toks)
        early = 8 - self.o["late_ra"]
        for f in last[:early]:
            f()
        self.b_post(s, toks, ht, deque(last[early:]))

    def b_post(self, s, toks, ht, late):
        WD, ACC, NS = self.B_WD, (64, 96), self.B_NS
        slot = lambda n: 24 + 4 * (n % NS)
        polls = {12: [self.b_hpoll_txt(0), self.b_hpoll_txt(1, 23)], 28: [self.b_hpoll_txt(0, 22, 19)],
                 44: [self.b_hpoll_txt(1, 22, 19)]}
        ptok = {12: [s.vmem(t) for t in polls[12]][-1]}
        pa = self.partial_addrs(s, 1, 13)
        s.e(f"""s_lshl_b32 s{sA}, s{sW}, 2
            s_add_u32 s{sA}, s{sA}, {PFL}
            v_mov_b32 v13, s{sA}
            v_mov_b32 v14, 1""")
        aR = [Addr(s, 9, ST1), Addr(s, 10, ST1)]
        wr = {}

        def wdread(m):
            b, ks = divmod(m, 4)
            s.wait(vm=toks["ra", b])
            for dt in range(2):
                for x in range(2):
                    r, off = aR[dt].off(RA[b] + 2048 * ks + 512 * x, RA[b])
                    wr[m] = s.ds(f"ds_read_b64_tr_b16 {vr(WD + 8 * m + 4 * dt + 2 * x, 2)}, {r} offset:{off}")

        def mm(n, dt):
            th, b, ks = self.G2[n]
            a, w = ACC[th] + 16 * dt, WD + 8 * (4 * (b & 3) + ks) + 4 * dt
            s.e(f"{MFMA32} {vr(a, 16)}, {vr(w, 4)}, {vr(slot(n), 4)}, {vr(a, 16) if (b, ks) != (0, 0) else 0}")

        if self.o["hold"]:
            s.barrier("hold")
        s.e("s_setprio 1")
        self.stamp(s, "g2s", "|post")
        for n in range(48):
            s.wait(vm=ht[n], lg=wr.get(n - 28))
            if n in (5, 16, 28, 40):
                self.stamp(s, f"n{n}", "post")
            mm(n, 0)
            if 41 <= n < 45:
                self.partial_write(s, pa, ACC[0], RA[0], 0, n - 41)
            mm(n, 1)
            if 41 <= n < 45:
                self.partial_write(s, pa, ACC[0], RA[0], 1, n - 41)
            if n == self.o["ygo"]:
                s.ds("ds_write_b32 v13, v14 offset:16")
            if n == 44:
                s.ds("ds_write_b32 v13, v14")
                self.stamp(s, "p0", "|post")
            if 17 <= n < 29:
                wdread(n - 17)
            if n + NS in polls:
                self.poll(s, ptok[n + NS], polls[n + NS], [22, 23][:len(polls[n + NS])])
            if n + NS < 56:
                self.b_hload(s, ht, n + NS)
            if late:
                late.popleft()()
            if n + 2 * NS - 2 in polls:
                ptok[n + 2 * NS - 2] = s.vmem(polls[n + 2 * NS - 2][0])
        for n in range(48, 56):
            s.wait(vm=ht[n])
            mm(n, 0)
        for n in range(48, 56):
            mm(n, 1)
            if n >= 52:
                s.e("s_nop 1")
                self.partial_write(s, pa, ACC[1], RA[1], 0, n - 52)
        self.stamp(s, "g2b", "|post")
        for q in range(4):
            wtok = self.partial_write(s, pa, ACC[1], RA[1], 1, q)
        s.wait(lg=wtok)
        s.barrier("Z2")
        self.finish(s)

    def policy(self, line):
        abl = self.o["abl"]
        ws = srd(sWS) in line and " sc1" in line
        if "h" in abl and line.startswith("buffer_load_dwordx4") and ws and f"s{sC} offen" in line:
            return line.replace(f"s{sC} offen", f"s{sW8K} offen").replace(srd(sWS), srd(sX))
        if "p" in abl and line.startswith("buffer_load_dword ") and ws and ", 0 offen" in line:
            d = line.split()[1].rstrip(",")
            return f"v_mov_b32 {d}, s{sT}\n    buffer_load_dword v255, v0, {srd(sX)}, 0 offen"
        if "s" in abl and line.startswith("buffer_store_dwordx4") and ws:
            return line.replace(" sc1", "")
        if "d" in abl and line.startswith("buffer_load_dwordx4 v8,"):
            return re.sub(r"s\d+ offen", f"s{sW8K} offen", line)
        if "x" in abl and line.startswith("buffer_load_dwordx4 v4,"):
            return re.sub(r"s\d+ offen", f"s{sW8K} offen", line)
        if "f" in abl and line.startswith("buffer_store") and ws:
            return line.replace(" sc1", "")
        if "l" in abl and line.startswith("buffer_load_dwordx4") and ws:
            return line.replace(" sc1", "")
        if not line.startswith("buffer_load"):
            return line
        for key, regs in (("x", (sX,)), ("w", (sWG, sWU)), ("d", (sWD,)), ("k", (sK, sV, sSH, sSK))):
            if key in self.o["nt"] and any(srd(r) in line for r in regs):
                return line[:-4] + " nt lds" if line.endswith(" lds") else line + " nt"
        return line

    def pre_kernel(self):
        mode = self.o["pre"]
        s = Stream("pre")
        s.e(f"""s_cmp_ge_u32 s2, 256
            s_cbranch_scc1 L_pre_end
            s_load_dwordx2 s[4:5], s[0:1], 56
            s_load_dwordx2 s[8:9], s[0:1], 64
            s_load_dwordx2 s[12:13], s[0:1], 0
            s_load_dwordx2 s[24:25], s[0:1], 8
            s_load_dwordx2 s[28:29], s[0:1], 16
            s_getpc_b64 s[16:17]
            L_pre_pc:
            s_sub_u32 s16, s16, L_pre_pc-{NAME}_kernel
            s_subb_u32 s17, s17, 0
            s_lshr_b32 s18, s2, 3
            v_and_b32 v1, 15, v0
            v_lshlrev_b32 v1, 5, v1
            v_add_u32 v1, s18, v1
            v_lshlrev_b32 v1, 7, v1
            v_min_u32 v1, L_code_end-{NAME}_kernel-4, v1
            global_load_dword v8, v1, s[16:17]""")
        for r, size in ((4, 1835008), (8, 1835008), (12, 2097152), (24, 2097152), (28, 2097152)):
            s.e(f"s_mov_b32 s{r + 2}, {size}\ns_mov_b32 s{r + 3}, 0x00020000")
        s.e(f"""s_and_b32 s19, s2, 7
            s_lshr_b32 s20, s19, 1
            s_and_b32 s19, s19, 1
            v_lshrrev_b32 v2, 3, v0
            v_and_b32 v3, 7, v0
            v_min_u32 v4, 6, v3
            v_mul_u32_u24 v5, 3584, v2
            v_lshl_add_u32 v5, v4, 7, v5
            s_mul_i32 s21, s18, {16 * 3584}
            s_mul_i32 s22, s20, 896
            s_add_u32 s21, s21, s22
            s_add_u32 s22, s21, {8 * 3584}
            v_lshlrev_b32 v6, 7, v0
            s_lshl_b32 s19, s19, 2
            s_and_b32 s23, s18, 3
            s_add_u32 s19, s19, s23
            s_lshl_b32 s19, s19, 2
            s_add_u32 s19, s19, s20
            s_lshl_b32 s19, s19, 3
            s_lshr_b32 s23, s18, 2
            s_add_u32 s19, s19, s23
            s_lshl_b32 s19, s19, 13
            s_and_b32 s23, s2, 31
            s_lshl_b32 s23, s23, 3
            s_lshr_b32 s3, s2, 5
            s_add_u32 s23, s23, s3
            s_lshl_b32 s23, s23, 13
            s_waitcnt lgkmcnt(0)""")
        if mode & 1:
            s.e("""buffer_load_dword v9, v5, s[4:7], s21 offen
                buffer_load_dword v10, v5, s[8:11], s21 offen
                buffer_load_dword v11, v5, s[4:7], s22 offen
                buffer_load_dword v12, v5, s[8:11], s22 offen
                buffer_load_dword v13, v6, s[12:15], s19 offen""")
        if mode & 2:
            s.e("""buffer_load_dword v14, v6, s[24:27], s23 offen
                buffer_load_dword v15, v6, s[28:31], s23 offen""")
        s.e("L_pre_end:\ns_endpgm")
        lines, _ = fix_hazards(s.L)
        return ([".text", ".globl warm_kernel", ".p2align 8", ".type warm_kernel,@function", "warm_kernel:"]
                + [l if l.endswith(":") else "    " + l for l in lines]
                + ['.section .rodata,"a"', ".p2align 6", ".amdhsa_kernel warm_kernel", "  .amdhsa_next_free_vgpr 16",
                   "  .amdhsa_next_free_sgpr 40", "  .amdhsa_accum_offset 16", "  .amdhsa_group_segment_fixed_size 0",
                   "  .amdhsa_kernarg_size 104", "  .amdhsa_user_sgpr_count 2",
                   "  .amdhsa_user_sgpr_kernarg_segment_ptr 1", "  .amdhsa_system_sgpr_workgroup_id_x 1",
                   ".end_amdhsa_kernel", ""])

    def build(self):
        ga = self.stream_GA()
        streams = [self.entry(), self.stream_GB(), ga, self.stream_PB(), self.stream_PA()]
        by = {s.name: s for s in streams}
        assert by["GA"].nbar == by["GB"].nbar, (by["GA"].nbar, by["GB"].nbar)
        assert by["PA"].nbar == by["PB"].nbar, (by["PA"].nbar, by["PB"].nbar)
        body = []
        self.info = {}
        for s in streams:
            lines, added = fix_hazards([self.policy(l) for l in s.L])
            self.info[s.name] = (len(lines), added, s.nbar)
            body += lines
        ref = open(f"cdna_kernels/{NAME}.s.ref").read().split("\n")
        head = [l for l in ref if l.startswith(";") and "@launch" not in l]
        if self.o["pre"]:
            head += ["; @launch kernel=warm_kernel grid=(256,1,1) block=(64,1,1) lds=0",
                     f"; @launch kernel={NAME}_kernel grid=(256,1,1) block=(512,1,1) lds={LDS_BYTES}"]
        else:
            head += [f"; @launch grid=(256,1,1) block=(512,1,1) lds={LDS_BYTES}"]
        out = head + ['.amdgcn_target "amdgcn-amd-amdhsa--gfx950"', ".text", f".globl {NAME}_kernel", ".p2align 8",
                      f".type {NAME}_kernel,@function", f"{NAME}_kernel:"]
        out += [l if l.endswith(":") else "    " + l for l in body]
        out += ["L_code_end:", '.section .rodata,"a"', ".p2align 6", f".amdhsa_kernel {NAME}_kernel",
                "  .amdhsa_next_free_vgpr 256", "  .amdhsa_next_free_sgpr 102", "  .amdhsa_accum_offset 256",
                "  .amdhsa_group_segment_fixed_size 0", "  .amdhsa_kernarg_size 104", "  .amdhsa_user_sgpr_count 2",
                "  .amdhsa_user_sgpr_kernarg_segment_ptr 1", "  .amdhsa_system_sgpr_workgroup_id_x 1",
                "  .amdhsa_float_denorm_mode_32 3", ".end_amdhsa_kernel", ""]
        if self.o["pre"]:
            out += self.pre_kernel()
        return "\n".join(out)


def parse_opts(args):
    kw = {}
    for a in args:
        k, v = a.split("=")
        kw[k] = int(v) if v.lstrip("-").isdigit() else v
    return kw


if __name__ == "__main__":
    path = sys.argv[1]
    g = Gen(**parse_opts(sys.argv[2:]))
    open(path, "w").write(g.build())
    print(g.info, g.published)
```
